```python
import torch

def _softmax(x, axis=-1):
    return torch.softmax(x, dim=axis)
def _gelu(x):
    return torch.nn.functional.gelu(x, approximate="tanh")
def _silu(x):
    return torch.nn.functional.silu(x)
def _sigmoid(x):
    return torch.sigmoid(x)
def _layernorm(x, axis=-1, eps=1e-5):
    m = x.mean(dim=axis, keepdim=True)
    v = x.var(dim=axis, keepdim=True, unbiased=False)
    return (x - m) / torch.sqrt(v + eps)
def _scatter_add(tgt, idx, src, axis=0):
    return tgt.clone().index_add_(axis, idx, src)
def _segment_sum(src, seg, n):
    out = torch.zeros((n,) + src.shape[1:], dtype=src.dtype)
    return out.index_add_(0, seg, src)
def _pad(x, pw):
    flat = tuple(v for pair in reversed(pw) for v in pair)
    return torch.nn.functional.pad(x, flat)

kernel_name = 'gated_mix__linear_attn_block__dense_activation_relu__prompt'

def setup_inputs():

    _w = (lambda a: (lambda t: t.to(torch.bfloat16) if t.is_floating_point() else t)(torch.as_tensor(a)))
    def _A_setup():
        B, S, D = 1, 2048, 640
        return {
            "x": _w((lambda *s: torch.randn(*s, dtype=torch.bfloat16) * 0.05)(B, S, D)),
            "wqkv": _w((lambda *s: torch.randn(*s, dtype=torch.bfloat16) * 0.8)(D, 3 * D)),
            "wo": _w((lambda *s: torch.randn(*s, dtype=torch.bfloat16) * 0.2)(D, D)),
        }
    _A_in = _A_setup()

    def _B_setup():
        B, S, D, Dff = 1, 2048, 640, 1536
        return {
            "x": _w((lambda *s: torch.randn(*s, dtype=torch.bfloat16) * 0.05)(B, S, D)),
            "w1": _w((lambda *s: torch.randn(*s, dtype=torch.bfloat16) * 0.05)(D, Dff)),
            "w2": _w((lambda *s: torch.randn(*s, dtype=torch.bfloat16) * 0.05)(Dff, D)),
        }
    _B_in = _B_setup()

    return {
        "A_x": _A_in["x"],
        "A_wqkv": _A_in["wqkv"],
        "A_wo": _A_in["wo"],
        "B_x": _B_in["x"],
        "B_w1": _B_in["w1"],
        "B_w2": _B_in["w2"],
        "gate_w": _w((lambda *s: torch.randn(*s, dtype=torch.bfloat16) * 0.05)(640) * 16.0),
    }

def reference(A_x, A_wqkv, A_wo, B_x, B_w1, B_w2, gate_w):
    def _A_ref(x, wqkv, wo):
        B, S, D = x.shape
        H = 32; Dh = D // H
        qkv = (lambda x, *d: x.permute(*d))((x @ wqkv).reshape(B, S, 3, H, Dh), 2, 0, 3, 1, 4)
        q, k, v = qkv[0], qkv[1], qkv[2]
        phi = lambda t: torch.where(t > 0, t + 1, torch.exp(t)) + 1e-6
        pq, pk = phi(q), phi(k)
        kv = torch.einsum("bhsd,bhse->bhde", pk, v)
        z = torch.einsum("bhsd->bhd", pk)
        num = torch.einsum("bhqd,bhde->bhqe", pq, kv)
        den = torch.einsum("bhqd,bhd->bhq", pq, z)[..., None] + 1e-6
        o = num / den
        return (lambda x, *d: x.permute(*d))(o, 0, 2, 1, 3).reshape(B, S, D) @ wo

    def _B_ref(x, w1, w2):
        h = torch.einsum("bsd,df->bsf", x, w1)
        zero = torch.zeros_like(h)
        h = torch.maximum(h, zero)
        return torch.einsum("bsf,fd->bsd", h, w2)

    x = A_x
    g = _sigmoid((x * gate_w).sum(-1, keepdims=True))
    a = _A_ref(x, A_wqkv, A_wo)
    b = _B_ref(x, B_w1, B_w2)
    return g * a + (1 - g) * b
```

```python
import re

TRANS = ("v_exp_f32", "v_log_f32", "v_rcp_f32", "v_rsq_f32", "v_sqrt_f32", "v_sin_f32", "v_cos_f32", "v_rcp_iflag_f32")

def _regs(tok):
    tok = tok.strip()
    tok = tok.lstrip("-")
    if tok.startswith("abs(") or tok.startswith("|"):
        tok = tok.replace("abs(", "").replace(")", "").replace("|", "")
    m = re.fullmatch(r"([vsa])(\d+)", tok)
    if m:
        return {(m.group(1), int(m.group(2)))}
    m = re.fullmatch(r"([vsa])\[(\d+):(\d+)\]", tok)
    if m:
        return {(m.group(1), i) for i in range(int(m.group(2)), int(m.group(3)) + 1)}
    if tok in ("vcc", "vcc_lo", "vcc_hi"):
        return {("vcc", 0)}
    if tok == "m0":
        return {("m0", 0)}
    if tok in ("exec", "exec_lo", "exec_hi"):
        return {("exec", 0)}
    if tok == "scc":
        return {("scc", 0)}
    return set()

class Ins:
    __slots__ = ("text", "mn", "ops", "cls", "wr", "rd", "srcC", "srcAB", "passes", "is_label", "target", "lds", "nstates", "wide_store_data")
    def __init__(self, text):
        self.text = text
        self.is_label = False
        self.target = None
        t = text.split(";")[0].split("//")[0].strip()
        self.wr = set(); self.rd = set(); self.srcC = set(); self.srcAB = set(); self.passes = 0
        self.lds = False; self.nstates = 1; self.wide_store_data = set()
        if not t:
            self.mn = ""; self.cls = "none"; self.ops = []; self.nstates = 0; return
        if t.endswith(":"):
            self.is_label = True; self.mn = t[:-1]; self.cls = "label"; self.ops = []; self.nstates = 0; return
        if t.startswith("."):
            self.mn = t; self.cls = "none"; self.ops = []; self.nstates = 0; return
        parts = t.split(None, 1)
        mn = parts[0]
        self.mn = mn
        rest = parts[1] if len(parts) > 1 else ""
        ops = []
        if rest:
            rest_nomod = re.sub(r"\b(op_sel|op_sel_hi|neg_lo|neg_hi|quad_perm):\[[^\]]*\]", "", rest)
            raw = [x.strip() for x in rest_nomod.split(",")]
            last = raw[-1].split()
            mods = []
            if last:
                raw[-1] = last[0]
                mods = last[1:]
            ops = []
            skip = False
            for x in raw:
                ops.append(x)
            self_mods = mods
            if "lds" in rest.split():
                self.lds = True
        self.ops = ops
        base = re.sub(r"_(e32|e64|dpp|sdwa)$", "", mn)
        R = lambda i: _regs(ops[i]) if i < len(ops) else set()
        allr = lambda a: set().union(*[R(i) for i in range(a, len(ops))]) if len(ops) > a else set()
        if base.startswith("v_mfma"):
            self.cls = "mfma"
            self.wr = R(0); self.srcAB = R(1) | R(2); self.srcC = R(3); self.rd = self.srcAB | self.srcC
            self.passes = 8 if "32x32" in base else 4
        elif base.startswith("v_cmp"):
            self.cls = "valu"; self.wr = R(0); self.rd = allr(1)
            if base.startswith("v_cmpx"):
                self.wr |= {("exec", 0)}
        elif base in ("v_readfirstlane_b32", "v_readlane_b32"):
            self.cls = "valu"; self.wr = R(0); self.rd = allr(1)
        elif base in ("v_add_co_u32", "v_sub_co_u32", "v_subrev_co_u32"):
            self.cls = "valu"; self.wr = R(0) | R(1); self.rd = allr(2)
        elif base in ("v_addc_co_u32", "v_subb_co_u32"):
            self.cls = "valu"; self.wr = R(0) | R(1); self.rd = allr(2)
        elif base.startswith("v_permlane"):
            self.cls = "valu"; self.wr = R(0) | R(1); self.rd = R(0) | R(1)
        elif base in ("v_fmac_f32", "v_dot2c_f32_bf16", "v_pk_fmac_f16"):
            self.cls = "valu"; self.wr = R(0); self.rd = allr(0)
        elif base.startswith("v_cndmask"):
            self.cls = "valu"; self.wr = R(0); self.rd = allr(1)
            if len(ops) == 3:
                self.rd |= {("vcc", 0)}
        elif base.startswith("v_"):
            self.cls = "trans" if base in TRANS else "valu"
            self.wr = R(0); self.rd = allr(1)
        elif base.startswith("ds_"):
            self.cls = "ds"
            if base.startswith("ds_read") or base.startswith("ds_bpermute") or base.startswith("ds_permute") or base.startswith("ds_swizzle"):
                self.wr = R(0); self.rd = allr(1)
            else:
                self.rd = allr(0)
        elif base.startswith("buffer_") or base.startswith("global_") or base.startswith("flat_"):
            self.cls = "vmem"
            if base in ("buffer_wbl2", "buffer_inv"):
                pass
            elif "store" in base:
                self.rd = allr(0)
                if "x4" in base or "x3" in base:
                    self.wide_store_data = R(0) if base.startswith("buffer_") else R(1)
            elif "atomic" in base:
                if "sc0" in rest.split():
                    self.wr = R(0)
                self.rd = allr(0)
            elif self.lds or "load_lds" in base:
                self.lds = True
                self.rd = allr(0) | {("m0", 0)}
            else:
                self.wr = R(0); self.rd = allr(1)
        elif base.startswith("s_load") or base.startswith("s_buffer_load") or base in ("s_memtime", "s_memrealtime"):
            self.cls = "smem"; self.wr = R(0); self.rd = allr(1)
        elif base == "s_nop":
            self.cls = "nop"; self.nstates = int(ops[0], 0) + 1
        elif base in ("s_waitcnt", "s_barrier", "s_sleep", "s_setprio", "s_endpgm"):
            self.cls = "misc"
        elif base.startswith("s_cbranch") or base == "s_branch":
            self.cls = "branch"; self.target = ops[0]
        elif base.startswith("s_cmp") or base.startswith("s_bitcmp"):
            self.cls = "salu"; self.rd = allr(0)
        elif base.startswith("s_"):
            self.cls = "salu"; self.wr = R(0); self.rd = allr(1)
            if "saveexec" in base:
                self.wr |= {("exec", 0)}
            if base in ("s_addk_i32", "s_mulk_i32"):
                self.rd |= R(0)
        else:
            raise ValueError("unknown instruction: " + text)

def is_valu(i): return i.cls in ("valu", "trans")
def sg(rs): return {r for r in rs if r[0] in ("s", "vcc")}
def vg(rs): return {r for r in rs if r[0] in ("v", "a")}

def required(prev, cur):
    need = 0
    pv, cv = is_valu(prev), is_valu(cur)
    if pv:
        if cur.cls == "mfma" and vg(prev.wr) & cur.rd:
            need = max(need, 2)
        if prev.cls == "trans" and cv and cur.cls != "trans" and prev.wr & cur.rd:
            need = max(need, 1)
        if prev.cls == "trans" and cur.cls == "trans" and prev.wr & cur.rd:
            need = max(need, 1)
        sw = sg(prev.wr)
        if sw:
            if cv and sw & cur.rd:
                need = max(need, 4 if cur.mn.startswith(("v_readlane", "v_writelane")) else 2)
            if cur.cls == "vmem" and sw & cur.rd:
                need = max(need, 5)
            if cur.cls in ("salu", "smem", "branch") and (sw & cur.rd or (cur.cls == "branch" and "vcc" in cur.mn and ("vcc", 0) in sw)):
                need = max(need, 4 if cur.cls == "branch" else 2)
        if cur.mn.startswith(("v_readfirstlane", "v_readlane")) and vg(prev.wr) & cur.rd:
            need = max(need, 1)
        if cur.mn.startswith("v_permlane") and vg(prev.wr) & cur.rd:
            need = max(need, 2)
        if "dpp" in cur.mn and vg(prev.wr) & cur.rd:
            need = max(need, 2)
        if ("exec", 0) in prev.wr:
            need = max(need, 5)
    if prev.cls == "mfma":
        p = prev.passes
        big = {4: 8, 8: 12}[p]; ovl = {4: 6, 8: 10}[p]; war = {4: 3, 8: 7}[p]
        if cur.cls == "mfma":
            if prev.wr & cur.srcAB:
                need = max(need, big)
            if prev.wr & cur.srcC:
                if not (prev.wr == cur.srcC and prev.passes == cur.passes):
                    need = max(need, ovl)
            if prev.wr & cur.wr and not (prev.wr == cur.wr):
                need = max(need, ovl)
        else:
            if prev.wr & (cur.rd | cur.wr):
                need = max(need, big)
            if cv and prev.srcC & cur.wr:
                need = max(need, war)
    if prev.cls == "salu" and ("m0", 0) in prev.wr and cur.lds:
        need = max(need, 1)
    if prev.cls == "salu" and ("m0", 0) in prev.wr and cur.cls == "ds" and "addtid" in cur.mn:
        need = max(need, 1)
    if prev.wide_store_data:
        if cv and prev.wide_store_data & cur.wr:
            need = max(need, 2)
        elif prev.wide_store_data & cur.wr and cur.cls != "vmem" and cur.cls != "ds":
            need = max(need, 1)
    return need

WINDOW = 14

class Gen:
    def __init__(self):
        self.ins = []
        self.nlab = 0
    def I(self, text):
        for line in text.strip().split("\n"):
            line = line.strip()
            if line:
                self.ins.append(Ins(line))
    def L(self, name):
        self.ins.append(Ins(name + ":"))
    def C(self, text):
        self.ins.append(Ins("; " + text))
    def raw(self, text):
        i = Ins(""); i.text = text; self.ins.append(i)
    def newlabel(self, p="L"):
        self.nlab += 1
        return f"{p}_{self.nlab}"

    def fix_hazards(self):
        out = []
        for cur in self.ins:
            if cur.nstates == 0:
                out.append(cur); continue
            dist = 0; need = 0
            for prev in reversed(out):
                if prev.nstates == 0:
                    continue
                r = required(prev, cur)
                if r > dist:
                    need = max(need, r - dist)
                dist += prev.nstates
                if dist >= WINDOW:
                    break
            while need > 0:
                n = min(need, 16)
                out.append(Ins(f"s_nop {n-1}"))
                need -= n
            out.append(cur)
        self.ins = out

    def check_branches(self):
        labels = {i.mn: k for k, i in enumerate(self.ins) if i.is_label}
        probs = []
        for k, b in enumerate(self.ins):
            if b.cls != "branch" or b.target not in labels:
                continue
            pre = [i for i in self.ins[max(0, k - 40):k + 1] if i.nstates > 0]
            j = labels[b.target]
            post = [i for i in self.ins[j:j + 40] if i.nstates > 0]
            for pi_idx, cur in enumerate(post):
                dist = sum(x.nstates for x in post[:pi_idx])
                if dist >= WINDOW:
                    break
                for prev in reversed(pre):
                    r = required(prev, cur)
                    if r > dist:
                        probs.append((prev.text, cur.text, r, dist, b.text))
                    dist += prev.nstates
                    if dist >= WINDOW:
                        break
        return probs

    def text(self):
        out = []
        for i in self.ins:
            if i.is_label or i.cls == "none":
                out.append(i.text)
            else:
                out.append("    " + i.text)
        return "\n".join(out) + "\n"

class LgkmTracker:
    def __init__(self, g):
        self.g = g; self.q = []
    def issue(self, text, tag):
        self.g.I(text); self.q.append(tag)
    def wait(self, tag):
        idx = [k for k, t in enumerate(self.q) if t == tag]
        if not idx:
            return
        n = len(self.q) - 1 - idx[-1]
        assert n <= 15, n
        self.g.I(f"s_waitcnt lgkmcnt({n})")
        self.q = self.q[idx[-1] + 1:]
    def drain(self):
        if self.q:
            self.g.I("s_waitcnt lgkmcnt(0)")
        self.q = []

class VmTracker:
    def __init__(self, g):
        self.g = g; self.q = []; self.total = 0
    def issue(self, text, tag):
        self.g.I(text); self.q.append(tag); self.total += 1
    def wait(self, tag):
        idx = [k for k, t in enumerate(self.q) if t == tag]
        if not idx:
            return
        n = len(self.q) - 1 - idx[-1]
        assert n <= 63, n
        self.g.I(f"s_waitcnt vmcnt({n})")
        self.q = self.q[idx[-1] + 1:]
    def drain(self):
        if self.q:
            self.g.I("s_waitcnt vmcnt(0)")
        self.q = []
```

```python
import sys
from asmlib import Gen, LgkmTracker, VmTracker

NAME = "gated_mix__linear_attn_block__dense_activation_relu__prompt"
H_OFF = 0
PQ_OFF = 0x600000
G_OFF = 0x900000
KVP_OFF = 0x910000
KVP_STRIDE = 7168
KVF_OFF = 0xA00000
KVF_STRIDE = 1536
FL_OFF = 0xA10000
WS_USED = 0xB00000
STAGE = 45056
LOG2E = 0x3FB8AA3B
EPS6 = 0x358637BD

SC = " sc1"

def srd(g, d, base_lo, base_hi, size):
    g.I(f"s_mov_b32 s{d}, s{base_lo}")
    g.I(f"s_and_b32 s{d+1}, s{base_hi}, 0xffff")
    g.I(f"s_mov_b32 s{d+2}, {size}")
    g.I(f"s_mov_b32 s{d+3}, 0x00020000")

def swap23(g, dst, src, t1, t2):
    g.I(f"v_and_b32 {t1}, 4, {src}")
    g.I(f"v_and_b32 {t2}, 8, {src}")
    g.I(f"v_and_b32 {dst}, 0x33, {src}")
    g.I(f"v_lshl_or_b32 {dst}, {t1}, 1, {dst}")
    g.I(f"v_lshrrev_b32 {t2}, 1, {t2}")
    g.I(f"v_or_b32 {dst}, {dst}, {t2}")

def p1_common_prologue(g, end_label):
    g.I(f"s_cmp_ge_u32 s2, 256")
    g.I(f"s_cbranch_scc1 {end_label}")
    g.I("s_load_dwordx4 s[4:7], s[0:1], 0")
    g.I("s_load_dwordx2 s[8:9], s[0:1], 32")
    g.I("s_load_dwordx2 s[10:11], s[0:1], 72")
    g.I("s_load_dwordx2 s[12:13], s[0:1], 48")
    g.I("v_lshrrev_b32 v1, 6, v0")
    g.I("v_and_b32 v0, 63, v0")
    g.I("v_readfirstlane_b32 s32, v1")
    g.I("s_and_b32 s33, s2, 7")
    g.I("s_lshr_b32 s34, s2, 3")
    g.I("s_and_b32 s35, s33, 1")
    g.I("s_lshl_b32 s35, s35, 3")
    g.I("s_lshr_b32 s36, s34, 2")
    g.I("s_add_u32 s35, s35, s36")
    g.I("s_lshr_b32 s36, s33, 1")
    g.I("s_lshl_b32 s36, s36, 1")
    g.I("s_and_b32 s37, s34, 1")
    g.I("s_add_u32 s36, s36, s37")

def build_srds_p1(g):
    g.I("s_waitcnt lgkmcnt(0)")
    srd(g, 16, 4, 5, 2048 * 1280)
    srd(g, 20, 6, 7, 640 * 3840)
    srd(g, 24, 8, 9, 640 * 3072)
    srd(g, 28, 10, 11, WS_USED)
    srd(g, 48, 12, 13, 1280)

def p1_loader(g, typ):
    g.C(f"---- P1 loader type {typ}")
    g.I("s_sub_u32 s38, s32, 4")
    g.I("v_lshrrev_b32 v2, 3, v0")
    g.I("v_and_b32 v3, 7, v0")
    g.I("v_lshrrev_b32 v4, 4, v0")
    g.I("s_lshl_b32 s39, s35, 2")
    g.I("s_add_u32 s39, s39, s38")
    g.I(f"s_mul_i32 s39, s39, {32*1280}")
    g.I("v_xor_b32 v5, v3, v4")
    g.I("v_lshlrev_b32 v5, 4, v5")
    g.I("v_mul_u32_u24 v6, 1280, v2")
    g.I("v_add_u32 v6, s39, v6")
    XO = [10, 11, 12, 13]
    g.I(f"v_add_u32 v{XO[0]}, v6, v5")
    g.I("v_xor_b32 v5, 64, v5")
    g.I(f"v_add_u32 v{XO[1]}, v6, v5")
    g.I(f"v_add_u32 v{XO[1]}, {8*1280}, v{XO[1]}")
    g.I(f"v_add_u32 v{XO[2]}, {16*1280}, v{XO[0]}")
    g.I(f"v_add_u32 v{XO[3]}, {16*1280}, v{XO[1]}")
    build_srds_p1(g)
    g.I("s_lshl_b32 s44, s38, 10")
    g.I("s_lshl_b32 s45, s38, 12")
    g.I("s_mov_b32 s40, 0")
    def issue_x(stage_s):
        for j in range(4):
            g.I(f"s_add_u32 m0, {stage_s}, {j*1024}")
            g.I(f"buffer_load_dwordx4 v{XO[j]}, s[16:19], s40 offen lds")
    if typ == "B":
        lab = g.newlabel("Lgw")
        g.I("s_cmp_lg_u32 s38, 0")
        g.I(f"s_cbranch_scc1 {lab}")
        g.I("v_lshlrev_b32 v5, 4, v0")
        g.I(f"s_mov_b32 m0, {3*STAGE}")
        g.I("v_add_u32 v6, 1024, v5")
        g.I("buffer_load_dwordx4 v5, s[48:51], 0 offen lds")
        g.I(f"s_mov_b32 m0, {3*STAGE + 1024}")
        g.I("s_nop 0")
        g.I("buffer_load_dwordx4 v6, s[48:51], 0 offen lds")
        g.L(lab)
    issue_x("s45")
    n10 = 5 if typ == "A" else 3
    QO = [14, 15, 16, 17, 18][:n10]
    g.I("s_mul_i32 s46, s36, 160")
    if typ == "A":
        g.I("s_add_u32 s46, s46, 1280")
    g.I("s_mov_b32 s47, 6554")
    g.I("s_mov_b32 s52, 3840")
    for n in range(n10):
        g.I(f"s_add_u32 s53, s38, {4*n}")
        if typ == "A":
            g.I("s_cmp_ge_u32 s53, 10")
            g.I("s_cselect_b32 s56, 10, 0")
            g.I("s_cselect_b32 s54, 1280, 0")
            g.I("s_sub_u32 s53, s53, s56")
        g.I("s_lshl_b32 s53, s53, 6")
        g.I("v_add_u32 v5, s53, v0")
        g.I("v_mul_lo_u32 v6, v5, s47")
        g.I("v_lshrrev_b32 v6, 16, v6")
        g.I("v_mul_u32_u24 v7, 10, v6")
        g.I("v_sub_u32 v7, v5, v7")
        swap23(g, "v8", "v6", "v9", "v19")
        g.I("v_mul_lo_u32 v8, v8, s52")
        g.I("v_lshl_add_u32 v8, v7, 4, v8")
        if typ == "A":
            g.I("s_add_u32 s54, s54, s46")
            g.I(f"v_add_u32 v{QO[n]}, s54, v8")
        else:
            g.I(f"v_add_u32 v{QO[n]}, s46, v8")
            if n == 2:
                g.I("s_cmp_ge_u32 s38, 2")
                g.I("s_cselect_b32 s54, 0x40000000, 0")
                g.I(f"v_add_u32 v{QO[n]}, s54, v{QO[n]}")
    return XO, QO, issue_x

def p1_loader_rest(g, typ, XO, QO, issue_x):
    nH = 2 if typ == "A" else 4
    HO = [20, 21, 22, 23][:nH]
    g.I("v_lshlrev_b32 v5, 1, v4")
    g.I("v_xor_b32 v5, v3, v5")
    g.I("v_lshlrev_b32 v5, 4, v5")
    if typ == "A":
        g.I("s_lshl_b32 s46, s36, 7")
    else:
        g.I("s_lshl_b32 s46, s36, 8")
        g.I("s_add_u32 s46, s46, 1024")
    g.I("s_mov_b32 s52, 3072")
    for n in range(nH):
        g.I(f"s_add_u32 s53, s38, {4*(n % 2)}")
        g.I("s_lshl_b32 s53, s53, 3")
        g.I("v_add_u32 v6, s53, v2")
        swap23(g, "v8", "v6", "v9", "v19")
        g.I("v_mul_lo_u32 v8, v8, s52")
        g.I("v_add_u32 v8, v8, v5")
        g.I(f"s_add_u32 s54, s46, {128*(n//2)}")
        g.I(f"v_add_u32 v{HO[n]}, s54, v8")
    g.I("s_mov_b32 s41, 0")
    g.I("s_mov_b32 s42, 0")
    R10 = 16384
    RH = 36864 if typ == "A" else 28672
    def issue_w(stage_s):
        for n in range(len(QO)):
            g.I(f"s_add_u32 m0, {stage_s}, {R10 + 4096*n}")
            g.I(f"buffer_load_dwordx4 v{QO[n]}, s[20:23], s41 offen lds")
        for n in range(nH):
            g.I(f"s_add_u32 m0, {stage_s}, {RH + 4096*n}")
            g.I(f"buffer_load_dwordx4 v{HO[n]}, s[24:27], s42 offen lds")
    def advance():
        g.I("s_add_u32 s40, s40, 128")
        g.I(f"s_add_u32 s41, s41, {64*3840}")
        g.I(f"s_add_u32 s42, s42, {64*3072}")
        g.I(f"s_add_u32 s44, s44, {STAGE}")
        g.I(f"s_add_u32 s45, s45, {STAGE}")
        g.I(f"s_cmp_ge_u32 s44, {3*STAGE}")
        g.I(f"s_cselect_b32 s53, {3*STAGE}, 0")
        g.I("s_sub_u32 s44, s44, s53")
        g.I("s_sub_u32 s45, s45, s53")
    issue_w("s44")
    advance(); issue_x("s45"); issue_w("s44")
    advance(); issue_x("s45"); issue_w("s44")
    g.I("s_waitcnt vmcnt(22)")
    g.I("s_barrier")
    g.I("s_mov_b32 s55, 1")
    loop = g.newlabel("Lld")
    g.L(loop)
    g.I("s_waitcnt vmcnt(11)")
    g.I("s_barrier")
    advance(); issue_x("s45"); issue_w("s44")
    g.I("s_add_u32 s55, s55, 1")
    g.I("s_cmp_le_u32 s55, 7")
    g.I(f"s_cbranch_scc1 {loop}")
    g.I("s_waitcnt vmcnt(11)")
    g.I("s_barrier")
    g.I("s_waitcnt vmcnt(0)")
    g.I("s_barrier")

ACC = 128
def acc(t, rt): return ACC + (2 * t + rt) * 4
def vr(b, n=4): return f"v[{b}:{b+n-1}]"

def p1_compute(g, typ):
    g.C(f"---- P1 compute type {typ}")
    g.I("v_and_b32 v1, 15, v0")
    g.I("v_lshrrev_b32 v2, 4, v0")
    g.I("v_bfe_u32 v3, v0, 2, 2")
    g.I("v_and_b32 v4, 3, v0")
    g.I("v_lshrrev_b32 v5, 1, v1")
    g.I("v_xor_b32 v5, v2, v5")
    g.I("v_lshlrev_b32 v5, 4, v5")
    g.I("v_lshl_add_u32 v5, v1, 7, v5")
    g.I("s_lshl_b32 s38, s32, 12")
    g.I("v_add_u32 v48, s38, v5")
    g.I("v_xor_b32 v49, 64, v48")
    g.I("v_lshrrev_b32 v5, 1, v2")
    g.I("v_lshlrev_b32 v5, 4, v5")
    g.I("v_and_b32 v6, 1, v2")
    g.I("v_lshl_add_u32 v5, v6, 2, v5")
    g.I("v_add_u32 v5, v5, v3")
    g.I("v_mul_u32_u24 v50, 160, v5")
    g.I("v_lshl_add_u32 v50, v4, 3, v50")
    g.I("v_lshrrev_b32 v7, 1, v3")
    g.I("v_lshlrev_b32 v7, 1, v7")
    g.I("v_lshl_add_u32 v7, v6, 2, v7")
    g.I("v_lshrrev_b32 v8, 1, v4")
    g.I("v_and_b32 v9, 1, v4")
    g.I("v_lshlrev_b32 v9, 3, v9")
    g.I("v_lshl_add_u32 v9, v5, 7, v9")
    for t in range(4):
        g.I(f"v_add_u32 v10, {2*t}, v8")
        g.I("v_xor_b32 v10, v10, v7")
        g.I(f"v_lshl_add_u32 v{51+t}, v10, 4, v9")
    for k in range(7):
        g.I(f"v_mov_b32 v{56+k}, v{48+k}")
    if typ == "A":
        tiles = [("kv", t, "N") for t in range(5)] + [("kv", 5 + t, "N") for t in range(5)] + [("h", t, "T") for t in range(4)]
    else:
        tiles = [("kv", t, "T") for t in range(5)] + [("h", t, "T") for t in range(8)] + [("g", 0, "T")]
        g.I("v_lshlrev_b32 v63, 4, v2")
        g.I(f"v_add_u32 v63, {3*STAGE}, v63")
    g.I(f"s_mov_b32 s39, {EPS6}")
    for t in range(14):
        for rt in range(2):
            for i in range(4):
                eps = (t < 5)
                g.I(f"v_mov_b32 v{acc(t,rt)+i}, " + ("s39" if eps else "0"))
    if typ == "A":
        g.I("s_lshl_b32 s38, s32, 6")
        g.I("v_add_u32 v5, s38, v0")
        g.I("s_mov_b32 s40, 9987")
        g.I("s_mov_b32 s41, 13108")
        for rnd in range(2):
            q = "v6"
            g.I(f"v_add_u32 v6, {256*rnd}, v5")
            g.I("v_mul_lo_u32 v7, v6, s40")
            g.I("v_lshrrev_b32 v7, 20, v7")
            g.I("v_mul_u32_u24 v8, 105, v7")
            g.I("v_sub_u32 v8, v6, v8")
            g.I("v_mul_lo_u32 v9, v8, s41")
            g.I("v_lshrrev_b32 v9, 16, v9")
            g.I("v_mul_u32_u24 v10, 5, v9")
            g.I("v_sub_u32 v10, v8, v10")
            g.I("v_mul_u32_u24 v11, 20, v7")
            g.I("v_lshl_add_u32 v12, v10, 2, v11")
            g.I("v_lshrrev_b32 v13, 4, v12")
            g.I("v_bfe_u32 v14, v12, 2, 2")
            g.I("v_add_u32 v15, v11, v9")
            g.I("v_lshrrev_b32 v16, 4, v15")
            g.I("v_and_b32 v15, 15, v15")
            g.I("v_lshl_add_u32 v16, v13, 1, v16")
            g.I("v_add_u32 v17, 13, v13")
            g.I("v_cmp_gt_u32 vcc, 20, v9")
            g.I("v_cndmask_b32 v16, v17, v16, vcc")
            g.I("v_cndmask_b32 v15, 0, v15, vcc")
            g.I("v_lshl_add_u32 v15, v14, 4, v15")
            g.I("v_lshlrev_b32 v15, 4, v15")
            g.I(f"v_lshl_add_u32 v{64+rnd}, v16, 10, v15")
            g.I(f"v_add_u32 v{64+rnd}, {STAGE}, v{64+rnd}")
            g.I(f"v_lshlrev_b32 v{66+rnd}, 4, v6")
            g.I(f"v_cmp_gt_u32 vcc, 420, v6")
            g.I(f"v_mov_b32 v17, 0x40000000")
            g.I(f"v_cndmask_b32 v{66+rnd}, v17, v{66+rnd}, vcc")
    build_srds_p1(g)
    g.I("s_mov_b32 s46, 0")
    g.I("s_mov_b32 s47, 0")
    XF = lambda ks, rt: 16 + (2 * ks + rt) * 4
    WF = lambda n: 32 + (n % 4) * 4
    R10 = 16384
    RH = 36864 if typ == "A" else 28672
    loop = g.newlabel("Lp1")
    g.L(loop)
    g.I("s_barrier")
    lk = LgkmTracker(g)
    steps = [(ks, ti) for ks in range(2) for ti in range(len(tiles))]
    def rd_x(ks):
        for rt in range(2):
            lk.issue(f"ds_read_b128 {vr(XF(ks,rt))}, v{56+ks} offset:{rt*2048}", ("x", ks))
    def rd_w(n, half):
        ks, ti = steps[n]
        kind, t, _ = tiles[ti]
        w = WF(n)
        if kind == "kv":
            off = R10 + ks * 5120 + half * 1280 + 32 * (t % 5) + (10240 if t >= 5 else 0)
            lk.issue(f"ds_read_b64_tr_b16 {vr(w + 2*half, 2)}, v58 offset:{off}", ("w", n))
        elif kind == "h":
            off = RH + (t // 4) * 8192 + ks * 4096 + half * 1024
            lk.issue(f"ds_read_b64_tr_b16 {vr(w + 2*half, 2)}, v{59 + (t % 4)} offset:{off}", ("w", n))
        else:
            if half == 0:
                lk.issue(f"ds_read_b128 {vr(w)}, v63 offset:{ks*64}", ("w", n))
    D = 3
    rd_x(0)
    for n in range(D):
        rd_w(n, 0); rd_w(n, 1)
    for n, (ks, ti) in enumerate(steps):
        kind, t, ori = tiles[ti]
        if ti == 0:
            lk.wait(("x", ks))
        lk.wait(("w", n))
        for rt in range(2):
            a = acc(ti, rt)
            if ori == "N":
                g.I(f"v_mfma_f32_16x16x32_bf16 {vr(a)}, {vr(XF(ks,rt))}, {vr(WF(n))}, {vr(a)}")
            else:
                g.I(f"v_mfma_f32_16x16x32_bf16 {vr(a)}, {vr(WF(n))}, {vr(XF(ks,rt))}, {vr(a)}")
            if n + D < len(steps):
                rd_w(n + D, rt)
        if n == 4:
            rd_x(1)
    g.I(f"s_add_u32 s47, s47, {STAGE}")
    g.I(f"s_cmp_ge_u32 s47, {3*STAGE}")
    g.I(f"s_cselect_b32 s38, {3*STAGE}, 0")
    g.I("s_sub_u32 s47, s47, s38")
    for k in range(7):
        g.I(f"v_add_u32 v{56+k}, s47, v{48+k}")
    if typ == "B":
        g.I("v_add_u32 v63, 128, v63")
    g.I("s_add_u32 s46, s46, 1")
    g.I("s_cmp_lt_u32 s46, 10")
    g.I(f"s_cbranch_scc1 {loop}")
    return tiles

def phi(g, reg, tmp):
    g.I(f"v_mul_f32 {tmp}, s40, {reg}")
    g.I(f"v_exp_f32_e64 {tmp}, {tmp} clamp")
    g.I(f"v_max_f32 {reg}, s39, {reg}")
    g.I(f"v_add_f32 {reg}, {reg}, {tmp}")

def store_h(g, tiles_idx, kb0_s):
    g.I("s_lshl_b32 s42, s35, 3")
    g.I("s_lshl_b32 s43, s32, 1")
    g.I("s_add_u32 s42, s42, s43")
    g.I("s_mul_i32 s42, s42, 48")
    g.I(f"s_add_u32 s42, s42, {kb0_s}")
    g.I("s_lshl_b32 s42, s42, 10")
    g.I("v_lshlrev_b32 v1, 4, v0")
    for kbl in range(len(tiles_idx) // 2):
        for rt in range(2):
            a0 = acc(tiles_idx[2*kbl], rt); a1 = acc(tiles_idx[2*kbl+1], rt)
            d = 16 + ((kbl * 2 + rt) % 4) * 4
            g.I(f"v_cvt_pk_bf16_f32 v{d}, v{a0}, v{a0+1}")
            g.I(f"v_cvt_pk_bf16_f32 v{d+1}, v{a0+2}, v{a0+3}")
            g.I(f"v_cvt_pk_bf16_f32 v{d+2}, v{a1}, v{a1+1}")
            g.I(f"v_cvt_pk_bf16_f32 v{d+3}, v{a1+2}, v{a1+3}")
            for j in range(4):
                g.I(f"v_pk_max_i16 v{d+j}, v{d+j}, 0")
            g.I(f"s_add_u32 s43, s42, {H_OFF + rt*48*1024 + kbl*1024}")
            g.I(f"buffer_store_dwordx4 {vr(d)}, v1, s[28:31], s43 offen{SC}")

def p1_epilogue_A(g):
    g.C("---- P1 epilogue A")
    g.I(f"s_mov_b32 s39, {EPS6}")
    g.I(f"s_mov_b32 s40, {LOG2E}")
    g.I("s_lshl_b32 s41, s36, 1")
    store_h(g, [10, 11, 12, 13], "s41")
    KF = lambda t: 68 + 4 * t
    VF = lambda t: 88 + 4 * t
    for t in range(5):
        for rt in range(2):
            for i in range(4):
                phi(g, f"v{acc(t,rt)+i}", f"v{2 + (i % 4)}")
        for rt in range(2):
            a = acc(t, rt)
            g.I(f"v_cvt_pk_bf16_f32 v{KF(t)+2*rt}, v{a}, v{a+1}")
            g.I(f"v_cvt_pk_bf16_f32 v{KF(t)+2*rt+1}, v{a+2}, v{a+3}")
    for t in range(5):
        for rt in range(2):
            a = acc(5 + t, rt)
            g.I(f"v_cvt_pk_bf16_f32 v{VF(t)+2*rt}, v{a}, v{a+1}")
            g.I(f"v_cvt_pk_bf16_f32 v{VF(t)+2*rt+1}, v{a+2}, v{a+3}")
    for j in range(4):
        g.I(f"v_mov_b32 v{108+j}, 0x3f803f80")
    prods = []
    for t in range(5):
        for tp in range(5):
            if abs(t - tp) <= 1:
                prods.append((2 * t + tp, t, tp))
    P = lambda idx: ACC + 4 * idx
    for idx, t, tp in prods:
        g.I(f"v_mfma_f32_16x16x32_bf16 {vr(P(idx))}, {vr(KF(t))}, {vr(VF(tp))}, 0")
    for t in range(5):
        g.I(f"v_mfma_f32_16x16x32_bf16 {vr(P(13+t))}, {vr(KF(t))}, v[108:111], 0")
    g.I("s_mul_i32 s41, s32, 18432")
    g.I(f"s_add_u32 s41, s41, {STAGE}")
    g.I("v_lshlrev_b32 v1, 4, v0")
    g.I("v_add_u32 v1, s41, v1")
    for idx in range(18):
        g.I(f"ds_write_b128 v1, {vr(P(idx))} offset:{idx*1024}")
    g.I("s_waitcnt lgkmcnt(0)")
    g.I("s_barrier")
    g.I("s_lshl_b32 s41, s36, 4")
    g.I("s_add_u32 s41, s41, s35")
    g.I(f"s_mul_i32 s41, s41, {KVP_STRIDE}")
    g.I(f"s_add_u32 s41, s41, {KVP_OFF}")
    for rnd in range(2):
        for w in range(4):
            g.I(f"ds_read_b128 {vr(16 + 16*rnd + 4*w)}, v{64+rnd} offset:{w*18432}")
    g.I("s_waitcnt lgkmcnt(0)")
    for rnd in range(2):
        b = 16 + 16 * rnd
        for j in range(4):
            g.I(f"v_add_f32 v{b+j}, v{b+j}, v{b+4+j}")
            g.I(f"v_add_f32 v{b+8+j}, v{b+8+j}, v{b+12+j}")
        for j in range(4):
            g.I(f"v_add_f32 v{b+j}, v{b+j}, v{b+8+j}")
        g.I(f"buffer_store_dwordx4 {vr(b)}, v{66+rnd}, s[28:31], s41 offen{SC}")

def p1_epilogue_B(g):
    g.C("---- P1 epilogue B")
    g.I(f"s_mov_b32 s39, {EPS6}")
    g.I(f"s_mov_b32 s40, {LOG2E}")
    g.I("s_lshl_b32 s41, s36, 2")
    g.I("s_add_u32 s41, s41, 16")
    store_h(g, list(range(5, 13)), "s41")
    g.I("v_and_b32 v1, 15, v0")
    g.I("v_lshrrev_b32 v2, 4, v0")
    g.I("v_lshlrev_b32 v1, 4, v1")
    g.I("v_lshrrev_b32 v3, 1, v2")
    g.I("v_lshl_add_u32 v1, v3, 8, v1")
    g.I("v_and_b32 v3, 1, v2")
    g.I("v_lshl_add_u32 v1, v3, 3, v1")
    g.I("s_lshl_b32 s42, s35, 3")
    g.I("s_lshl_b32 s43, s32, 1")
    g.I("s_add_u32 s42, s42, s43")
    g.I("s_mul_i32 s42, s42, 20480")
    g.I("s_mul_i32 s43, s36, 2560")
    g.I("s_add_u32 s42, s42, s43")
    g.I(f"s_add_u32 s42, s42, {PQ_OFF}")
    for t in range(5):
        for rt in range(2):
            a = acc(t, rt)
            for i in range(4):
                phi(g, f"v{a+i}", f"v{2 + i}")
            d = 32 + ((2 * t + rt) % 8) * 2
            g.I(f"v_cvt_pk_bf16_f32 v{d}, v{a}, v{a+1}")
            g.I(f"v_cvt_pk_bf16_f32 v{d+1}, v{a+2}, v{a+3}")
            g.I(f"s_add_u32 s43, s42, {rt*20480 + t*512}")
            g.I(f"buffer_store_dwordx2 {vr(d,2)}, v1, s[28:31], s43 offen{SC}")
    skip = g.newlabel("Lng")
    g.I("s_cmp_lg_u32 s36, 0")
    g.I(f"s_cbranch_scc1 {skip}")
    g.I("v_and_b32 v1, 15, v0")
    g.I("v_lshlrev_b32 v1, 2, v1")
    g.I("v_cmp_gt_u32 vcc, 16, v0")
    g.I("v_mov_b32 v6, 0x40000000")
    g.I("v_cndmask_b32 v1, v6, v1, vcc")
    g.I("s_lshl_b32 s42, s35, 7")
    g.I("s_lshl_b32 s43, s32, 5")
    g.I("s_add_u32 s42, s42, s43")
    g.I("s_lshl_b32 s42, s42, 2")
    g.I(f"s_add_u32 s42, s42, {G_OFF}")
    for rt in range(2):
        a = acc(13, rt)
        g.I(f"v_mul_f32 v2, s40, v{a}")
        g.I("v_exp_f32_e64 v2, -v2")
        g.I("v_add_f32 v2, 1.0, v2")
        g.I(f"v_rcp_f32 v{8+rt}, v2")
        g.I(f"s_add_u32 s43, s42, {rt*64}")
        g.I(f"buffer_store_dword v{8+rt}, v1, s[28:31], s43 offen{SC}")
    g.L(skip)

def kernel_p1(g, label):
    end = g.newlabel("Lend")
    lA_ld, lB_ld, lB = g.newlabel("LldA"), g.newlabel("LldB"), g.newlabel("LcB")
    p1_common_prologue(g, end)
    g.I("s_cmp_ge_u32 s32, 4")
    lld = g.newlabel("Lld")
    g.I(f"s_cbranch_scc1 {lld}")
    g.I("s_bitcmp1_b32 s34, 1")
    g.I(f"s_cbranch_scc1 {lB}")
    p1_compute(g, "A")
    p1_epilogue_A(g)
    g.I(f"s_branch {end}")
    g.L(lB)
    p1_compute(g, "B")
    p1_epilogue_B(g)
    g.I(f"s_branch {end}")
    g.L(lld)
    g.I("s_bitcmp1_b32 s34, 1")
    g.I(f"s_cbranch_scc1 {lB_ld}")
    r = p1_loader(g, "A"); p1_loader_rest(g, "A", *r)
    g.I(f"s_branch {end}")
    g.L(lB_ld)
    r = p1_loader(g, "B"); p1_loader_rest(g, "B", *r)
    g.L(end)
    g.I("s_endpgm")

def reducer_body(g, r_s, ws_srd="s[28:31]"):
    g.C("---- kv reducer")
    g.I("s_lshl_b32 s38, s32, 6")
    g.I("v_add_u32 v1, s38, v0")
    g.I("v_cmp_le_u32 vcc, 192, v1")
    g.I("v_cndmask_b32 v2, 0, 1, vcc")
    g.I("v_mul_u32_u24 v3, 192, v2")
    g.I("v_sub_u32 v3, v1, v3")
    g.I("v_cmp_le_u32 vcc, 96, v3")
    g.I("v_cndmask_b32 v4, 0, 1, vcc")
    g.I("v_mul_u32_u24 v5, 96, v4")
    g.I("v_sub_u32 v5, v3, v5")
    g.I("v_lshrrev_b32 v6, 5, v5")
    g.I("v_bfe_u32 v7, v5, 1, 4")
    g.I("v_and_b32 v8, 1, v5")
    g.I("v_lshl_add_u32 v9, v6, 1, v8")
    g.I("v_sub_u32 v9, v9, v2")
    g.I("v_lshrrev_b32 v10, 2, v7")
    g.I("v_and_b32 v11, 3, v7")
    g.I("v_mul_u32_u24 v10, 5, v10")
    g.I("v_add_u32 v12, v10, v11")
    g.I("v_add_u32 v13, 4, v10")
    g.I("v_cmp_eq_u32 vcc, 1, v11")
    g.I("v_cndmask_b32 v13, v13, 20, vcc")
    g.I("v_cmp_eq_u32 vcc, 1, v4")
    g.I("v_cndmask_b32 v12, v12, v13, vcc")
    g.I(f"s_and_b32 s38, {r_s}, 1")
    g.I("s_lshl_b32 s38, s38, 1")
    g.I("v_add_u32 v14, s38, v2")
    g.I("v_mul_u32_u24 v14, 105, v14")
    g.I("v_mul_u32_u24 v15, 5, v12")
    g.I("v_add3_u32 v14, v14, v15, v9")
    g.I("v_lshlrev_b32 v14, 4, v14")
    g.I("v_mov_b32 v16, 0x40000000")
    g.I("v_cmp_gt_u32 vcc, 5, v9")
    g.I("v_cndmask_b32 v14, v16, v14, vcc")
    g.I("v_mul_u32_u24 v15, v4, v11")
    g.I("v_cmp_gt_u32 vcc, 2, v15")
    g.I("v_cndmask_b32 v14, v16, v14, vcc")
    g.I("v_cmp_gt_u32 vcc, 384, v1")
    g.I("v_cndmask_b32 v14, v16, v14, vcc")
    g.I("v_mul_u32_u24 v17, 1536, v2")
    g.I("v_lshl_add_u32 v17, v3, 3, v17")
    g.I("v_cndmask_b32 v17, v16, v17, vcc")
    g.I(f"s_lshr_b32 s38, {r_s}, 1")
    g.I(f"s_mul_i32 s38, s38, {16*KVP_STRIDE}")
    g.I(f"s_add_u32 s38, s38, {KVP_OFF}")
    return

def reducer_loads(g, r_s, ws_srd="s[28:31]"):
    for rb in range(16):
        g.I(f"s_add_u32 s39, s38, {rb*KVP_STRIDE}")
        g.I(f"buffer_load_dwordx4 {vr(32+4*rb)}, v14, {ws_srd}, s39 offen{SC}")
    for rb in range(1, 16):
        g.I(f"s_waitcnt vmcnt({15-rb})")
        for j in range(4):
            g.I(f"v_add_f32 v{32+j}, v{32+j}, v{32+4*rb+j}")
    g.I("v_cvt_pk_bf16_f32 v20, v32, v33")
    g.I("v_cvt_pk_bf16_f32 v21, v34, v35")
    g.I(f"s_mul_i32 s39, {r_s}, {2*KVF_STRIDE}")
    g.I(f"s_add_u32 s39, s39, {KVF_OFF}")
    g.I(f"buffer_store_dwordx2 v[20:21], v17, {ws_srd}, s39 offen{SC}")

def kernel_red(g):
    end = g.newlabel("Lend")
    g.I("s_cmp_ge_u32 s2, 16")
    g.I(f"s_cbranch_scc1 {end}")
    g.I("s_load_dwordx2 s[10:11], s[0:1], 72")
    g.I("v_lshrrev_b32 v1, 6, v0")
    g.I("v_and_b32 v0, 63, v0")
    g.I("v_readfirstlane_b32 s32, v1")
    g.I("s_mov_b32 s60, s2")
    reducer_body(g, "s60")
    g.I("s_waitcnt lgkmcnt(0)")
    srd(g, 28, 10, 11, WS_USED)
    reducer_loads(g, "s60")
    g.L(end)
    g.I("s_endpgm")

W2_STAGE = 16384
WO_BASE = 65536
WO_KQ = 22528

def p2_decode(g):
    g.I("s_mul_i32 s61, s34, 86")
    g.I("s_lshr_b32 s61, s61, 8")
    g.I("s_mul_i32 s62, s61, 3")
    g.I("s_sub_u32 s62, s34, s62")
    g.I("s_mul_i32 s63, s62, 5")
    g.I("s_lshl_b32 s38, s33, 4")
    g.I("s_add_u32 s63, s63, s38")
    g.I("s_and_b32 s64, s32, 3")
    g.I("s_lshr_b32 s65, s32, 2")

def p2_body(g, nr):
    g.C(f"---- P2 body nr={nr}")
    ACC2 = 208
    A2 = lambda rt, ct: ACC2 + (rt * 4 + ct) * 4
    AB = lambda b, rt: 16 + (b * 3 + rt) * 4
    BF = lambda ct: 52 + ct * 4
    VB = lambda ct: 68 + ct
    VA = 72
    VD = [73, 74]
    VG = [75, 76, 77]
    VK = 78
    vm = VmTracker(g)
    lk = LgkmTracker(g)
    g.I("v_and_b32 v1, 15, v0")
    g.I("v_lshrrev_b32 v2, 4, v0")
    g.I("v_bfe_u32 v3, v0, 2, 2")
    g.I("v_and_b32 v4, 3, v0")
    g.I(f"v_lshlrev_b32 v{VA}, 4, v0")
    g.I("v_mov_b32 v5, 0x40000000")
    g.I("v_cmp_gt_u32 vcc, 48, v0")
    g.I(f"v_cndmask_b32 v{VK}, v5, v{VA}, vcc")
    g.I("v_lshrrev_b32 v5, 3, v0")
    g.I("v_and_b32 v6, 7, v0")
    g.I("v_lshlrev_b32 v7, 1, v2")
    g.I("v_xor_b32 v7, v6, v7")
    g.I("v_mul_u32_u24 v8, 1280, v5")
    g.I("s_mul_i32 s38, s65, 20480")
    g.I("s_lshl_b32 s39, s61, 7")
    g.I("s_add_u32 s38, s38, s39")
    g.I("v_lshl_add_u32 v9, v7, 4, v8")
    g.I(f"v_add_u32 v{VD[0]}, s38, v9")
    g.I(f"v_add_u32 v{VD[1]}, {8*1280}, v{VD[0]}")
    g.I("v_lshl_add_u32 v10, v6, 4, v8")
    g.I("v_add_u32 v10, s39, v10")
    g.I("s_mul_i32 s40, s64, 12")
    g.I(f"s_mul_i32 s41, s40, {32*1280}")
    g.I("s_lshl_b32 s42, s64, 12")
    g.I("s_lshl_b32 s43, s65, 11")
    g.I("s_add_u32 s42, s42, s43")
    def dma_w2(u):
        for jj in range(2):
            g.I(f"s_add_u32 m0, s42, {(u % 4) * W2_STAGE + jj*1024}")
            g.I(f"s_add_u32 s43, s41, {u * 32 * 1280}")
            vm.issue(f"buffer_load_dwordx4 v{VD[jj]}, s[20:23], s43 offen lds", ("d", u))
    g.I("s_mul_i32 s44, s65, 3")
    g.I("s_add_u32 s44, s44, s63")
    g.I("s_mul_i32 s45, s44, 48")
    g.I("s_add_u32 s45, s45, s40")
    g.I("s_lshl_b32 s45, s45, 10")
    def load_a(u):
        for rt in range(nr):
            g.I(f"s_add_u32 s43, s45, {H_OFF + rt*48*1024 + u*1024}")
            vm.issue(f"buffer_load_dwordx4 {vr(AB(u % 3, rt))}, v{VA}, s[28:31], s43 offen{SC}", ("a", u))
    for u in range(4):
        dma_w2(u)
    for u in range(3):
        load_a(u)
    g.I("v_lshlrev_b32 v11, 2, v1")
    g.I("s_lshl_b32 s46, s44, 6")
    for rt in range(nr):
        g.I(f"s_add_u32 s43, s46, {G_OFF + rt*64}")
        vm.issue(f"buffer_load_dword v{VG[rt]}, v11, s[28:31], s43 offen{SC}", ("g", 0))
    g.I("s_mul_i32 s46, s64, 160")
    g.I("s_mul_i32 s47, s65, 88")
    g.I("s_add_u32 s46, s46, s47")
    g.I("s_mul_i32 s46, s46, 1280")
    g.I(f"s_mul_i32 s47, s64, {WO_KQ}")
    g.I(f"s_mul_i32 s48, s65, {11*1024}")
    g.I("s_add_u32 s47, s47, s48")
    for j in range(11):
        g.I(f"s_add_u32 m0, s47, {WO_BASE + j*1024}")
        g.I(f"s_add_u32 s43, s46, {j*8*1280}")
        vm.issue(f"buffer_load_dwordx4 v10, s[16:19], s43 offen lds", ("wo", 0))
    g.I("v_and_b32 v6, 1, v2")
    g.I("v_lshrrev_b32 v7, 1, v3")
    g.I("v_lshlrev_b32 v7, 1, v7")
    g.I("v_lshl_add_u32 v7, v6, 2, v7")
    g.I("v_lshl_add_u32 v8, v2, 2, v3")
    g.I("v_and_b32 v9, 1, v4")
    g.I("v_lshlrev_b32 v9, 3, v9")
    g.I("v_lshl_add_u32 v9, v8, 7, v9")
    g.I("s_lshl_b32 s43, s64, 12")
    g.I("v_add_u32 v9, s43, v9")
    g.I("v_lshrrev_b32 v8, 1, v4")
    for ct in range(4):
        g.I(f"v_add_u32 v12, {2*ct}, v8")
        g.I("v_xor_b32 v12, v12, v7")
        g.I(f"v_lshl_add_u32 v{VB(ct)}, v12, 4, v9")
    for rt in range(nr):
        for ct in range(4):
            for i in range(4):
                g.I(f"v_mov_b32 v{A2(rt,ct)+i}, 0")
    for u in range(12):
        vm.wait(("d", u))
        g.I("s_barrier")
        if 1 <= u and u + 3 < 12:
            dma_w2(u + 3)
        for ct in range(4):
            for half in range(2):
                lk.issue(f"ds_read_b64_tr_b16 {vr(BF(ct) + 2*half, 2)}, v{VB(ct)} offset:{(u % 4) * W2_STAGE + half*2048}", ("b", ct))
        vm.wait(("a", u))
        for ct in range(4):
            lk.wait(("b", ct))
            for rt in range(nr):
                a = A2(rt, ct)
                g.I(f"v_mfma_f32_16x16x32_bf16 {vr(a)}, {vr(BF(ct))}, {vr(AB(u % 3, rt))}, {vr(a)}")
        if u + 3 < 12:
            load_a(u + 3)
    vm.wait(("g", 0))
    for rt in range(nr):
        g.I(f"v_sub_f32 v12, 1.0, v{VG[rt]}")
        for ct in range(4):
            for i in range(4):
                g.I(f"v_mul_f32 v{A2(rt,ct)+i}, v12, v{A2(rt,ct)+i}")
    KV = lambda hh, T: 96 + (hh * 2 + T) * 4
    PQ = lambda b, hh: (16 if b == 0 else 160) + hh * 4
    DD = lambda b, T: 192 + (b * 2 + T) * 4
    VAL = 48
    PK = 80
    WF = lambda k: 84 + (k % 3) * 4
    WA = [64 + k for k in range(10)]
    g.I("s_lshl_b32 s46, s64, 3")
    g.I(f"s_mul_i32 s47, s46, {KVF_STRIDE}")
    kv_wait_hook(g)
    for hh in range(8):
        for T in range(2):
            g.I(f"s_add_u32 s43, s47, {KVF_OFF + hh*KVF_STRIDE + T*768}")
            vm.issue(f"buffer_load_dwordx4 {vr(KV(hh,T))}, v{VK}, s[28:31], s43 offen{SC}", ("kv", hh))
    g.I("s_mul_i32 s48, s44, 20480")
    g.I("s_mul_i32 s49, s64, 5120")
    g.I("s_add_u32 s48, s48, s49")
    def load_pq(rt):
        for hh in range(8):
            g.I(f"s_add_u32 s43, s48, {PQ_OFF + rt*20480 + ((5*hh) >> 1)*256}")
            vm.issue(f"buffer_load_dwordx4 {vr(PQ(rt % 2, hh))}, v{VK}, s[28:31], s43 offen{SC}", ("pq", rt, hh))
    load_pq(0)
    g.I("v_mul_u32_u24 v12, 5, v2")
    g.I(f"s_mul_i32 s49, s64, {WO_KQ}")
    g.I(f"s_add_u32 s49, s49, {WO_BASE}")
    g.I("v_lshlrev_b32 v13, 3, v4")
    g.I("v_add_u32 v13, s49, v13")
    for n in range(5):
        for half in range(2):
            g.I(f"v_add_u32 v14, {8*n + 4*half}, v3")
            g.I("v_mul_u32_u24 v15, 52, v14")
            g.I("v_lshrrev_b32 v15, 8, v15")
            g.I("v_mul_u32_u24 v15, 15, v15")
            g.I("v_add3_u32 v14, v14, v15, v12")
            g.I(f"v_lshl_add_u32 v{WA[2*n+half]}, v14, 7, v13")
    if nr > 1:
        load_pq(1)
    vm.wait(("wo", 0))
    g.I("s_barrier")
    g.I(f"s_mov_b32 s50, {EPS6}")
    wcount = [0]
    def omfma(rt, hh):
        b = hh % 2
        vm.wait(("kv", hh))
        vm.wait(("pq", rt, hh))
        g.I(f"v_mfma_f32_16x16x32_bf16 {vr(DD(b,0))}, {vr(KV(hh,0))}, {vr(PQ(rt % 2, hh))}, 0")
        g.I(f"v_mfma_f32_16x16x32_bf16 {vr(DD(b,1))}, {vr(KV(hh,1))}, {vr(PQ(rt % 2, hh))}, 0")
    def norm(rt, hh):
        b = hh % 2
        d1, d2 = DD(b, 0), DD(b, 1)
        g.I(f"v_add_f32 v12, s50, v{d2+1}")
        g.I("v_rcp_f32 v12, v12")
        g.I(f"v_mul_f32 v12, v12, v{VG[rt]}")
        for j in range(5):
            v = 5 * hh + j
            src = d1 + j if j < 4 else d2
            g.I(f"v_mul_f32 v{VAL + (v % 16)}, v12, v{src}")
    def kstep(rt, n):
        base = VAL + (8 * n) % 16
        for j in range(4):
            g.I(f"v_cvt_pk_bf16_f32 v{PK+j}, v{base+2*j}, v{base+2*j+1}")
        def rd(ct):
            k = wcount[0] + ct
            for half in range(2):
                lk.issue(f"ds_read_b64_tr_b16 {vr(WF(k) + 2*half, 2)}, v{WA[2*n+half]} offset:{ct*32}", ("wf", k))
        rd(0); rd(1); rd(2)
        for ct in range(4):
            k = wcount[0] + ct
            lk.wait(("wf", k))
            a = A2(rt, ct)
            g.I(f"v_mfma_f32_16x16x32_bf16 {vr(a)}, {vr(WF(k))}, {vr(PK)}, {vr(a)}")
            if ct == 0:
                rd(3)
        wcount[0] += 4
    for rt in range(nr):
        omfma(rt, 0)
        done_vals = 0; next_n = 0
        for hh in range(8):
            if hh + 1 < 8:
                omfma(rt, hh + 1)
            norm(rt, hh)
            done_vals = 5 * (hh + 1)
            while next_n < 5 and 8 * (next_n + 1) <= done_vals:
                kstep(rt, next_n); next_n += 1
        if rt + 2 < nr:
            load_pq(rt + 2)
    g.I("s_barrier")
    g.I("v_lshlrev_b32 v1, 4, v0")
    g.I("s_mul_i32 s43, s64, 24576")
    g.I("s_mul_i32 s46, s65, 12288")
    g.I("s_add_u32 s43, s43, s46")
    g.I("v_add_u32 v1, s43, v1")
    for rt in range(nr):
        for ct in range(4):
            g.I(f"ds_write_b128 v1, {vr(A2(rt,ct))} offset:{rt*4096 + ct*1024}")
    g.I("s_waitcnt lgkmcnt(0)")
    g.I("s_barrier")

def p2_final(g):
    g.I("s_lshl_b32 s38, s32, 6")
    g.I("v_add_u32 v1, s38, v0")
    g.I("s_movk_i32 s39, 640")
    g.I("s_cmp_eq_u32 s62, 2")
    g.I("s_cselect_b32 s39, 768, s39")
    g.I("s_lshl_b32 s40, s63, 4")
    g.I("s_mul_i32 s40, s40, 1280")
    g.I("s_lshl_b32 s41, s61, 7")
    g.I("s_add_u32 s40, s40, s41")
    for rnd in range(2):
        g.I(f"v_add_u32 v2, {512*rnd}, v1")
        g.I("v_lshrrev_b32 v3, 3, v2")
        g.I("v_and_b32 v4, 7, v2")
        g.I("v_lshrrev_b32 v5, 4, v3")
        g.I("v_and_b32 v6, 15, v3")
        g.I("v_lshrrev_b32 v7, 1, v4")
        g.I("v_and_b32 v8, 1, v4")
        g.I("v_lshlrev_b32 v8, 5, v8")
        g.I("v_add_u32 v8, v8, v6")
        g.I("v_lshlrev_b32 v8, 4, v8")
        g.I("v_lshl_add_u32 v8, v7, 10, v8")
        g.I(f"v_lshl_add_u32 v{10+rnd}, v5, 12, v8")
        g.I("v_mul_u32_u24 v9, 1280, v3")
        g.I(f"v_lshl_add_u32 v{12+rnd}, v4, 4, v9")
        g.I("v_cmp_gt_u32 vcc, s39, v2")
        g.I("v_mov_b32 v9, 0x40000000")
        g.I(f"v_cndmask_b32 v{12+rnd}, v9, v{12+rnd}, vcc")
        g.I(f"v_cndmask_b32 v{10+rnd}, 0, v{10+rnd}, vcc")
        g.I(f"v_add_u32 v{14+rnd}, 49152, v{10+rnd}")
    for rnd in range(2):
        b = 16 + 32 * rnd
        for kq in range(4):
            ar = (10 if kq < 2 else 14) + rnd
            g.I(f"ds_read_b128 {vr(b + 8*kq)}, v{ar} offset:{(kq % 2)*24576}")
            g.I(f"ds_read_b128 {vr(b + 8*kq + 4)}, v{ar} offset:{(kq % 2)*24576 + 256}")
    for rnd in range(2):
        b = 16 + 32 * rnd
        g.I(f"s_waitcnt lgkmcnt({8*(1-rnd)})")
        for j in range(8):
            g.I(f"v_add_f32 v{b+j}, v{b+j}, v{b+8+j}")
            g.I(f"v_add_f32 v{b+16+j}, v{b+16+j}, v{b+24+j}")
        for j in range(8):
            g.I(f"v_add_f32 v{b+j}, v{b+j}, v{b+16+j}")
        for j in range(4):
            g.I(f"v_cvt_pk_bf16_f32 v{b+8+j}, v{b+2*j}, v{b+2*j+1}")
        g.I(f"buffer_store_dwordx4 {vr(b+8)}, v{12+rnd}, s[24:27], s40 offen")

def kv_wait_hook(g):
    pass

def kernel_p2(g):
    end = g.newlabel("Lend")
    g.I("s_cmp_ge_u32 s2, 256")
    g.I(f"s_cbranch_scc1 {end}")
    g.I("s_load_dwordx2 s[4:5], s[0:1], 16")
    g.I("s_load_dwordx2 s[6:7], s[0:1], 40")
    g.I("s_load_dwordx2 s[8:9], s[0:1], 56")
    g.I("s_load_dwordx2 s[10:11], s[0:1], 72")
    g.I("v_lshrrev_b32 v1, 6, v0")
    g.I("v_and_b32 v0, 63, v0")
    g.I("v_readfirstlane_b32 s32, v1")
    g.I("s_and_b32 s33, s2, 7")
    g.I("s_lshr_b32 s34, s2, 3")
    g.I("s_cmp_ge_u32 s34, 30")
    g.I(f"s_cbranch_scc1 {end}")
    p2_decode(g)
    g.I("s_waitcnt lgkmcnt(0)")
    srd(g, 16, 4, 5, 640 * 1280)
    srd(g, 20, 6, 7, 1536 * 1280)
    srd(g, 24, 8, 9, 2048 * 1280)
    srd(g, 28, 10, 11, WS_USED)
    l2, lf = g.newlabel("Lnr2"), g.newlabel("Lfin")
    g.I("s_cmp_lt_u32 s62, 2")
    g.I("s_cselect_b32 s38, s65, 0")
    g.I("s_cmp_eq_u32 s38, 1")
    g.I(f"s_cbranch_scc1 {l2}")
    p2_body(g, 3)
    g.I(f"s_branch {lf}")
    g.L(l2)
    p2_body(g, 2)
    g.L(lf)
    p2_final(g)
    g.L(end)
    g.I("s_endpgm")

def kd(name, vgpr, sgpr=96):
    return f""".p2align 6
.amdhsa_kernel {name}
  .amdhsa_next_free_vgpr {vgpr}
  .amdhsa_next_free_sgpr {sgpr}
  .amdhsa_accum_offset {vgpr}
  .amdhsa_group_segment_fixed_size 0
  .amdhsa_kernarg_size 80
  .amdhsa_user_sgpr_count 2
  .amdhsa_user_sgpr_kernarg_segment_ptr 1
  .amdhsa_system_sgpr_workgroup_id_x 1
.end_amdhsa_kernel
"""

HEADER = open("cdna_kernels/" + NAME + ".s.ref").read().split("; Override launch")[0]

def finish(g):
    g.fix_hazards()
    probs = g.check_branches()
    for p in probs:
        print("BRANCH HAZARD:", p, file=sys.stderr)
    return g.text()

def build_v1():
    out = HEADER
    out += "; @launch kernel=p1_kernel grid=(256,1,1) block=(512,1,1) lds=137216\n"
    out += "; @launch kernel=red_kernel grid=(16,1,1) block=(512,1,1) lds=0\n"
    out += "; @launch kernel=p2_kernel grid=(256,1,1) block=(512,1,1) lds=155648\n"
    out += '.amdgcn_target "amdgcn-amd-amdhsa--gfx950"\n.text\n'
    for name, fn in (("p1_kernel", lambda g: kernel_p1(g, "p1")), ("red_kernel", kernel_red), ("p2_kernel", kernel_p2)):
        g = Gen(); g.nlab = {"p1_kernel": 0, "red_kernel": 1000, "p2_kernel": 2000}[name]
        fn(g)
        out += f".globl {name}\n.p2align 8\n.type {name},@function\n{name}:\n" + finish(g)
    out += '.section .rodata,"a"\n'
    out += kd("p1_kernel", 256) + kd("red_kernel", 128) + kd("p2_kernel", 256)
    return out

if __name__ == "__main__":
    which = sys.argv[1] if len(sys.argv) > 1 else "v1"
    path = sys.argv[2] if len(sys.argv) > 2 else "v1.s"
    txt = {"v1": build_v1}[which]()
    open(path, "w").write(txt)
    print("wrote", path, len(txt), "bytes")
```

```python
import sys
from asmlib import Gen, LgkmTracker, VmTracker

NAME = "gated_mix__linear_attn_block__dense_activation_relu__prompt"
KNAME = NAME + "_kernel"
H_OFF = 0
PQ_OFF = 0x600000
G_OFF = 0x900000
KVP_OFF = 0x910000
KVP_STRIDE = 7168
KVF_OFF = 0xA00000
KVF_STRIDE = 1536
FL_OFF = 0xA10000
HF_OFF = FL_OFF
KF_OFF = FL_OFF + 0x2000
FF_OFF = FL_OFF + 0x4000
ST_OFF = 0xA80000
WS_USED = 0xB00000
STAGE = 45056
GW_LDS = 3 * STAGE
KS_LDS = GW_LDS + 1280
KS_W = 6720
NONCE_LDS = KS_LDS + 4 * KS_W + 16
LDS_TOTAL = 163840
W2_BASE = 45056
W2_STAGE = 16384
WO_LDS = [0, 22528, 110592, 133120]
LOG2E = 0x3FB8AA3B
EPS6 = 0x358637BD
BIG = 0x40000000
SC = " sc1"
SPIN_MAX = 40000

OPT = dict(stamp=False, prefetch=True, codepf=True)

SRD_X, SRD_QKV, SRD_W1, SRD_WS, SRD_GW, SRD_W2, SRD_WO, SRD_OUT = 8, 12, 16, 20, 24, 28, 32, 36
def R4(b): return f"s[{b}:{b+3}]"
sWAVE, sXCD, sI, sRB, sA, sNONCE = "s44", "s45", "s46", "s47", "s48", "s49"
def vr(b, n=4): return f"v[{b}:{b+n-1}]"

def stamp(g, k):
    if not OPT["stamp"]: return
    g.I(f"s_memrealtime s[{84+2*k}:{85+2*k}]")
    g.I("s_waitcnt lgkmcnt(0)")

def stamp_flush(g):
    if not OPT["stamp"]: return
    g.I("s_lshl_b32 s50, s2, 8")
    g.I(f"s_lshl_b32 s51, {sWAVE}, 5")
    g.I("s_add_u32 s50, s50, s51")
    g.I(f"s_add_u32 s50, s50, {ST_OFF}")
    g.I("v_mov_b32 v14, 0")
    for k in range(8):
        g.I(f"v_mov_b32 v15, s{84+2*k}")
        g.I(f"buffer_store_dword v15, v14, {R4(SRD_WS)}, s50 offen offset:{4*k}")

def srd(g, d, p, size):
    g.I(f"s_mov_b32 s{d}, s{p}")
    g.I(f"s_and_b32 s{d+1}, s{p+1}, 0xffff")
    g.I(f"s_mov_b32 s{d+2}, {size}")
    g.I(f"s_mov_b32 s{d+3}, 0x00020000")

def srds_p1(g):
    srd(g, SRD_X, 64, 2048 * 1280)
    srd(g, SRD_QKV, 66, 640 * 3840)
    srd(g, SRD_W1, 72, 640 * 3072)

def srds_rest(g):
    srd(g, SRD_WS, 82, WS_USED)
    srd(g, SRD_GW, 76, 1280)
    srd(g, SRD_W2, 74, 1536 * 1280)
    srd(g, SRD_WO, 68, 640 * 1280)
    srd(g, SRD_OUT, 78, 2048 * 1280)

def swap23(g, dst, src, t1, t2):
    g.I(f"v_and_b32 {t1}, 4, {src}")
    g.I(f"v_and_b32 {t2}, 8, {src}")
    g.I(f"v_and_b32 {dst}, 0x33, {src}")
    g.I(f"v_lshl_or_b32 {dst}, {t1}, 1, {dst}")
    g.I(f"v_lshrrev_b32 {t2}, 1, {t2}")
    g.I(f"v_or_b32 {dst}, {dst}, {t2}")

def p1_loader(g, typ):
    g.C(f"==== P1 loader type {typ}")
    g.I(f"s_sub_u32 s52, {sWAVE}, 4")
    g.I("v_lshrrev_b32 v2, 3, v0")
    g.I("v_and_b32 v3, 7, v0")
    g.I("v_lshrrev_b32 v4, 4, v0")
    g.I(f"s_lshl_b32 s53, {sRB}, 2")
    g.I("s_add_u32 s53, s53, s52")
    g.I(f"s_mul_i32 s53, s53, {32*1280}")
    g.I("v_xor_b32 v5, v3, v4")
    g.I("v_lshlrev_b32 v5, 4, v5")
    g.I("v_mul_u32_u24 v6, 1280, v2")
    g.I("v_add_u32 v6, s53, v6")
    XO = [10, 11, 12, 13]
    g.I(f"v_add_u32 v{XO[0]}, v6, v5")
    g.I("v_xor_b32 v5, 64, v5")
    g.I(f"v_add_u32 v{XO[1]}, v6, v5")
    g.I(f"v_add_u32 v{XO[1]}, {8*1280}, v{XO[1]}")
    g.I(f"v_add_u32 v{XO[2]}, {16*1280}, v{XO[0]}")
    g.I(f"v_add_u32 v{XO[3]}, {16*1280}, v{XO[1]}")
    g.I("s_lshl_b32 s54, s52, 10")
    g.I("s_lshl_b32 s55, s52, 12")
    g.I("s_mov_b32 s56, 0")
    g.I("s_mov_b32 s57, 0")
    g.I("s_mov_b32 s58, 0")
    g.I("s_waitcnt lgkmcnt(0)")
    srd(g, SRD_X, 64, 2048 * 1280)
    def issue_x():
        for j in range(4):
            g.I(f"s_add_u32 m0, s55, {j*1024}")
            g.I(f"buffer_load_dwordx4 v{XO[j]}, {R4(SRD_X)}, s56 offen lds")
    issue_x()
    srd(g, SRD_QKV, 66, 640 * 3840)
    n10 = 5 if typ == "A" else 3
    QO = [14, 15, 16, 17, 18][:n10]
    g.I(f"s_mul_i32 s59, {sA}, 160")
    if typ == "A":
        g.I("s_add_u32 s59, s59, 1280")
    g.I("s_mov_b32 s60, 6554")
    g.I("s_mov_b32 s61, 3840")
    R10 = 16384
    RH = 36864 if typ == "A" else 28672
    for n in range(n10):
        g.I(f"s_add_u32 s62, s52, {4*n}")
        if typ == "A":
            g.I("s_cmp_ge_u32 s62, 10")
            g.I("s_cselect_b32 s63, 10, 0")
            g.I("s_cselect_b32 s50, 1280, 0")
            g.I("s_sub_u32 s62, s62, s63")
        g.I("s_lshl_b32 s62, s62, 6")
        g.I("v_add_u32 v5, s62, v0")
        g.I("v_mul_lo_u32 v6, v5, s60")
        g.I("v_lshrrev_b32 v6, 16, v6")
        g.I("v_mul_u32_u24 v7, 10, v6")
        g.I("v_sub_u32 v7, v5, v7")
        swap23(g, "v8", "v6", "v9", "v19")
        g.I("v_mul_lo_u32 v8, v8, s61")
        g.I("v_lshl_add_u32 v8, v7, 4, v8")
        if typ == "A":
            g.I("s_add_u32 s50, s50, s59")
            g.I(f"v_add_u32 v{QO[n]}, s50, v8")
        else:
            g.I(f"v_add_u32 v{QO[n]}, s59, v8")
            if n == 2:
                g.I("s_cmp_ge_u32 s52, 2")
                g.I(f"s_cselect_b32 s50, {BIG}, 0")
                g.I(f"v_add_u32 v{QO[n]}, s50, v{QO[n]}")
        g.I(f"s_add_u32 m0, s54, {R10 + 4096*n}")
        g.I(f"buffer_load_dwordx4 v{QO[n]}, {R4(SRD_QKV)}, s57 offen lds")
    srd(g, SRD_W1, 72, 640 * 3072)
    nH = 2 if typ == "A" else 4
    HO = [20, 21, 22, 23][:nH]
    g.I("v_lshlrev_b32 v5, 1, v4")
    g.I("v_xor_b32 v5, v3, v5")
    g.I("v_lshlrev_b32 v5, 4, v5")
    if typ == "A":
        g.I(f"s_lshl_b32 s59, {sA}, 7")
    else:
        g.I(f"s_lshl_b32 s59, {sA}, 8")
        g.I("s_add_u32 s59, s59, 1024")
    g.I("s_mov_b32 s61, 3072")
    for n in range(2):
        g.I(f"s_add_u32 s62, s52, {4*n}")
        g.I("s_lshl_b32 s62, s62, 3")
        g.I("v_add_u32 v6, s62, v2")
        swap23(g, "v8", "v6", "v9", "v19")
        g.I("v_mul_lo_u32 v8, v8, s61")
        g.I("v_add_u32 v8, v8, v5")
        g.I(f"v_add_u32 v{HO[n]}, s59, v8")
        if nH == 4:
            g.I(f"v_add_u32 v{HO[n+2]}, 128, v{HO[n]}")
    def issue_h():
        for n in range(nH):
            g.I(f"s_add_u32 m0, s54, {RH + 8192*(n//2) + 4096*(n % 2)}")
            g.I(f"buffer_load_dwordx4 v{HO[n]}, {R4(SRD_W1)}, s58 offen lds")
    def issue_q():
        for n in range(n10):
            g.I(f"s_add_u32 m0, s54, {R10 + 4096*n}")
            g.I(f"buffer_load_dwordx4 v{QO[n]}, {R4(SRD_QKV)}, s57 offen lds")
    issue_h()
    srds_rest(g)
    def advance():
        g.I("s_add_u32 s56, s56, 128")
        g.I(f"s_add_u32 s57, s57, {64*3840}")
        g.I(f"s_add_u32 s58, s58, {64*3072}")
        g.I(f"s_add_u32 s54, s54, {STAGE}")
        g.I(f"s_add_u32 s55, s55, {STAGE}")
        g.I(f"s_cmp_ge_u32 s54, {3*STAGE}")
        g.I(f"s_cselect_b32 s62, {3*STAGE}, 0")
        g.I("s_sub_u32 s54, s54, s62")
        g.I("s_sub_u32 s55, s55, s62")
    def issue():
        advance(); issue_x(); issue_q(); issue_h()
    extra0 = 0
    if typ == "B":
        lab = g.newlabel("Lgw")
        g.I("s_cmp_lg_u32 s52, 0")
        g.I(f"s_cbranch_scc1 {lab}")
        g.I("v_lshlrev_b32 v5, 4, v0")
        g.I(f"s_mov_b32 m0, {GW_LDS}")
        g.I("v_add_u32 v6, 1024, v5")
        g.I(f"buffer_load_dwordx4 v5, {R4(SRD_GW)}, 0 offen lds")
        g.I(f"s_mov_b32 m0, {GW_LDS + 1024}")
        g.I("s_nop 0")
        g.I(f"buffer_load_dwordx4 v6, {R4(SRD_GW)}, 0 offen lds")
        g.L(lab)
    issue()
    issue()
    stamp(g, 1)
    g.I("s_waitcnt vmcnt(22)")
    stamp(g, 2)
    g.I("s_barrier")
    g.I("s_mov_b32 s63, 1")
    loop = g.newlabel("Lld")
    g.L(loop)
    g.I("s_waitcnt vmcnt(11)")
    g.I("s_barrier")
    issue()
    g.I("s_add_u32 s63, s63, 1")
    g.I("s_cmp_le_u32 s63, 7")
    g.I(f"s_cbranch_scc1 {loop}")

def p2_decode(g):
    g.I(f"s_mul_i32 s50, {sI}, 86")
    g.I("s_lshr_b32 s50, s50, 8")
    g.I("s_mul_i32 s51, s50, 3")
    g.I(f"s_sub_u32 s51, {sI}, s51")
    g.I("s_mul_i32 s52, s51, 5")
    g.I(f"s_lshl_b32 s56, {sXCD}, 4")
    g.I("s_add_u32 s52, s52, s56")
    g.I(f"s_and_b32 s53, {sWAVE}, 3")
    g.I(f"s_lshr_b32 s54, {sWAVE}, 2")
    g.I("s_mul_i32 s55, s54, 3")
    g.I("s_add_u32 s55, s55, s52")

VD2 = 74
VWO = 75
def p2_dma_setup(g):
    g.I("v_lshrrev_b32 v5, 3, v0")
    g.I("v_and_b32 v6, 7, v0")
    g.I("v_lshrrev_b32 v2, 4, v0")
    g.I("v_lshlrev_b32 v7, 1, v2")
    g.I("v_xor_b32 v7, v6, v7")
    g.I("v_mul_u32_u24 v8, 1280, v5")
    g.I("s_lshl_b32 s56, s50, 7")
    g.I("v_add_u32 v8, s56, v8")
    g.I(f"v_lshl_add_u32 v{VD2}, v7, 4, v8")
    g.I(f"v_lshl_add_u32 v{VWO}, v6, 4, v8")
    g.I(f"s_mul_i32 s57, s53, {12*32*1280}")
    g.I("s_lshl_b32 s58, s53, 12")
    g.I(f"s_add_u32 s58, s58, {W2_BASE}")
    g.I(f"s_mul_i32 s59, s53, {160*1280}")
    g.I("s_mul_i32 s60, s53, 22528")
    g.I("s_cmp_ge_u32 s53, 2")
    g.I(f"s_cselect_b32 s56, {110592 - 2*22528}, 0")
    g.I("s_add_u32 s60, s60, s56")

def dma_w2(g, vm, u):
    for j in range(4):
        g.I(f"s_add_u32 m0, s58, {(u % 4) * W2_STAGE + j*1024}")
        g.I(f"s_add_u32 s56, s57, {u * 32 * 1280 + j * 8 * 1280}")
        vm.issue(f"buffer_load_dwordx4 v{VD2}, {R4(SRD_W2)}, s56 offen lds", ("d", u))

def dma_wo(g, vm, j0, j1):
    for j in range(j0, j1):
        g.I(f"s_add_u32 m0, s60, {j*1024}")
        g.I(f"s_add_u32 s56, s59, {j*8*1280}")
        vm.issue(f"buffer_load_dwordx4 v{VWO}, {R4(SRD_WO)}, s56 offen lds", ("wo", 0))

def poll(g, vaddr, soff_imm, nlanes, tmp="v14"):
    loop = g.newlabel("Lpoll"); done = g.newlabel("Lpd")
    g.I("s_mov_b32 s4, 0")
    g.I(f"s_mov_b32 s5, {soff_imm}")
    mask = (1 << nlanes) - 1
    g.I(f"s_mov_b32 s7, {mask:#x}")
    g.L(loop)
    g.I(f"buffer_load_dword {tmp}, {vaddr}, {R4(SRD_WS)}, s5 offen{SC}")
    g.I("s_waitcnt vmcnt(0)")
    g.I(f"v_cmp_eq_u32 vcc, {sNONCE}, {tmp}")
    g.I("s_and_b32 s6, vcc_lo, s7")
    g.I("s_cmp_eq_u32 s6, s7")
    g.I(f"s_cbranch_scc1 {done}")
    g.I("s_add_u32 s4, s4, 1")
    g.I(f"s_cmp_lt_u32 s4, {SPIN_MAX}")
    g.I("s_sleep 1")
    g.I(f"s_cbranch_scc1 {loop}")
    g.L(done)

ACC = 128
def acc(t, rt): return ACC + (2 * t + rt) * 4
KVA = 68

def prefetches(g, typ):
    if not OPT["prefetch"]:
        return
    g.C("L2 prefetch")
    g.I(f"s_lshr_b32 s50, {sI}, 2")
    g.I(f"s_and_b32 s51, {sI}, 3")
    def ld(vaddr, srd_, soff):
        g.I(f"buffer_load_dword v64, {vaddr}, {R4(srd_)}, {soff} offen")
    lw0, lw1, lw2, lw3, lend = [g.newlabel("Lpf") for _ in range(5)]
    g.I(f"s_cmp_eq_u32 {sWAVE}, 1"); g.I(f"s_cbranch_scc1 {lw1}")
    g.I(f"s_cmp_eq_u32 {sWAVE}, 2"); g.I(f"s_cbranch_scc1 {lw2}")
    g.I(f"s_cmp_eq_u32 {sWAVE}, 3"); g.I(f"s_cbranch_scc1 {lw3}")
    g.I("v_and_b32 v5, 31, v0")
    g.I("v_lshlrev_b32 v5, 2, v5")
    g.I("v_add_u32 v5, s51, v5")
    g.I(f"s_lshl_b32 s52, {sRB}, 7")
    g.I("v_add_u32 v5, s52, v5")
    g.I("v_mul_u32_u24 v5, 1280, v5")
    g.I("v_lshrrev_b32 v6, 5, v0")
    g.I("v_lshl_add_u32 v5, v6, 7, v5")
    for n in range(4):
        g.I(f"s_mov_b32 s53, {(3 + 2*n) * 128}")
        if n == 3:
            pass
        ld("v5", SRD_X, "s53")
    g.I(f"s_branch {lend}")
    g.L(lw1)
    if typ == "A":
        g.I("v_bfe_u32 v5, v0, 2, 3")
        g.I("v_lshlrev_b32 v5, 3, v5")
        g.I("v_add_u32 v5, s50, v5")
        g.I("v_lshrrev_b32 v6, 5, v0")
        g.I("v_lshl_add_u32 v5, v6, 6, v5")
        g.I("v_mul_u32_u24 v5, 3840, v5")
        g.I("v_bfe_u32 v6, v0, 1, 1")
        g.I("v_mul_u32_u24 v6, 1280, v6")
        g.I("v_and_b32 v7, 1, v0")
        g.I("v_lshlrev_b32 v7, 7, v7")
        g.I("v_add3_u32 v5, v5, v6, v7")
        g.I(f"s_mul_i32 s52, {sA}, 160")
        g.I("s_add_u32 s52, s52, 1280")
        g.I("s_and_b32 s52, s52, 0xffffff80")
        g.I("v_add_u32 v5, s52, v5")
        for n in range(4):
            g.I(f"s_mov_b32 s53, {(3 + 2*n) * 64 * 3840}")
            ld("v5", SRD_QKV, "s53")
    else:
        g.I("v_bfe_u32 v5, v0, 1, 3")
        g.I("v_lshlrev_b32 v5, 3, v5")
        g.I("v_add_u32 v5, s50, v5")
        g.I("v_lshrrev_b32 v6, 4, v0")
        g.I("v_lshl_add_u32 v5, v6, 6, v5")
        g.I("v_mul_u32_u24 v5, 3840, v5")
        g.I("v_and_b32 v7, 1, v0")
        g.I("v_lshl_add_u32 v5, v7, 7, v5")
        g.I(f"s_mul_i32 s52, {sA}, 160")
        g.I("s_and_b32 s52, s52, 0xffffff80")
        g.I("v_add_u32 v5, s52, v5")
        for n in range(2):
            g.I(f"s_mov_b32 s53, {(3 + 4*n) * 64 * 3840}")
            ld("v5", SRD_QKV, "s53")
    g.I(f"s_branch {lend}")
    g.L(lw2)
    if typ == "A":
        g.I("v_and_b32 v5, 7, v0")
        g.I("v_lshlrev_b32 v5, 3, v5")
        g.I("v_add_u32 v5, s50, v5")
        g.I("v_lshrrev_b32 v6, 3, v0")
        g.I("v_lshl_add_u32 v5, v6, 6, v5")
        g.I("v_mul_u32_u24 v5, 3072, v5")
        g.I(f"s_lshl_b32 s52, {sA}, 7")
        g.I("v_add_u32 v5, s52, v5")
        g.I(f"s_mov_b32 s53, {3 * 64 * 3072}")
        ld("v5", SRD_W1, "s53")
    else:
        g.I("v_bfe_u32 v5, v0, 1, 3")
        g.I("v_lshlrev_b32 v5, 3, v5")
        g.I("v_add_u32 v5, s50, v5")
        g.I("v_lshrrev_b32 v6, 4, v0")
        g.I("v_lshl_add_u32 v5, v6, 6, v5")
        g.I("v_mul_u32_u24 v5, 3072, v5")
        g.I("v_and_b32 v7, 1, v0")
        g.I("v_lshl_add_u32 v5, v7, 7, v5")
        g.I(f"s_lshl_b32 s52, {sA}, 8")
        g.I("s_add_u32 s52, s52, 1024")
        g.I("v_add_u32 v5, s52, v5")
        for n in range(2):
            g.I(f"s_mov_b32 s53, {(3 + 4*n) * 64 * 3072}")
            ld("v5", SRD_W1, "s53")
    g.I("v_lshlrev_b32 v6, 21, v0")
    ld("v6", SRD_WS, "0")
    ld("v6", SRD_OUT, "0")
    g.I(f"s_branch {lend}")
    g.L(lw3)
    if OPT["codepf"]:
        g.I("s_getpc_b64 s[56:57]")
        g.L("Lpc_" + typ)
        g.I(f"s_sub_u32 s56, s56, Lpc_{typ}-{KNAME}")
        g.I("s_subb_u32 s57, s57, 0")
        g.I("v_and_b32 v5, 15, v0")
        g.I(f"s_lshl_b32 s58, {sI}, 4")
        g.I("v_add_u32 v5, s58, v5")
        g.I("v_lshlrev_b32 v5, 7, v5")
        g.I(f"v_min_u32 v5, Lcode_end-{KNAME}-4, v5")
        g.I(f"global_load_dword v64, v5, s[56:57]")
    g.I("s_mov_b32 s52, 6554")
    g.I("v_mul_lo_u32 v5, v0, s52")
    g.I("v_lshrrev_b32 v5, 16, v5")
    g.I("v_mul_u32_u24 v6, 10, v5")
    g.I("v_sub_u32 v6, v0, v6")
    g.I(f"s_lshl_b32 s53, {sI}, 2")
    g.I("v_add_u32 v5, s53, v5")
    g.I("v_lshrrev_b32 v7, 5, v5")
    g.I("v_and_b32 v5, 31, v5")
    g.I("v_mul_u32_u24 v7, 384, v7")
    g.I("v_add_u32 v5, v5, v7")
    g.I("v_mul_u32_u24 v5, 1280, v5")
    g.I("v_lshl_add_u32 v5, v6, 7, v5")
    g.I("v_cmp_gt_u32 vcc, 40, v0")
    g.I(f"v_mov_b32 v6, {BIG}")
    g.I("v_cndmask_b32 v126, v6, v5, vcc")
    g.L(lend)

def p1_compute(g, typ):
    g.C(f"==== P1 compute type {typ}")
    g.I("s_waitcnt lgkmcnt(0)")
    srds_p1(g)
    srds_rest(g)
    lab = g.newlabel("Lnn")
    g.I(f"s_or_b32 s50, s2, {sWAVE}")
    g.I("s_cmp_lg_u32 s50, 0")
    g.I(f"s_cbranch_scc1 {lab}")
    g.I("s_memrealtime s[50:51]")
    g.I("s_waitcnt lgkmcnt(0)")
    g.I("s_or_b32 s50, s50, 1")
    g.I("v_mov_b32 v5, s50")
    g.I("v_mov_b32 v6, 0")
    g.I(f"global_store_dword v6, v5, s[80:81]{SC}")
    g.L(lab)
    g.I(f"v_mov_b32 v126, {BIG}")
    g.I("v_mov_b32 v66, 0")
    g.I("v_mov_b32 v65, 0")
    prefetches(g, typ)
    g.I("v_and_b32 v1, 15, v0")
    g.I("v_lshrrev_b32 v2, 4, v0")
    g.I("v_bfe_u32 v3, v0, 2, 2")
    g.I("v_and_b32 v4, 3, v0")
    g.I("v_lshrrev_b32 v5, 1, v1")
    g.I("v_xor_b32 v5, v2, v5")
    g.I("v_lshlrev_b32 v5, 4, v5")
    g.I("v_lshl_add_u32 v5, v1, 7, v5")
    g.I(f"s_lshl_b32 s50, {sWAVE}, 12")
    g.I("v_add_u32 v48, s50, v5")
    g.I("v_xor_b32 v49, 64, v48")
    g.I("v_lshrrev_b32 v5, 1, v2")
    g.I("v_lshlrev_b32 v5, 4, v5")
    g.I("v_and_b32 v6, 1, v2")
    g.I("v_lshl_add_u32 v5, v6, 2, v5")
    g.I("v_add_u32 v5, v5, v3")
    g.I("v_mul_u32_u24 v50, 160, v5")
    g.I("v_lshl_add_u32 v50, v4, 3, v50")
    g.I("v_lshrrev_b32 v7, 1, v3")
    g.I("v_lshlrev_b32 v7, 1, v7")
    g.I("v_lshl_add_u32 v7, v6, 2, v7")
    g.I("v_lshrrev_b32 v8, 1, v4")
    g.I("v_and_b32 v9, 1, v4")
    g.I("v_lshlrev_b32 v9, 3, v9")
    g.I("v_lshl_add_u32 v9, v5, 7, v9")
    for t in range(4):
        g.I(f"v_add_u32 v10, {2*t}, v8")
        g.I("v_xor_b32 v10, v10, v7")
        g.I(f"v_lshl_add_u32 v{51+t}, v10, 4, v9")
    for k in range(7):
        g.I(f"v_mov_b32 v{56+k}, v{48+k}")
    if typ == "A":
        tiles = [("kv", t, "N") for t in range(5)] + [("kv", 5 + t, "N") for t in range(5)] + [("h", t, "T") for t in range(4)]
    else:
        tiles = [("kv", t, "T") for t in range(5)] + [("h", t, "T") for t in range(8)] + [("g", 0, "T")]
        g.I("v_lshlrev_b32 v63, 4, v2")
        g.I(f"v_add_u32 v63, {GW_LDS}, v63")
    g.I(f"s_mov_b32 s50, {EPS6}")
    for t in range(14):
        for rt in range(2):
            for i in range(4):
                g.I(f"v_mov_b32 v{acc(t,rt)+i}, " + ("s50" if t < 5 else "0"))
    if typ == "A":
        g.I(f"s_mul_i32 s50, {sWAVE}, {KS_W}")
        g.I(f"s_add_u32 s50, s50, {KS_LDS}")
        g.I(f"v_mov_b32 v15, {KS_LDS + 4*KS_W}")
        for t in range(5):
            g.I(f"v_lshl_add_u32 v5, v2, 2, {16*t}")
            g.I("v_mul_u32_u24 v6, 205, v5")
            g.I(f"v_lshrrev_b32 v{16+t}, 12, v6")
            g.I(f"v_mul_u32_u24 v6, 20, v{16+t}")
            g.I("v_sub_u32 v6, v5, v6")
            g.I(f"v_mul_u32_u24 v7, {105*16}, v{16+t}")
            g.I("v_lshl_add_u32 v7, v6, 2, v7")
            g.I(f"v_add_u32 v{21+t}, s50, v7")
            g.I(f"v_add_u32 v5, {16*t}, v1")
            g.I("v_mul_u32_u24 v6, 205, v5")
            g.I(f"v_lshrrev_b32 v{26+t}, 12, v6")
            g.I(f"v_mul_u32_u24 v6, 20, v{26+t}")
            g.I("v_sub_u32 v6, v5, v6")
            g.I(f"v_mul_u32_u24 v{31+t}, 80, v6")
        for t in range(5):
            for tp in range(5):
                if abs(t - tp) <= 1:
                    idx = 2 * t + tp
                    g.I(f"v_add_u32 v5, v{21+t}, v{31+tp}")
                    g.I(f"v_cmp_eq_u32 vcc, v{16+t}, v{26+tp}")
                    g.I(f"v_cndmask_b32 v{KVA+idx}, v15, v5, vcc")
        g.I("v_cmp_eq_u32 vcc, 0, v1")
        for t in range(5):
            g.I(f"v_add_u32 v5, {20*80}, v{21+t}")
            g.I(f"v_cndmask_b32 v{KVA+13+t}, v15, v5, vcc")
    XF = lambda ks, rt: 16 + (2 * ks + rt) * 4
    WF = lambda n: 32 + (n % 4) * 4
    R10 = 16384
    RH = 36864 if typ == "A" else 28672
    lk = LgkmTracker(g)
    NS = 2 * len(tiles)
    steps = [(ks, ti) for ks in range(2) for ti in range(len(tiles))]
    def rd_x(ks):
        for rt in range(2):
            lk.issue(f"ds_read_b128 {vr(XF(ks,rt))}, v{56+ks} offset:{rt*2048}", ("x", ks))
    def rd_w(n, half):
        ks, ti = steps[n % NS]
        kind, t, _ = tiles[ti]
        w = WF(n)
        tag = ("w", n % NS)
        if kind == "kv":
            off = R10 + ks * 5120 + half * 1280 + 32 * (t % 5) + (10240 if t >= 5 else 0)
            lk.issue(f"ds_read_b64_tr_b16 {vr(w + 2*half, 2)}, v58 offset:{off}", tag)
        elif kind == "h":
            off = RH + (t // 4) * 8192 + ks * 4096 + half * 1024
            lk.issue(f"ds_read_b64_tr_b16 {vr(w + 2*half, 2)}, v{59 + (t % 4)} offset:{off}", tag)
        else:
            if half == 0:
                lk.issue(f"ds_read_b128 {vr(w)}, v63 offset:{ks*64}", tag)
    D = 3
    assert NS % 4 == 0
    g.I("s_mov_b32 s50, 0")
    g.I("s_mov_b32 s51, 0")
    stamp(g, 1)
    g.I("s_barrier")
    rd_x(0)
    for n in range(D):
        rd_w(n, 0); rd_w(n, 1)
    loop = g.newlabel("Lp1"); last = g.newlabel("Lp1last"); cont = g.newlabel("Lp1c")
    g.L(loop)
    q_at_loop = list(lk.q)
    for n, (ks, ti) in enumerate(steps):
        kind, t, ori = tiles[ti]
        if n == NS - D:
            g.I("s_add_u32 s50, s50, 1")
            g.I("s_cmp_eq_u32 s50, 10")
            g.I(f"s_cbranch_scc1 {last}")
            g.I(f"s_add_u32 s51, s51, {STAGE}")
            g.I(f"s_cmp_ge_u32 s51, {3*STAGE}")
            g.I(f"s_cselect_b32 s52, {3*STAGE}, 0")
            g.I("s_sub_u32 s51, s51, s52")
            for k in range(7):
                g.I(f"v_add_u32 v{56+k}, s51, v{48+k}")
            if typ == "B":
                g.I("v_add_u32 v63, 128, v63")
            in_loop_extras(g)
            lk.drain()
            g.I("s_barrier")
            rd_x_next = True
            saved_tail_q = None
            rd_x(0)
        if ti == 0 and not (n == 0):
            lk.wait(("x", ks))
        if n == 0:
            lk.wait(("x", 0))
        if n < NS - D:
            lk.wait(("w", n))
        for rt in range(2):
            a = acc(ti, rt)
            if ori == "N":
                g.I(f"v_mfma_f32_16x16x32_bf16 {vr(a)}, {vr(XF(ks,rt))}, {vr(WF(n))}, {vr(a)}")
            else:
                g.I(f"v_mfma_f32_16x16x32_bf16 {vr(a)}, {vr(WF(n))}, {vr(XF(ks,rt))}, {vr(a)}")
            rd_w(n + D, rt)
        if n == 4:
            rd_x(1)
    assert lk.q == q_at_loop, (lk.q, q_at_loop)
    g.I(f"s_branch {loop}")
    g.L(last)
    g.I("s_waitcnt lgkmcnt(0)")
    for n in range(NS - D, NS):
        ks, ti = steps[n]
        kind, t, ori = tiles[ti]
        for rt in range(2):
            a = acc(ti, rt)
            if ori == "N":
                g.I(f"v_mfma_f32_16x16x32_bf16 {vr(a)}, {vr(XF(ks,rt))}, {vr(WF(n))}, {vr(a)}")
            else:
                g.I(f"v_mfma_f32_16x16x32_bf16 {vr(a)}, {vr(WF(n))}, {vr(XF(ks,rt))}, {vr(a)}")
    stamp(g, 2)

def in_loop_extras(g):
    if OPT["prefetch"]:
        l1 = g.newlabel("Lx")
        g.I(f"s_cmp_lg_u32 {sWAVE}, 3")
        g.I(f"s_cbranch_scc1 {l1}")
        g.I("s_cmp_gt_u32 s50, 6")
        l2 = g.newlabel("Lx"); l3 = g.newlabel("Lx")
        g.I(f"s_cbranch_scc1 {l2}")
        g.I("s_sub_u32 s53, s50, 1")
        g.I(f"s_mul_i32 s53, s53, {2*32*1280}")
        g.I(f"buffer_load_dword v64, v126, {R4(SRD_W2)}, s53 offen")
        g.I(f"s_add_u32 s53, s53, {32*1280}")
        g.I(f"buffer_load_dword v64, v126, {R4(SRD_W2)}, s53 offen")
        g.I(f"s_branch {l3}")
        g.L(l2)
        g.I("s_sub_u32 s53, s50, 7")
        g.I("s_lshl_b32 s53, s53, 13")
        g.I(f"s_mul_i32 s54, {sI}, {200*128}")
        g.I("s_add_u32 s53, s53, s54")
        g.I("v_lshlrev_b32 v67, 7, v0")
        g.I(f"buffer_load_dword v64, v67, {R4(SRD_WO)}, s53 offen")
        g.L(l3)
        g.L(l1)
    l1 = g.newlabel("Lx")
    g.I(f"s_lshl_b32 s53, {sWAVE}, 4")
    g.I("s_add_u32 s53, s53, s50")
    g.I("s_cmp_lg_u32 s53, 6")
    g.I(f"s_cbranch_scc1 {l1}")
    g.I("v_mov_b32 v66, 0")
    g.I(f"global_load_dword v65, v66, s[80:81]{SC}")
    g.L(l1)

def phi(g, reg, tmp):
    g.I(f"v_mul_f32 {tmp}, s51, {reg}")
    g.I(f"v_exp_f32_e64 {tmp}, {tmp} clamp")
    g.I(f"v_max_f32 {reg}, s50, {reg}")
    g.I(f"v_add_f32 {reg}, {reg}, {tmp}")

def store_h(g, tiles_idx, kb0_s):
    g.I(f"s_lshl_b32 s53, {sRB}, 3")
    g.I(f"s_lshl_b32 s54, {sWAVE}, 1")
    g.I("s_add_u32 s53, s53, s54")
    g.I("s_mul_i32 s53, s53, 48")
    g.I(f"s_add_u32 s53, s53, {kb0_s}")
    g.I("s_lshl_b32 s53, s53, 10")
    g.I("v_lshlrev_b32 v1, 4, v0")
    for kbl in range(len(tiles_idx) // 2):
        for rt in range(2):
            a0 = acc(tiles_idx[2*kbl], rt); a1 = acc(tiles_idx[2*kbl+1], rt)
            d = 16 + ((kbl * 2 + rt) % 4) * 4
            g.I(f"v_cvt_pk_bf16_f32 v{d}, v{a0}, v{a0+1}")
            g.I(f"v_cvt_pk_bf16_f32 v{d+1}, v{a0+2}, v{a0+3}")
            g.I(f"v_cvt_pk_bf16_f32 v{d+2}, v{a1}, v{a1+1}")
            g.I(f"v_cvt_pk_bf16_f32 v{d+3}, v{a1+2}, v{a1+3}")
            for j in range(4):
                g.I(f"v_pk_max_i16 v{d+j}, v{d+j}, 0")
            g.I(f"s_add_u32 s54, s53, {H_OFF + rt*48*1024 + kbl*1024}")
            g.I(f"buffer_store_dwordx4 {vr(d)}, v1, {R4(SRD_WS)}, s54 offen{SC}")

def nonce_to_lds(g):
    lab = g.newlabel("Lnz"); loop = g.newlabel("Lnzl"); ok = g.newlabel("Lnzok")
    g.I(f"s_cmp_lg_u32 {sWAVE}, 0")
    g.I(f"s_cbranch_scc1 {lab}")
    g.I("s_mov_b32 s52, 0")
    g.I("s_waitcnt vmcnt(0)")
    g.L(loop)
    g.I(f"v_readfirstlane_b32 {sNONCE}, v65")
    g.I(f"s_cmp_lg_u32 {sNONCE}, 0")
    g.I(f"s_cbranch_scc1 {ok}")
    g.I(f"global_load_dword v65, v66, s[80:81]{SC}")
    g.I("s_add_u32 s52, s52, 1")
    g.I(f"s_cmp_lt_u32 s52, {SPIN_MAX}")
    g.I("s_waitcnt vmcnt(0)")
    g.I(f"s_cbranch_scc1 {loop}")
    g.L(ok)
    g.I(f"v_mov_b32 v66, {NONCE_LDS}")
    g.I("ds_write_b32 v66, v65")
    g.L(lab)

def p1_epilogue_A(g):
    g.C("==== P1 epilogue A")
    g.I(f"s_mov_b32 s50, {EPS6}")
    g.I(f"s_mov_b32 s51, {LOG2E}")
    g.I(f"s_lshl_b32 s52, {sA}, 1")
    store_h(g, [10, 11, 12, 13], "s52")
    KF = lambda t: 86 + 4 * t
    VF = lambda t: 106 + 4 * t
    for t in range(5):
        for rt in range(2):
            for i in range(4):
                phi(g, f"v{acc(t,rt)+i}", f"v{2 + i}")
        for rt in range(2):
            a = acc(t, rt)
            g.I(f"v_cvt_pk_bf16_f32 v{KF(t)+2*rt}, v{a}, v{a+1}")
            g.I(f"v_cvt_pk_bf16_f32 v{KF(t)+2*rt+1}, v{a+2}, v{a+3}")
    nonce_to_lds(g)
    for t in range(5):
        for rt in range(2):
            a = acc(5 + t, rt)
            g.I(f"v_cvt_pk_bf16_f32 v{VF(t)+2*rt}, v{a}, v{a+1}")
            g.I(f"v_cvt_pk_bf16_f32 v{VF(t)+2*rt+1}, v{a+2}, v{a+3}")
    for j in range(4):
        g.I(f"v_mov_b32 v{32+j}, 0x3f803f80")
    P = lambda idx: ACC + 4 * idx
    for t in range(5):
        for tp in range(5):
            if abs(t - tp) <= 1:
                g.I(f"v_mfma_f32_16x16x32_bf16 {vr(P(2*t+tp))}, {vr(KF(t))}, {vr(VF(tp))}, 0")
    for t in range(5):
        g.I(f"v_mfma_f32_16x16x32_bf16 {vr(P(13+t))}, {vr(KF(t))}, v[32:35], 0")
    for idx in range(18):
        g.I(f"ds_write_b128 v{KVA+idx}, {vr(P(idx))}")
    g.I("s_waitcnt lgkmcnt(0)")
    g.I("s_barrier")
    g.I(f"s_lshl_b32 s52, {sWAVE}, 6")
    g.I("v_add_u32 v5, s52, v0")
    g.I("v_lshlrev_b32 v5, 4, v5")
    g.I(f"v_add_u32 v6, {KS_LDS}, v5")
    g.I(f"v_add_u32 v7, 4096, v5")
    g.I(f"v_cmp_gt_u32 vcc, {420*16}, v7")
    g.I(f"v_mov_b32 v8, {BIG}")
    g.I("v_cndmask_b32 v7, v8, v7, vcc")
    g.I(f"v_add_u32 v9, 4096, v6")
    g.I("v_cndmask_b32 v9, v6, v9, vcc")
    for rnd in range(2):
        for w in range(4):
            g.I(f"ds_read_b128 {vr(16 + 16*rnd + 4*w)}, v{6 if rnd == 0 else 9} offset:{w*KS_W}")
    g.I(f"s_lshl_b32 s52, {sA}, 4")
    g.I(f"s_add_u32 s52, s52, {sRB}")
    g.I(f"s_mul_i32 s52, s52, {KVP_STRIDE}")
    g.I(f"s_add_u32 s52, s52, {KVP_OFF}")
    g.I("s_waitcnt lgkmcnt(0)")
    for rnd in range(2):
        b = 16 + 16 * rnd
        for j in range(4):
            g.I(f"v_add_f32 v{b+j}, v{b+j}, v{b+4+j}")
            g.I(f"v_add_f32 v{b+8+j}, v{b+8+j}, v{b+12+j}")
        for j in range(4):
            g.I(f"v_add_f32 v{b+j}, v{b+j}, v{b+8+j}")
        g.I(f"buffer_store_dwordx4 {vr(b)}, v{5 if rnd == 0 else 7}, {R4(SRD_WS)}, s52 offen{SC}")

def p1_epilogue_B(g):
    g.C("==== P1 epilogue B")
    g.I(f"s_mov_b32 s50, {EPS6}")
    g.I(f"s_mov_b32 s51, {LOG2E}")
    g.I(f"s_lshl_b32 s52, {sA}, 2")
    g.I("s_add_u32 s52, s52, 16")
    store_h(g, list(range(5, 13)), "s52")
    g.I("v_and_b32 v1, 15, v0")
    g.I("v_lshrrev_b32 v2, 4, v0")
    g.I("v_lshlrev_b32 v1, 4, v1")
    g.I("v_lshrrev_b32 v3, 1, v2")
    g.I("v_lshl_add_u32 v1, v3, 8, v1")
    g.I("v_and_b32 v3, 1, v2")
    g.I("v_lshl_add_u32 v1, v3, 3, v1")
    g.I(f"s_lshl_b32 s52, {sRB}, 3")
    g.I(f"s_lshl_b32 s53, {sWAVE}, 1")
    g.I("s_add_u32 s52, s52, s53")
    g.I("s_mul_i32 s52, s52, 20480")
    g.I(f"s_mul_i32 s53, {sA}, 2560")
    g.I("s_add_u32 s52, s52, s53")
    g.I(f"s_add_u32 s52, s52, {PQ_OFF}")
    for t in range(5):
        for rt in range(2):
            a = acc(t, rt)
            for i in range(4):
                phi(g, f"v{a+i}", f"v{2 + i}")
            d = 32 + ((2 * t + rt) % 8) * 2
            g.I(f"v_cvt_pk_bf16_f32 v{d}, v{a}, v{a+1}")
            g.I(f"v_cvt_pk_bf16_f32 v{d+1}, v{a+2}, v{a+3}")
            g.I(f"s_add_u32 s53, s52, {rt*20480 + t*512}")
            g.I(f"buffer_store_dwordx2 {vr(d,2)}, v1, {R4(SRD_WS)}, s53 offen{SC}")
    skip = g.newlabel("Lng")
    g.I(f"s_cmp_lg_u32 {sA}, 0")
    g.I(f"s_cbranch_scc1 {skip}")
    g.I("v_and_b32 v1, 15, v0")
    g.I("v_lshlrev_b32 v1, 2, v1")
    g.I("v_cmp_gt_u32 vcc, 16, v0")
    g.I(f"v_mov_b32 v6, {BIG}")
    g.I("v_cndmask_b32 v1, v6, v1, vcc")
    g.I(f"s_lshl_b32 s52, {sRB}, 7")
    g.I(f"s_lshl_b32 s53, {sWAVE}, 5")
    g.I("s_add_u32 s52, s52, s53")
    g.I("s_lshl_b32 s52, s52, 2")
    g.I(f"s_add_u32 s52, s52, {G_OFF}")
    for rt in range(2):
        a = acc(13, rt)
        g.I(f"v_mul_f32 v2, s51, v{a}")
        g.I("v_exp_f32_e64 v2, -v2")
        g.I("v_add_f32 v2, 1.0, v2")
        g.I(f"v_rcp_f32 v{8+rt}, v2")
        g.I(f"s_add_u32 s53, s52, {rt*64}")
        g.I(f"buffer_store_dword v{8+rt}, v1, {R4(SRD_WS)}, s53 offen{SC}")
    g.L(skip)
    nonce_to_lds(g)
    g.I("s_waitcnt lgkmcnt(0)")
    g.I("s_barrier")

def publish(g, typ):
    g.I("s_waitcnt vmcnt(0)")
    stamp(g, 3)
    g.I("s_barrier")
    read_nonce(g)
    lab = g.newlabel("Lfl")
    g.I(f"s_cmp_lg_u32 {sWAVE}, 0")
    g.I(f"s_cbranch_scc1 {lab}")
    g.I(f"v_mov_b32 v5, {sNONCE}")
    g.I("v_mov_b32 v6, 0")
    g.I(f"s_lshr_b32 s52, {sXCD}, 1")
    g.I("s_lshl_b32 s52, s52, 2")
    g.I(f"s_and_b32 s53, {sI}, 3")
    g.I("s_add_u32 s52, s52, s53")
    g.I("s_lshl_b32 s52, s52, 2")
    g.I(f"s_lshl_b32 s53, {sRB}, 8")
    g.I("s_add_u32 s52, s52, s53")
    g.I(f"s_add_u32 s52, s52, {HF_OFF}")
    g.I("v_cmp_eq_u32 vcc, 0, v0")
    g.I(f"v_mov_b32 v7, {BIG}")
    g.I("v_cndmask_b32 v6, v7, v6, vcc")
    g.I(f"buffer_store_dword v5, v6, {R4(SRD_WS)}, s52 offen{SC}")
    if typ == "A":
        g.I(f"s_lshl_b32 s52, {sA}, 8")
        g.I(f"s_lshl_b32 s53, {sRB}, 2")
        g.I("s_add_u32 s52, s52, s53")
        g.I(f"s_add_u32 s52, s52, {KF_OFF}")
        g.I(f"buffer_store_dword v5, v6, {R4(SRD_WS)}, s52 offen{SC}")
    g.L(lab)

def read_nonce(g):
    g.I(f"v_mov_b32 v5, {NONCE_LDS}")
    g.I("ds_read_b32 v5, v5")
    g.I("s_waitcnt lgkmcnt(0)")
    g.I(f"v_readfirstlane_b32 {sNONCE}, v5")

def reducer(g):
    g.C("==== kv reducer")
    g.I(f"s_lshl_b32 s50, {sXCD}, 1")
    g.I(f"s_add_u32 s50, s50, {sI}")
    g.I("s_sub_u32 s50, s50, 30")
    g.I(f"s_lshl_b32 s51, {sWAVE}, 6")
    g.I("v_add_u32 v1, s51, v0")
    g.I("v_cmp_le_u32 vcc, 192, v1")
    g.I("v_cndmask_b32 v2, 0, 1, vcc")
    g.I("v_mul_u32_u24 v3, 192, v2")
    g.I("v_sub_u32 v3, v1, v3")
    g.I("v_cmp_le_u32 vcc, 96, v3")
    g.I("v_cndmask_b32 v4, 0, 1, vcc")
    g.I("v_mul_u32_u24 v5, 96, v4")
    g.I("v_sub_u32 v5, v3, v5")
    g.I("v_lshrrev_b32 v6, 5, v5")
    g.I("v_bfe_u32 v7, v5, 1, 4")
    g.I("v_and_b32 v8, 1, v5")
    g.I("v_lshl_add_u32 v9, v6, 1, v8")
    g.I("v_sub_u32 v9, v9, v2")
    g.I("v_lshrrev_b32 v10, 2, v7")
    g.I("v_and_b32 v11, 3, v7")
    g.I("v_mul_u32_u24 v10, 5, v10")
    g.I("v_add_u32 v12, v10, v11")
    g.I("v_add_u32 v13, 4, v10")
    g.I("v_cmp_eq_u32 vcc, 1, v11")
    g.I("v_cndmask_b32 v13, v13, 20, vcc")
    g.I("v_cmp_eq_u32 vcc, 1, v4")
    g.I("v_cndmask_b32 v12, v12, v13, vcc")
    g.I("s_and_b32 s51, s50, 1")
    g.I("s_lshl_b32 s51, s51, 1")
    g.I("v_add_u32 v16, s51, v2")
    g.I("v_mul_u32_u24 v16, 105, v16")
    g.I("v_mul_u32_u24 v15, 5, v12")
    g.I("v_add3_u32 v16, v16, v15, v9")
    g.I("v_lshlrev_b32 v16, 4, v16")
    g.I(f"v_mov_b32 v18, {BIG}")
    g.I("v_cmp_gt_u32 vcc, 5, v9")
    g.I("v_cndmask_b32 v16, v18, v16, vcc")
    g.I("v_mul_u32_u24 v15, v4, v11")
    g.I("v_cmp_gt_u32 vcc, 2, v15")
    g.I("v_cndmask_b32 v16, v18, v16, vcc")
    g.I("v_cmp_gt_u32 vcc, 384, v1")
    g.I("v_cndmask_b32 v16, v18, v16, vcc")
    g.I("v_mul_u32_u24 v17, 1536, v2")
    g.I("v_lshl_add_u32 v17, v3, 3, v17")
    g.I("v_cndmask_b32 v17, v18, v17, vcc")
    lab = g.newlabel("Lrp")
    g.I(f"s_cmp_lg_u32 {sWAVE}, 4")
    g.I(f"s_cbranch_scc1 {lab}")
    g.I("v_lshlrev_b32 v19, 2, v0")
    g.I("s_lshr_b32 s51, s50, 1")
    g.I("s_lshl_b32 s51, s51, 8")
    g.I("v_add_u32 v19, s51, v19")
    g.I("v_cmp_gt_u32 vcc, 16, v0")
    g.I("v_cndmask_b32 v19, v18, v19, vcc")
    poll(g, "v19", KF_OFF, 16)
    g.L(lab)
    stamp(g, 4)
    g.I("s_barrier")
    g.I("s_lshr_b32 s51, s50, 1")
    g.I(f"s_mul_i32 s51, s51, {16*KVP_STRIDE}")
    g.I(f"s_add_u32 s51, s51, {KVP_OFF}")
    for rb in range(16):
        g.I(f"s_add_u32 s52, s51, {rb*KVP_STRIDE}")
        g.I(f"buffer_load_dwordx4 {vr(32+4*rb)}, v16, {R4(SRD_WS)}, s52 offen{SC}")
    for rb in range(1, 16):
        g.I(f"s_waitcnt vmcnt({15-rb})")
        for j in range(4):
            g.I(f"v_add_f32 v{32+j}, v{32+j}, v{32+4*rb+j}")
    g.I("v_cvt_pk_bf16_f32 v20, v32, v33")
    g.I("v_cvt_pk_bf16_f32 v21, v34, v35")
    g.I(f"s_mul_i32 s52, s50, {2*KVF_STRIDE}")
    g.I(f"s_add_u32 s52, s52, {KVF_OFF}")
    g.I(f"buffer_store_dwordx2 v[20:21], v17, {R4(SRD_WS)}, s52 offen{SC}")
    g.I("s_waitcnt vmcnt(0)")
    g.I("s_barrier")
    lab = g.newlabel("Lrf")
    g.I(f"s_cmp_lg_u32 {sWAVE}, 0")
    g.I(f"s_cbranch_scc1 {lab}")
    g.I(f"v_mov_b32 v5, {sNONCE}")
    g.I("v_mov_b32 v6, 0")
    g.I("v_cmp_eq_u32 vcc, 0, v0")
    g.I("v_cndmask_b32 v6, v18, v6, vcc")
    g.I("s_lshl_b32 s52, s50, 2")
    g.I(f"s_add_u32 s52, s52, {FF_OFF}")
    g.I(f"buffer_store_dword v5, v6, {R4(SRD_WS)}, s52 offen{SC}")
    g.L(lab)
    stamp(g, 5)

def p2_body(g, nr, isL, vm):
    g.C(f"==== P2 body nr={nr} L={isL}")
    ACC2 = 208
    A2 = lambda rt, ct: ACC2 + (rt * 4 + ct) * 4
    NAB = 4
    AB = lambda b, rt: 16 + (b * 3 + rt) * 4
    WA = [64 + k for k in range(10)]
    VG = [76, 77, 78]
    VK = 79
    BF = lambda ct: 80 + ct * 4
    VB = lambda ct: 96 + ct
    VA = 100
    KV = lambda hh, T: 104 + (hh * 2 + T) * 4
    PQ = lambda b, hh: (168 if b == 0 else 16) + hh * 4
    DD = lambda b, T: (200 if b == 0 else 96) + T * 4
    VAL = 48
    PK = 80
    WF = lambda k: 84 + (k % 3) * 4
    lk = LgkmTracker(g)
    g.I("v_and_b32 v1, 15, v0")
    g.I("v_lshrrev_b32 v2, 4, v0")
    g.I("v_bfe_u32 v3, v0, 2, 2")
    g.I("v_and_b32 v4, 3, v0")
    g.I(f"v_lshlrev_b32 v{VA}, 4, v0")
    g.I(f"v_mov_b32 v5, {BIG}")
    g.I("v_cmp_gt_u32 vcc, 48, v0")
    g.I(f"v_cndmask_b32 v{VK}, v5, v{VA}, vcc")
    g.I("v_and_b32 v6, 1, v2")
    g.I("v_lshrrev_b32 v7, 1, v3")
    g.I("v_lshlrev_b32 v7, 1, v7")
    g.I("v_lshl_add_u32 v7, v6, 2, v7")
    g.I("v_lshl_add_u32 v8, v2, 2, v3")
    g.I("v_and_b32 v9, 1, v4")
    g.I("v_lshlrev_b32 v9, 3, v9")
    g.I("v_lshl_add_u32 v9, v8, 7, v9")
    g.I("s_lshl_b32 s56, s53, 12")
    g.I(f"s_add_u32 s56, s56, {W2_BASE}")
    g.I("v_add_u32 v9, s56, v9")
    g.I("v_lshrrev_b32 v8, 1, v4")
    for ct in range(4):
        g.I(f"v_add_u32 v12, {2*ct}, v8")
        g.I("v_xor_b32 v12, v12, v7")
        g.I(f"v_lshl_add_u32 v{VB(ct)}, v12, 4, v9")
    for rt in range(nr):
        for ct in range(4):
            for i in range(4):
                g.I(f"v_mov_b32 v{A2(rt,ct)+i}, 0")
    g.I("v_mul_u32_u24 v12, 5, v2")
    g.I("s_mul_i32 s56, s53, 22528")
    g.I("s_cmp_ge_u32 s53, 2")
    g.I(f"s_cselect_b32 s61, {110592 - 2*22528}, 0")
    g.I("s_add_u32 s56, s56, s61")
    g.I("v_lshlrev_b32 v13, 3, v4")
    g.I("v_add_u32 v13, s56, v13")
    for n in range(5):
        for half in range(2):
            g.I(f"v_add_u32 v14, {8*n + 4*half}, v3")
            g.I("v_mul_u32_u24 v15, 52, v14")
            g.I("v_lshrrev_b32 v15, 8, v15")
            g.I("v_mul_u32_u24 v15, 15, v15")
            g.I("v_add3_u32 v14, v14, v15, v12")
            g.I(f"v_lshl_add_u32 v{WA[2*n+half]}, v14, 7, v13")
    g.I("s_mul_i32 s3, s55, 48")
    g.I("s_mul_i32 s56, s53, 12")
    g.I("s_add_u32 s3, s3, s56")
    g.I("s_lshl_b32 s3, s3, 10")
    g.I("s_mul_i32 s62, s55, 20480")
    g.I("s_mul_i32 s56, s53, 5120")
    g.I("s_add_u32 s62, s62, s56")
    if isL:
        lab = g.newlabel("Lhp")
        g.I(f"s_cmp_lg_u32 {sWAVE}, 4")
        g.I(f"s_cbranch_scc1 {lab}")
        g.I("v_lshrrev_b32 v12, 4, v0")
        g.I("v_lshlrev_b32 v12, 8, v12")
        g.I("v_and_b32 v13, 15, v0")
        g.I("v_lshl_add_u32 v12, v13, 2, v12")
        g.I(f"s_lshl_b32 s56, {sXCD}, 9")
        g.I("v_add_u32 v12, s56, v12")
        g.I("v_cmp_gt_u32 vcc, 32, v0")
        g.I(f"v_mov_b32 v13, {BIG}")
        g.I("v_cndmask_b32 v12, v13, v12, vcc")
        poll(g, "v12", HF_OFF, 32)
        g.L(lab)
    stamp(g, 4)
    g.I("s_barrier")
    def load_a(u):
        for rt in range(nr):
            g.I(f"s_add_u32 s56, s3, {H_OFF + rt*48*1024 + u*1024}")
            vm.issue(f"buffer_load_dwordx4 {vr(AB(u % NAB, rt))}, v{VA}, {R4(SRD_WS)}, s56 offen{SC}", ("a", u))
    for u in range(NAB):
        load_a(u)
    g.I("v_lshlrev_b32 v11, 2, v1")
    g.I("s_lshl_b32 s61, s55, 6")
    for rt in range(nr):
        g.I(f"s_add_u32 s56, s61, {G_OFF + rt*64}")
        vm.issue(f"buffer_load_dword v{VG[rt]}, v11, {R4(SRD_WS)}, s56 offen{SC}", ("g", 0))
    def load_pq(rt):
        for hh in range(8):
            g.I(f"s_add_u32 s56, s62, {PQ_OFF + rt*20480 + ((5*hh) >> 1)*256}")
            vm.issue(f"buffer_load_dwordx4 {vr(PQ(rt % 2, hh))}, v{VK}, {R4(SRD_WS)}, s56 offen{SC}", ("pq", rt, hh))
    wo_next = 0
    for u in range(12):
        if isL:
            vm.wait(("d", u))
        g.I("s_barrier")
        if isL:
            if 1 <= u and u + 3 < 12:
                dma_w2(g, vm, u + 3)
            if 1 <= u <= 7:
                dma_wo(g, vm, wo_next, min(wo_next + 3, 21)); wo_next = min(wo_next + 3, 21)
        for ct in range(4):
            for half in range(2):
                lk.issue(f"ds_read_b64_tr_b16 {vr(BF(ct) + 2*half, 2)}, v{VB(ct)} offset:{(u % 4) * W2_STAGE + half*2048}", ("b", ct))
        vm.wait(("a", u))
        for ct in range(4):
            lk.wait(("b", ct))
            for rt in range(nr):
                a = A2(rt, ct)
                g.I(f"v_mfma_f32_16x16x32_bf16 {vr(a)}, {vr(BF(ct))}, {vr(AB(u % NAB, rt))}, {vr(a)}")
        if u + NAB < 12:
            load_a(u + NAB)
        if u == 9:
            load_pq(0)
    stamp(g, 5)
    g.I("v_lshlrev_b32 v12, 2, v0")
    g.I("s_lshl_b32 s56, s53, 4")
    g.I("v_add_u32 v12, s56, v12")
    g.I("v_cmp_gt_u32 vcc, 4, v0")
    g.I(f"v_mov_b32 v13, {BIG}")
    g.I("v_cndmask_b32 v12, v13, v12, vcc")
    poll(g, "v12", FF_OFF, 4)
    vm.q = []
    g.I("s_lshl_b32 s61, s53, 3")
    g.I(f"s_mul_i32 s61, s61, {KVF_STRIDE}")
    for hh in range(8):
        for T in range(2):
            g.I(f"s_add_u32 s56, s61, {KVF_OFF + hh*KVF_STRIDE + T*768}")
            vm.issue(f"buffer_load_dwordx4 {vr(KV(hh,T))}, v{VK}, {R4(SRD_WS)}, s56 offen{SC}", ("kv", hh))
    if nr > 1:
        load_pq(1)
    for rt in range(nr):
        g.I(f"v_sub_f32 v12, 1.0, v{VG[rt]}")
        for ct in range(4):
            for i in range(4):
                g.I(f"v_mul_f32 v{A2(rt,ct)+i}, v12, v{A2(rt,ct)+i}")
    g.I("s_barrier")
    stamp(g, 6)
    g.I(f"s_mov_b32 s61, {EPS6}")
    wcount = [0]
    have_pq0 = set()
    def omfma(rt, hh):
        b = hh % 2
        vm.wait(("kv", hh))
        vm.wait(("pq", rt, hh))
        g.I(f"v_mfma_f32_16x16x32_bf16 {vr(DD(b,0))}, {vr(KV(hh,0))}, {vr(PQ(rt % 2, hh))}, 0")
        g.I(f"v_mfma_f32_16x16x32_bf16 {vr(DD(b,1))}, {vr(KV(hh,1))}, {vr(PQ(rt % 2, hh))}, 0")
    def norm(rt, hh):
        b = hh % 2
        d1, d2 = DD(b, 0), DD(b, 1)
        g.I(f"v_add_f32 v12, s61, v{d2+1}")
        g.I("v_rcp_f32 v12, v12")
        g.I(f"v_mul_f32 v12, v12, v{VG[rt]}")
        for j in range(5):
            v = 5 * hh + j
            src = d1 + j if j < 4 else d2
            g.I(f"v_mul_f32 v{VAL + (v % 16)}, v12, v{src}")
    def kstep(rt, n):
        base = VAL + (8 * n) % 16
        for j in range(4):
            g.I(f"v_cvt_pk_bf16_f32 v{PK+j}, v{base+2*j}, v{base+2*j+1}")
        def rd(ct):
            k = wcount[0] + ct
            for half in range(2):
                lk.issue(f"ds_read_b64_tr_b16 {vr(WF(k) + 2*half, 2)}, v{WA[2*n+half]} offset:{ct*32}", ("wf", k))
        rd(0); rd(1); rd(2)
        for ct in range(4):
            k = wcount[0] + ct
            lk.wait(("wf", k))
            a = A2(rt, ct)
            g.I(f"v_mfma_f32_16x16x32_bf16 {vr(a)}, {vr(WF(k))}, {vr(PK)}, {vr(a)}")
            if ct == 0:
                rd(3)
        wcount[0] += 4
    for rt in range(nr):
        omfma(rt, 0)
        next_n = 0
        for hh in range(8):
            if hh + 1 < 8:
                omfma(rt, hh + 1)
            norm(rt, hh)
            done_vals = 5 * (hh + 1)
            while next_n < 5 and 8 * (next_n + 1) <= done_vals:
                kstep(rt, next_n); next_n += 1
        if rt + 2 < nr:
            load_pq(rt + 2)
    stamp(g, 7)
    g.I("s_barrier")
    g.I("v_lshlrev_b32 v1, 4, v0")
    g.I("s_mul_i32 s56, s53, 24576")
    g.I("s_mul_i32 s61, s54, 12288")
    g.I("s_add_u32 s56, s56, s61")
    g.I("v_add_u32 v1, s56, v1")
    for rt in range(nr):
        for ct in range(4):
            g.I(f"ds_write_b128 v1, {vr(A2(rt,ct))} offset:{rt*4096 + ct*1024}")
    g.I("s_waitcnt lgkmcnt(0)")
    g.I("s_barrier")

def p2_final(g):
    g.I(f"s_lshl_b32 s56, {sWAVE}, 6")
    g.I("v_add_u32 v1, s56, v0")
    g.I("s_movk_i32 s57, 640")
    g.I("s_cmp_eq_u32 s51, 2")
    g.I("s_cselect_b32 s57, 768, s57")
    g.I("s_lshl_b32 s58, s52, 4")
    g.I("s_mul_i32 s58, s58, 1280")
    g.I("s_lshl_b32 s59, s50, 7")
    g.I("s_add_u32 s58, s58, s59")
    for rnd in range(2):
        g.I(f"v_add_u32 v2, {512*rnd}, v1")
        g.I("v_lshrrev_b32 v3, 3, v2")
        g.I("v_and_b32 v4, 7, v2")
        g.I("v_lshrrev_b32 v5, 4, v3")
        g.I("v_and_b32 v6, 15, v3")
        g.I("v_lshrrev_b32 v7, 1, v4")
        g.I("v_and_b32 v8, 1, v4")
        g.I("v_lshlrev_b32 v8, 5, v8")
        g.I("v_add_u32 v8, v8, v6")
        g.I("v_lshlrev_b32 v8, 4, v8")
        g.I("v_lshl_add_u32 v8, v7, 10, v8")
        g.I(f"v_lshl_add_u32 v{10+rnd}, v5, 12, v8")
        g.I("v_mul_u32_u24 v9, 1280, v3")
        g.I(f"v_lshl_add_u32 v{12+rnd}, v4, 4, v9")
        g.I("v_cmp_gt_u32 vcc, s57, v2")
        g.I(f"v_mov_b32 v9, {BIG}")
        g.I(f"v_cndmask_b32 v{12+rnd}, v9, v{12+rnd}, vcc")
        g.I(f"v_cndmask_b32 v{10+rnd}, 0, v{10+rnd}, vcc")
        g.I(f"v_add_u32 v{14+rnd}, 49152, v{10+rnd}")
    for rnd in range(2):
        b = 16 + 32 * rnd
        for kq in range(4):
            ar = (10 if kq < 2 else 14) + rnd
            g.I(f"ds_read_b128 {vr(b + 8*kq)}, v{ar} offset:{(kq % 2)*24576}")
            g.I(f"ds_read_b128 {vr(b + 8*kq + 4)}, v{ar} offset:{(kq % 2)*24576 + 256}")
    for rnd in range(2):
        b = 16 + 32 * rnd
        g.I(f"s_waitcnt lgkmcnt({8*(1-rnd)})")
        for j in range(8):
            g.I(f"v_add_f32 v{b+j}, v{b+j}, v{b+8+j}")
            g.I(f"v_add_f32 v{b+16+j}, v{b+16+j}, v{b+24+j}")
        for j in range(8):
            g.I(f"v_add_f32 v{b+j}, v{b+j}, v{b+16+j}")
        for j in range(4):
            g.I(f"v_cvt_pk_bf16_f32 v{b+8+j}, v{b+2*j}, v{b+2*j+1}")
        g.I(f"buffer_store_dwordx4 {vr(b+8)}, v{12+rnd}, {R4(SRD_OUT)}, s58 offen")

def kernel(g):
    end = "Lend"
    g.I("s_cmp_ge_u32 s2, 256")
    g.I(f"s_cbranch_scc1 {end}")
    g.I("s_load_dwordx16 s[64:79], s[0:1], 0")
    g.I("s_load_dwordx4 s[80:83], s[0:1], 64")
    if OPT["stamp"]:
        for k in range(8):
            g.I(f"s_mov_b32 s{84+2*k}, 0")
        g.I("s_memrealtime s[84:85]")
    g.I("v_lshrrev_b32 v1, 6, v0")
    g.I("v_and_b32 v0, 63, v0")
    g.I(f"v_readfirstlane_b32 {sWAVE}, v1")
    g.I(f"s_and_b32 {sXCD}, s2, 7")
    g.I(f"s_lshr_b32 {sI}, s2, 3")
    g.I(f"s_and_b32 {sRB}, {sXCD}, 1")
    g.I(f"s_lshl_b32 {sRB}, {sRB}, 3")
    g.I(f"s_lshr_b32 s50, {sI}, 2")
    g.I(f"s_add_u32 {sRB}, {sRB}, s50")
    g.I(f"s_lshr_b32 {sA}, {sXCD}, 1")
    g.I(f"s_lshl_b32 {sA}, {sA}, 1")
    g.I(f"s_and_b32 s50, {sI}, 1")
    g.I(f"s_add_u32 {sA}, {sA}, s50")
    g.I(f"s_mov_b32 {sNONCE}, 0")
    g.I(f"s_cmp_ge_u32 {sWAVE}, 4")
    g.I("s_cbranch_scc1 Lload")
    g.I(f"s_bitcmp1_b32 {sI}, 1")
    g.I("s_cbranch_scc1 LcB")
    p1_compute(g, "A")
    p1_epilogue_A(g)
    publish(g, "A")
    g.I("s_branch Lp2C")
    g.L("LcB")
    p1_compute(g, "B")
    p1_epilogue_B(g)
    publish(g, "B")
    g.L("Lp2C")
    g.I(f"s_cmp_ge_u32 {sI}, 30")
    g.I("s_cbranch_scc1 Lred")
    p2_decode(g)
    vm = VmTracker(g)
    p2_body(g, 3, False, vm)
    g.I("s_branch Lfin")
    g.L("Lload")
    g.I(f"s_bitcmp1_b32 {sI}, 1")
    g.I("s_cbranch_scc1 LldB")
    p1_loader(g, "A")
    g.I("s_branch Lldtail")
    g.L("LldB")
    p1_loader(g, "B")
    g.L("Lldtail")
    g.I(f"s_cmp_ge_u32 {sI}, 30")
    g.I("s_cbranch_scc1 Lldred")
    p2_decode(g)
    p2_dma_setup(g)
    vmL = VmTracker(g)
    vmL.q = [("c", 8)] * 11 + [("c", 9)] * 11
    vmL.wait(("c", 8))
    g.I("s_barrier")
    dma_w2(g, vmL, 0); dma_w2(g, vmL, 1)
    vmL.wait(("c", 9))
    stamp(g, 3)
    g.I("s_barrier")
    dma_w2(g, vmL, 2); dma_w2(g, vmL, 3)
    g.I("s_barrier")
    read_nonce(g)
    g.I("s_barrier")
    l2 = "Lp2L2"
    g.I("s_cmp_lt_u32 s51, 2")
    g.I(f"s_cbranch_scc1 {l2}")
    import copy
    vm3 = VmTracker(g); vm3.q = list(vmL.q)
    p2_body(g, 3, True, vm3)
    g.I("s_branch Lfin")
    g.L(l2)
    vm2 = VmTracker(g); vm2.q = list(vmL.q)
    p2_body(g, 2, True, vm2)
    g.L("Lfin")
    p2_final(g)
    g.I("s_branch Ldone")
    g.L("Lldred")
    g.I("s_waitcnt vmcnt(11)")
    g.I("s_barrier")
    g.I("s_waitcnt vmcnt(0)")
    g.I("s_barrier")
    g.I("s_barrier")
    read_nonce(g)
    g.I("s_barrier")
    g.L("Lred")
    reducer(g)
    g.L("Ldone")
    if OPT["stamp"]:
        g.I("s_waitcnt vmcnt(0)")
    stamp_flush(g)
    g.L(end)
    g.I("s_endpgm")
    g.L("Lcode_end")

def kd(name, vgpr, sgpr=102):
    return f""".p2align 6
.amdhsa_kernel {name}
  .amdhsa_next_free_vgpr {vgpr}
  .amdhsa_next_free_sgpr {sgpr}
  .amdhsa_accum_offset {vgpr}
  .amdhsa_group_segment_fixed_size 0
  .amdhsa_kernarg_size 80
  .amdhsa_user_sgpr_count 2
  .amdhsa_user_sgpr_kernarg_segment_ptr 1
  .amdhsa_system_sgpr_workgroup_id_x 1
.end_amdhsa_kernel
"""

HEADER = open("cdna_kernels/" + NAME + ".s.ref").read().split("; Override launch")[0]

def build():
    out = HEADER
    out += f"; @launch grid=(256,1,1) block=(512,1,1) lds={LDS_TOTAL}\n"
    out += '.amdgcn_target "amdgcn-amd-amdhsa--gfx950"\n.text\n'
    g = Gen()
    kernel(g)
    g.fix_hazards()
    for p in g.check_branches():
        print("BRANCH HAZARD:", p, file=sys.stderr)
    out += f".globl {KNAME}\n.p2align 8\n.type {KNAME},@function\n{KNAME}:\n" + g.text()
    out += '.section .rodata,"a"\n' + kd(KNAME, 256)
    return out

if __name__ == "__main__":
    args = sys.argv[1:]
    for a in list(args):
        if a.startswith("--"):
            k = a[2:]
            if k.startswith("no"):
                OPT[k[2:]] = False
            else:
                OPT[k] = True
            args.remove(a)
    path = args[0] if args else "v2.s"
    txt = build()
    open(path, "w").write(txt)
    print("wrote", path, len(txt), "bytes")
```

```python
import sys
from asmlib import Gen, LgkmTracker, VmTracker

NAME = "gated_mix__linear_attn_block__dense_activation_relu__prompt"
KNAME = NAME + "_kernel"
H_OFF = 0
PQ_OFF = 0x600000
G_OFF = 0x900000
KVP_OFF = 0x910000
KVP_STRIDE = 7168
KVF_OFF = 0xA00000
KVF_STRIDE = 1536
FL_OFF = 0xA10000
HF_OFF = FL_OFF
KF_OFF = FL_OFF + 0x2000
FF_OFF = FL_OFF + 0x4000
QF_OFF = FL_OFF + 0x6000
ST_OFF = 0xA80000
WS_USED = 0xB00000
STAGE = 45056
GW_LDS = 3 * STAGE
KS_LDS = GW_LDS + 1280
KS_W = 6720
NONCE_LDS = KS_LDS + 4 * KS_W + 16
LDS_TOTAL = 163840
W2R = [45056 + 16384*k for k in range(5)] + [0, 16384, 126976, 143360] + [45056, 61440, 77824]
WO_LDS = [0, 20480, 94208, 114688]
LOG2E = 0x3FB8AA3B
EPS6 = 0x358637BD
BIG = 0x40000000
SC = " sc1"
SPIN_MAX = 40000

OPT = dict(stamp=False, codepf=True, tlb=True, prof=False, rot=True, rot2=True, xdma=True, xlds=True, xmfma=True, warm2=False, mall=True, prof2=False)

SRD_X, SRD_QKV, SRD_W1, SRD_WS, SRD_GW, SRD_W2, SRD_WO, SRD_OUT = 8, 12, 16, 20, 24, 28, 32, 36
def R4(b): return f"s[{b}:{b+3}]"
sWAVE, sXCD, sI, sRB, sA, sNONCE = "s44", "s45", "s46", "s47", "s48", "s49"
def vr(b, n=4): return f"v[{b}:{b+n-1}]"

def stamp(g, k, force=False):
    if not OPT["stamp"]: return
    if OPT["prof2"] and not force: return
    if OPT["prof"] and k >= 4: return
    g.I(f"s_memrealtime s[{84+2*k}:{85+2*k}]")
    g.I("s_waitcnt lgkmcnt(0)")

def stamp_flush(g):
    if not OPT["stamp"]: return
    g.I("s_lshl_b32 s50, s2, 8")
    g.I(f"s_lshl_b32 s51, {sWAVE}, 5")
    g.I("s_add_u32 s50, s50, s51")
    g.I(f"s_add_u32 s50, s50, {ST_OFF}")
    g.I("v_mov_b32 v14, 0")
    for k in range(8):
        g.I(f"v_mov_b32 v15, s{84+2*k}")
        g.I(f"buffer_store_dword v15, v14, {R4(SRD_WS)}, s50 offen offset:{4*k}")

def srd(g, d, p, size):
    g.I(f"s_mov_b32 s{d}, s{p}")
    g.I(f"s_and_b32 s{d+1}, s{p+1}, 0xffff")
    g.I(f"s_mov_b32 s{d+2}, {size}")
    g.I(f"s_mov_b32 s{d+3}, 0x00020000")

def srds_p1(g):
    srd(g, SRD_X, 64, 2048 * 1280)
    srd(g, SRD_QKV, 66, 640 * 3840)
    srd(g, SRD_W1, 72, 640 * 3072)

def srds_rest(g):
    srd(g, SRD_WS, 82, WS_USED)
    srd(g, SRD_GW, 76, 1280)
    srd(g, SRD_W2, 74, 1536 * 1280)
    srd(g, SRD_WO, 68, 640 * 1280)
    srd(g, SRD_OUT, 78, 2048 * 1280)

def swap23(g, dst, src, t1, t2):
    g.I(f"v_and_b32 {t1}, 4, {src}")
    g.I(f"v_and_b32 {t2}, 8, {src}")
    g.I(f"v_and_b32 {dst}, 0x33, {src}")
    g.I(f"v_lshl_or_b32 {dst}, {t1}, 1, {dst}")
    g.I(f"v_lshrrev_b32 {t2}, 1, {t2}")
    g.I(f"v_or_b32 {dst}, {dst}, {t2}")

def rot_c0(g, dst):
    g.I(f"s_and_b32 {dst}, {sI}, 3")
    g.I(f"s_mul_i32 {dst}, {dst}, 3")
    g.I(f"s_lshr_b32 s4, {sI}, 2")
    g.I(f"s_add_u32 {dst}, {dst}, s4")
    g.I(f"s_cmp_ge_u32 {dst}, 10")
    g.I("s_cselect_b32 s4, 10, 0")
    g.I(f"s_sub_u32 {dst}, {dst}, s4")

def p1_loader(g, typ):
    g.C(f"==== P1 loader type {typ}")
    g.I(f"s_sub_u32 s52, {sWAVE}, 4")
    g.I("v_lshrrev_b32 v2, 3, v0")
    g.I("v_and_b32 v3, 7, v0")
    g.I("v_lshrrev_b32 v4, 4, v0")
    g.I(f"s_lshl_b32 s53, {sRB}, 2")
    g.I("s_add_u32 s53, s53, s52")
    g.I(f"s_mul_i32 s53, s53, {32*1280}")
    g.I("v_xor_b32 v5, v3, v4")
    g.I("v_lshlrev_b32 v5, 4, v5")
    g.I("v_mul_u32_u24 v6, 1280, v2")
    g.I("v_add_u32 v6, s53, v6")
    XO = [10, 11, 12, 13]
    g.I(f"v_add_u32 v{XO[0]}, v6, v5")
    g.I("v_xor_b32 v5, 64, v5")
    g.I(f"v_add_u32 v{XO[1]}, v6, v5")
    g.I(f"v_add_u32 v{XO[1]}, {8*1280}, v{XO[1]}")
    g.I(f"v_add_u32 v{XO[2]}, {16*1280}, v{XO[0]}")
    g.I(f"v_add_u32 v{XO[3]}, {16*1280}, v{XO[1]}")
    g.I("s_lshl_b32 s54, s52, 10")
    g.I("s_lshl_b32 s55, s52, 12")
    if OPT["rot"]:
        rot_c0(g, "s3")
        g.I("s_lshl_b32 s56, s3, 7")
        g.I(f"s_mul_i32 s57, s3, {64*3840}")
        g.I(f"s_mul_i32 s58, s3, {64*3072}")
    else:
        g.I("s_mov_b32 s56, 0")
        g.I("s_mov_b32 s57, 0")
        g.I("s_mov_b32 s58, 0")
    g.I("s_waitcnt lgkmcnt(0)")
    srd(g, SRD_X, 64, 2048 * 1280)
    def issue_x():
        for j in range(4):
            g.I(f"s_add_u32 m0, s55, {j*1024}")
            g.I(f"buffer_load_dwordx4 v{XO[j]}, {R4(SRD_X)}, s56 offen lds")
    issue_x()
    srd(g, SRD_QKV, 66, 640 * 3840)
    n10 = 5 if typ == "A" else 3
    QO = [14, 15, 16, 17, 18][:n10]
    g.I(f"s_mul_i32 s59, {sA}, 160")
    if typ == "A":
        g.I("s_add_u32 s59, s59, 1280")
    g.I("s_mov_b32 s60, 6554")
    g.I("s_mov_b32 s61, 3840")
    R10 = 16384
    RH = 36864 if typ == "A" else 28672
    for n in range(n10):
        g.I(f"s_add_u32 s62, s52, {4*n}")
        if typ == "A":
            g.I("s_cmp_ge_u32 s62, 10")
            g.I("s_cselect_b32 s63, 10, 0")
            g.I("s_cselect_b32 s50, 1280, 0")
            g.I("s_sub_u32 s62, s62, s63")
        g.I("s_lshl_b32 s62, s62, 6")
        g.I("v_add_u32 v5, s62, v0")
        g.I("v_mul_lo_u32 v6, v5, s60")
        g.I("v_lshrrev_b32 v6, 16, v6")
        g.I("v_mul_u32_u24 v7, 10, v6")
        g.I("v_sub_u32 v7, v5, v7")
        swap23(g, "v8", "v6", "v9", "v19")
        g.I("v_mul_lo_u32 v8, v8, s61")
        g.I("v_lshl_add_u32 v8, v7, 4, v8")
        if typ == "A":
            g.I("s_add_u32 s50, s50, s59")
            g.I(f"v_add_u32 v{QO[n]}, s50, v8")
        else:
            g.I(f"v_add_u32 v{QO[n]}, s59, v8")
            if n == 2:
                g.I("s_cmp_ge_u32 s52, 2")
                g.I(f"s_cselect_b32 s50, {BIG}, 0")
                g.I(f"v_add_u32 v{QO[n]}, s50, v{QO[n]}")
        g.I(f"s_add_u32 m0, s54, {R10 + 4096*n}")
        g.I(f"buffer_load_dwordx4 v{QO[n]}, {R4(SRD_QKV)}, s57 offen lds")
    srd(g, SRD_W1, 72, 640 * 3072)
    nH = 2 if typ == "A" else 4
    HO = [20, 21, 22, 23][:nH]
    g.I("v_lshlrev_b32 v5, 1, v4")
    g.I("v_xor_b32 v5, v3, v5")
    g.I("v_lshlrev_b32 v5, 4, v5")
    if typ == "A":
        g.I(f"s_lshl_b32 s59, {sA}, 7")
    else:
        g.I(f"s_lshl_b32 s59, {sA}, 8")
        g.I("s_add_u32 s59, s59, 1024")
    g.I("s_mov_b32 s61, 3072")
    for n in range(2):
        g.I(f"s_add_u32 s62, s52, {4*n}")
        g.I("s_lshl_b32 s62, s62, 3")
        g.I("v_add_u32 v6, s62, v2")
        swap23(g, "v8", "v6", "v9", "v19")
        g.I("v_mul_lo_u32 v8, v8, s61")
        g.I("v_add_u32 v8, v8, v5")
        g.I(f"v_add_u32 v{HO[n]}, s59, v8")
        if nH == 4:
            g.I(f"v_add_u32 v{HO[n+2]}, 128, v{HO[n]}")
    def issue_h():
        for n in range(nH):
            g.I(f"s_add_u32 m0, s54, {RH + 8192*(n//2) + 4096*(n % 2)}")
            g.I(f"buffer_load_dwordx4 v{HO[n]}, {R4(SRD_W1)}, s58 offen lds")
    def issue_q():
        for n in range(n10):
            g.I(f"s_add_u32 m0, s54, {R10 + 4096*n}")
            g.I(f"buffer_load_dwordx4 v{QO[n]}, {R4(SRD_QKV)}, s57 offen lds")
    issue_h()
    srds_rest(g)
    def advance():
        g.I("s_add_u32 s56, s56, 128")
        g.I(f"s_add_u32 s57, s57, {64*3840}")
        g.I(f"s_add_u32 s58, s58, {64*3072}")
        if OPT["rot"]:
            g.I("s_cmp_ge_u32 s56, 1280")
            g.I("s_cselect_b32 s56, 0, s56")
            g.I("s_cselect_b32 s57, 0, s57")
            g.I("s_cselect_b32 s58, 0, s58")
        g.I(f"s_add_u32 s54, s54, {STAGE}")
        g.I(f"s_add_u32 s55, s55, {STAGE}")
        g.I(f"s_cmp_ge_u32 s54, {3*STAGE}")
        g.I(f"s_cselect_b32 s62, {3*STAGE}, 0")
        g.I("s_sub_u32 s54, s54, s62")
        g.I("s_sub_u32 s55, s55, s62")
    def issue():
        advance()
        if OPT["xdma"]:
            issue_x(); issue_q(); issue_h()
    extra0 = 0
    if typ == "B":
        lab = g.newlabel("Lgw")
        g.I("s_cmp_lg_u32 s52, 0")
        g.I(f"s_cbranch_scc1 {lab}")
        g.I("v_lshlrev_b32 v5, 4, v0")
        g.I(f"s_mov_b32 m0, {GW_LDS}")
        g.I("v_add_u32 v6, 1024, v5")
        g.I(f"buffer_load_dwordx4 v5, {R4(SRD_GW)}, 0 offen lds")
        g.I(f"s_mov_b32 m0, {GW_LDS + 1024}")
        g.I("s_nop 0")
        g.I(f"buffer_load_dwordx4 v6, {R4(SRD_GW)}, 0 offen lds")
        g.L(lab)
    issue()
    stamp(g, 1)
    g.I("s_waitcnt vmcnt(11)")
    stamp(g, 2)
    g.I("s_barrier")
    issue()
    warmups(g, typ)
    g.I("s_waitcnt vmcnt(13)")
    g.I("s_barrier")
    issue()
    g.I("s_waitcnt vmcnt(13)")
    g.I("s_barrier")
    issue()
    g.I("s_mov_b32 s63, 3")
    loop = g.newlabel("Lld")
    g.L(loop)
    if OPT["prof"]:
        g.I("s_memtime s[4:5]")
        g.I("s_waitcnt lgkmcnt(0)")
    g.I("s_waitcnt vmcnt(11)")
    if OPT["prof"]:
        g.I("s_memtime s[6:7]")
        g.I("s_waitcnt lgkmcnt(0)")
        g.I("s_sub_u32 s4, s6, s4")
        g.I("s_add_u32 s94, s94, s4")
    g.I("s_barrier")
    if OPT["prof"]:
        g.I("s_memtime s[4:5]")
        g.I("s_waitcnt lgkmcnt(0)")
        g.I("s_sub_u32 s6, s4, s6")
        g.I("s_add_u32 s96, s96, s6")
    issue()
    if OPT["prof"]:
        g.I("s_memtime s[6:7]")
        g.I("s_waitcnt lgkmcnt(0)")
        g.I("s_sub_u32 s6, s6, s4")
        g.I("s_add_u32 s98, s98, s6")
    g.I("s_add_u32 s63, s63, 1")
    g.I("s_cmp_le_u32 s63, 7")
    g.I(f"s_cbranch_scc1 {loop}")

def p2_decode(g):
    g.I(f"s_mul_i32 s50, {sI}, 86")
    g.I("s_lshr_b32 s50, s50, 8")
    g.I("s_mul_i32 s51, s50, 3")
    g.I(f"s_sub_u32 s51, {sI}, s51")
    g.I("s_mul_i32 s52, s51, 5")
    g.I(f"s_lshl_b32 s56, {sXCD}, 4")
    g.I("s_add_u32 s52, s52, s56")
    g.I(f"s_and_b32 s53, {sWAVE}, 3")
    g.I(f"s_lshr_b32 s54, {sWAVE}, 2")
    g.I("s_mul_i32 s55, s54, 3")
    g.I("s_add_u32 s55, s55, s52")

VD2 = 78
def p2_dma_setup(g):
    g.I("v_lshrrev_b32 v5, 3, v0")
    g.I("v_and_b32 v6, 7, v0")
    g.I("v_lshrrev_b32 v2, 4, v0")
    g.I("v_lshlrev_b32 v7, 1, v2")
    g.I("v_xor_b32 v7, v6, v7")
    g.I("v_mul_u32_u24 v8, 1280, v5")
    g.I("s_lshl_b32 s56, s50, 7")
    g.I("v_add_u32 v8, s56, v8")
    g.I(f"v_lshl_add_u32 v{VD2}, v7, 4, v8")
    g.I(f"s_mul_i32 s57, s53, {12*32*1280}")
    g.I(f"s_add_u32 s63, s57, {12*32*1280}")
    if OPT["rot2"]:
        g.I(f"s_mul_i32 s56, s50, {32*1280}")
        g.I("s_add_u32 s57, s57, s56")
    g.I("s_lshl_b32 s58, s53, 12")
    g.I(f"s_mul_i32 s59, s53, {160*1280}")
    g.I("s_mul_i32 s60, s53, 20480")
    g.I("s_cmp_ge_u32 s53, 2")
    g.I(f"s_cselect_b32 s56, {94208 - 2*20480}, 0")
    g.I("s_add_u32 s60, s60, s56")

def dma_w2(g, vm, sidx):
    for j in range(4):
        g.I(f"s_add_u32 m0, s58, {W2R[sidx] + j*1024}")
        g.I(f"s_add_u32 s56, s57, {j * 8 * 1280}")
        vm.issue(f"buffer_load_dwordx4 v{VD2}, {R4(SRD_W2)}, s56 offen lds", ("d", sidx))
    g.I(f"s_add_u32 s57, s57, {32*1280}")
    g.I("s_cmp_ge_u32 s57, s63")
    g.I(f"s_cselect_b32 s56, {12*32*1280}, 0")
    g.I("s_sub_u32 s57, s57, s56")

def warm_late(g, vm, skip):
    g.I("v_mul_u32_u24 v9, 1280, v0")
    g.I("s_lshl_b32 s56, s50, 7")
    g.I("v_add_u32 v9, s56, v9")
    g.I("v_cmp_gt_u32 vcc, 32, v0")
    g.I(f"v_mov_b32 v10, {BIG}")
    g.I("v_cndmask_b32 v10, v10, v9, vcc")
    g.I(f"s_add_u32 s6, s57, {skip*32*1280}")
    g.I("s_cmp_ge_u32 s6, s63")
    g.I(f"s_cselect_b32 s56, {12*32*1280}, 0")
    g.I("s_sub_u32 s6, s6, s56")
    for k in range(3):
        vm.issue(f"buffer_load_dword v11, v10, {R4(SRD_W2)}, s6 offen", ("warm", 0))
        g.I(f"s_add_u32 s6, s6, {32*1280}")
        g.I("s_cmp_ge_u32 s6, s63")
        g.I(f"s_cselect_b32 s56, {12*32*1280}, 0")
        g.I("s_sub_u32 s6, s6, s56")
    for k in range(3):
        g.I(f"s_add_u32 s56, s59, {k*64*1280}")
        vm.issue(f"buffer_load_dword v11, v9, {R4(SRD_WO)}, s56 offen", ("warm", 0))

def dma_wo(g, vm, j0, j1):
    for j in range(j0, j1):
        g.I(f"s_add_u32 m0, s60, {j*1024}")
        g.I(f"s_add_u32 s56, s59, {j*8*1280}")
        vm.issue(f"buffer_load_dwordx4 v{VD2}, {R4(SRD_WO)}, s56 offen lds", ("wo", 0))

def poll(g, vaddr, soff_imm, nlanes, tmp="v14"):
    loop = g.newlabel("Lpoll"); done = g.newlabel("Lpd")
    g.I("s_mov_b32 s4, 0")
    g.I(f"s_mov_b32 s5, {soff_imm}")
    mask = (1 << nlanes) - 1
    g.I(f"s_mov_b32 s7, {mask:#x}")
    g.L(loop)
    g.I(f"buffer_load_dword {tmp}, {vaddr}, {R4(SRD_WS)}, s5 offen{SC}")
    g.I("s_waitcnt vmcnt(0)")
    g.I(f"v_cmp_eq_u32 vcc, {sNONCE}, {tmp}")
    g.I("s_and_b32 s6, vcc_lo, s7")
    g.I("s_cmp_eq_u32 s6, s7")
    g.I(f"s_cbranch_scc1 {done}")
    g.I("s_add_u32 s4, s4, 1")
    g.I(f"s_cmp_lt_u32 s4, {SPIN_MAX}")
    g.I("s_sleep 1")
    g.I(f"s_cbranch_scc1 {loop}")
    g.L(done)

ACC = 128
def acc(t, rt): return ACC + (2 * t + rt) * 4
KVA = 68

def warmups(g, typ):
    l1, l2, l3, le = [g.newlabel("Lwu") for _ in range(4)]
    g.I(f"v_mov_b32 v25, {BIG}")
    g.I("s_cmp_eq_u32 s52, 1"); g.I(f"s_cbranch_scc1 {l1}")
    g.I("s_cmp_eq_u32 s52, 2"); g.I(f"s_cbranch_scc1 {l2}")
    g.I("s_cmp_eq_u32 s52, 3"); g.I(f"s_cbranch_scc1 {l3}")
    g.I("s_getpc_b64 s[4:5]")
    g.L("Lpc_" + typ)
    g.I(f"s_sub_u32 s4, s4, Lpc_{typ}-{KNAME}")
    g.I("s_subb_u32 s5, s5, 0")
    g.I("v_and_b32 v26, 15, v0")
    g.I(f"s_lshl_b32 s6, {sI}, 4")
    g.I("v_add_u32 v26, s6, v26")
    g.I("v_lshlrev_b32 v26, 7, v26")
    g.I(f"v_min_u32 v26, Lcode_end-{KNAME}-4, v26")
    if OPT["codepf"]:
        g.I(f"global_load_dword v24, v26, s[4:5]")
    else:
        g.I(f"buffer_load_dword v24, v25, {R4(SRD_WS)}, 0 offen")
    g.I(f"buffer_load_dword v24, v25, {R4(SRD_WS)}, 0 offen")
    g.I(f"s_branch {le}")
    g.L(l1)
    g.I("v_lshlrev_b32 v26, 7, v0")
    g.I("v_cmp_gt_u32 vcc, 60, v0")
    g.I("v_cndmask_b32 v27, v25, v26, vcc")
    if not OPT["mall"]:
        g.I("v_mov_b32 v27, v25")
    g.I(f"s_mul_i32 s6, s2, {60*128}")
    g.I(f"buffer_load_dword v24, v27, {R4(SRD_W2)}, s6 offen")
    g.I("v_cmp_gt_u32 vcc, 25, v0")
    g.I("v_cndmask_b32 v27, v25, v26, vcc")
    if not OPT["mall"]:
        g.I("v_mov_b32 v27, v25")
    g.I(f"s_mul_i32 s6, s2, {25*128}")
    g.I(f"buffer_load_dword v24, v27, {R4(SRD_WO)}, s6 offen")
    g.I(f"s_branch {le}")
    g.L(l2)
    g.I("v_lshlrev_b32 v26, 21, v0")
    g.I(f"v_min_u32 v26, {BIG}, v26")
    if not OPT["tlb"]:
        g.I("v_mov_b32 v26, v25")
    g.I(f"buffer_load_dword v24, v26, {R4(SRD_WS)}, 0 offen")
    g.I(f"buffer_load_dword v24, v26, {R4(SRD_OUT)}, 0 offen")
    g.I(f"s_branch {le}")
    g.L(l3)
    g.I(f"buffer_load_dword v24, v25, {R4(SRD_WS)}, 0 offen")
    g.I(f"buffer_load_dword v24, v25, {R4(SRD_WS)}, 0 offen")
    g.L(le)

def p1_compute(g, typ):
    g.C(f"==== P1 compute type {typ}")
    g.I("s_waitcnt lgkmcnt(0)")
    srds_p1(g)
    srds_rest(g)
    lab = g.newlabel("Lnn")
    g.I(f"s_or_b32 s50, s2, {sWAVE}")
    g.I("s_cmp_lg_u32 s50, 0")
    g.I(f"s_cbranch_scc1 {lab}")
    g.I("s_memrealtime s[50:51]")
    g.I("s_waitcnt lgkmcnt(0)")
    g.I("s_or_b32 s50, s50, 1")
    g.I("v_mov_b32 v5, s50")
    g.I("v_mov_b32 v6, 0")
    g.I(f"global_store_dword v6, v5, s[80:81]{SC}")
    g.L(lab)
    g.I("v_mov_b32 v66, 0")
    g.I("v_mov_b32 v65, 0")
    g.I("v_and_b32 v1, 15, v0")
    g.I("v_lshrrev_b32 v2, 4, v0")
    g.I("v_bfe_u32 v3, v0, 2, 2")
    g.I("v_and_b32 v4, 3, v0")
    g.I("v_lshrrev_b32 v5, 1, v1")
    g.I("v_xor_b32 v5, v2, v5")
    g.I("v_lshlrev_b32 v5, 4, v5")
    g.I("v_lshl_add_u32 v5, v1, 7, v5")
    g.I(f"s_lshl_b32 s50, {sWAVE}, 12")
    g.I("v_add_u32 v48, s50, v5")
    g.I("v_xor_b32 v49, 64, v48")
    g.I("v_lshrrev_b32 v5, 1, v2")
    g.I("v_lshlrev_b32 v5, 4, v5")
    g.I("v_and_b32 v6, 1, v2")
    g.I("v_lshl_add_u32 v5, v6, 2, v5")
    g.I("v_add_u32 v5, v5, v3")
    g.I("v_mul_u32_u24 v50, 160, v5")
    g.I("v_lshl_add_u32 v50, v4, 3, v50")
    g.I("v_lshrrev_b32 v7, 1, v3")
    g.I("v_lshlrev_b32 v7, 1, v7")
    g.I("v_lshl_add_u32 v7, v6, 2, v7")
    g.I("v_lshrrev_b32 v8, 1, v4")
    g.I("v_and_b32 v9, 1, v4")
    g.I("v_lshlrev_b32 v9, 3, v9")
    g.I("v_lshl_add_u32 v9, v5, 7, v9")
    for t in range(4):
        g.I(f"v_add_u32 v10, {2*t}, v8")
        g.I("v_xor_b32 v10, v10, v7")
        g.I(f"v_lshl_add_u32 v{51+t}, v10, 4, v9")
    for k in range(7):
        g.I(f"v_mov_b32 v{56+k}, v{48+k}")
    if typ == "A":
        tiles = [("kv", t, "N") for t in range(5)] + [("kv", 5 + t, "N") for t in range(5)] + [("h", t, "T") for t in range(4)]
    else:
        tiles = [("kv", t, "T") for t in range(5)] + [("h", t, "T") for t in range(8)] + [("g", 0, "T")]
        g.I("v_lshlrev_b32 v63, 4, v2")
        g.I(f"v_add_u32 v63, {GW_LDS}, v63")
        if OPT["rot"]:
            rot_c0(g, "s3")
            g.I("s_lshl_b32 s5, s3, 7")
            g.I("v_add_u32 v63, s5, v63")
            g.I("s_mov_b32 s55, s3")
    g.I(f"s_mov_b32 s50, {EPS6}")
    for t in range(14):
        for rt in range(2):
            for i in range(4):
                g.I(f"v_mov_b32 v{acc(t,rt)+i}, " + ("s50" if t < 5 else "0"))
    if typ == "A":
        g.I(f"s_mul_i32 s50, {sWAVE}, {KS_W}")
        g.I(f"s_add_u32 s50, s50, {KS_LDS}")
        g.I(f"v_mov_b32 v15, {KS_LDS + 4*KS_W}")
        for t in range(5):
            g.I(f"v_lshl_add_u32 v5, v2, 2, {16*t}")
            g.I("v_mul_u32_u24 v6, 205, v5")
            g.I(f"v_lshrrev_b32 v{16+t}, 12, v6")
            g.I(f"v_mul_u32_u24 v6, 20, v{16+t}")
            g.I("v_sub_u32 v6, v5, v6")
            g.I(f"v_mul_u32_u24 v7, {105*16}, v{16+t}")
            g.I("v_lshl_add_u32 v7, v6, 2, v7")
            g.I(f"v_add_u32 v{21+t}, s50, v7")
            g.I(f"v_add_u32 v5, {16*t}, v1")
            g.I("v_mul_u32_u24 v6, 205, v5")
            g.I(f"v_lshrrev_b32 v{26+t}, 12, v6")
            g.I(f"v_mul_u32_u24 v6, 20, v{26+t}")
            g.I("v_sub_u32 v6, v5, v6")
            g.I(f"v_mul_u32_u24 v{31+t}, 80, v6")
        for t in range(5):
            for tp in range(5):
                if abs(t - tp) <= 1:
                    idx = 2 * t + tp
                    g.I(f"v_add_u32 v5, v{21+t}, v{31+tp}")
                    g.I(f"v_cmp_eq_u32 vcc, v{16+t}, v{26+tp}")
                    g.I(f"v_cndmask_b32 v{KVA+idx}, v15, v5, vcc")
        g.I("v_cmp_eq_u32 vcc, 0, v1")
        for t in range(5):
            g.I(f"v_add_u32 v5, {20*80}, v{21+t}")
            g.I(f"v_cndmask_b32 v{KVA+13+t}, v15, v5, vcc")
    XF = lambda ks, rt: 16 + (2 * ks + rt) * 4
    WF = lambda n: 86 + (n % 7) * 4
    R10 = 16384
    RH = 36864 if typ == "A" else 28672
    lk = LgkmTracker(g)
    NS = 2 * len(tiles)
    steps = [(ks, ti) for ks in range(2) for ti in range(len(tiles))]
    def rd_x(ks):
        if not OPT["xlds"]: return
        for rt in range(2):
            lk.issue(f"ds_read_b128 {vr(XF(ks,rt))}, v{56+ks} offset:{rt*2048}", ("x", ks))
    def rd_w(n, half):
        if not OPT["xlds"]: return
        ks, ti = steps[n % NS]
        kind, t, _ = tiles[ti]
        w = WF(n)
        tag = ("w", n % NS)
        if kind == "kv":
            off = R10 + ks * 5120 + half * 1280 + 32 * (t % 5) + (10240 if t >= 5 else 0)
            lk.issue(f"ds_read_b64_tr_b16 {vr(w + 2*half, 2)}, v58 offset:{off}", tag)
        elif kind == "h":
            off = RH + (t // 4) * 8192 + ks * 4096 + half * 1024
            lk.issue(f"ds_read_b64_tr_b16 {vr(w + 2*half, 2)}, v{59 + (t % 4)} offset:{off}", tag)
        else:
            if half == 0:
                lk.issue(f"ds_read_b128 {vr(w)}, v63 offset:{ks*64}", tag)
    D = 6
    assert NS % 7 == 0
    g.I("s_mov_b32 s50, 0")
    g.I("s_mov_b32 s51, 0")
    stamp(g, 1)
    g.I("s_barrier")
    rd_x(0)
    for n in range(D):
        rd_w(n, 0); rd_w(n, 1)
    loop = g.newlabel("Lp1"); last = g.newlabel("Lp1last")
    def mf(n, rt):
        ks, ti = steps[n]
        kind, t, ori = tiles[ti]
        a = acc(ti, rt)
        if not OPT["xmfma"]:
            return
        if ori == "N":
            g.I(f"v_mfma_f32_16x16x32_bf16 {vr(a)}, {vr(XF(ks,rt))}, {vr(WF(n))}, {vr(a)}")
        else:
            g.I(f"v_mfma_f32_16x16x32_bf16 {vr(a)}, {vr(WF(n))}, {vr(XF(ks,rt))}, {vr(a)}")
    g.L(loop)
    q_at_loop = list(lk.q)
    NB = NS - D
    BAR = NB + 2
    bwork = []
    bwork.append([f"s_add_u32 s51, s51, {STAGE}", f"s_cmp_ge_u32 s51, {3*STAGE}", f"s_cselect_b32 s52, {3*STAGE}, 0", "s_sub_u32 s51, s51, s52"])
    for k in range(7):
        bwork.append([f"v_add_u32 v{56+k}, s51, v{48+k}"])
    if typ == "B":
        bwork.append(["v_add_u32 v63, 128, v63"])
        if OPT["rot"]:
            bwork.append(["s_add_u32 s55, s55, 1", "s_cmp_eq_u32 s55, 10", "s_cselect_b32 s52, 1280, 0", "s_cselect_b32 s55, 0, s55", "v_subrev_u32 v63, s52, v63"])
    pend = []
    for n in range(NS):
        ks, ti = steps[n]
        if n == NB:
            g.I("s_add_u32 s50, s50, 1")
            g.I("s_cmp_eq_u32 s50, 10")
            g.I(f"s_cbranch_scc1 {last}")
        if n == BAR:
            in_loop_extras(g)
            lk.drain()
            if OPT["prof"]:
                g.I("s_memtime s[4:5]")
                g.I("s_waitcnt lgkmcnt(0)")
            g.I("s_barrier")
            if OPT["prof"]:
                g.I("s_memtime s[6:7]")
                g.I("s_waitcnt lgkmcnt(0)")
                g.I("s_sub_u32 s6, s6, s4")
                g.I("s_add_u32 s94, s94, s6")
            rd_x(0)
            pend = [(m, h) for m in range(NS, NS + D) for h in range(2)]
        if ti == 0:
            lk.wait(("x", ks))
        if n < BAR:
            lk.wait(("w", n))
        for rt in range(2):
            mf(n, rt)
            if n < NB:
                rd_w(n + D, rt)
            elif n < BAR:
                for _ in range(3):
                    if bwork:
                        for x in bwork.pop(0):
                            g.I(x)
            else:
                cnt = 2 if (n - BAR) < 2 else 1
                for _ in range(cnt):
                    if pend:
                        m, h = pend[0]
                        if (m - 7) < n or ((m - 7) == n and rt == 1 and False):
                            pend.pop(0); rd_w(m, h)
        if n == 6:
            rd_x(1)
    assert not bwork
    for m, h in pend:
        rd_w(m, h)
    assert lk.q == q_at_loop, (lk.q, q_at_loop)
    g.I(f"s_branch {loop}")
    g.L(last)
    g.I("s_waitcnt lgkmcnt(0)")
    for n in range(NB, NS):
        for rt in range(2):
            mf(n, rt)
    stamp(g, 2)

def in_loop_extras(g):
    l1 = g.newlabel("Lx")
    g.I(f"s_lshl_b32 s53, {sWAVE}, 4")
    g.I("s_add_u32 s53, s53, s50")
    g.I("s_cmp_lg_u32 s53, 6")
    g.I(f"s_cbranch_scc1 {l1}")
    g.I("v_mov_b32 v66, 0")
    g.I(f"global_load_dword v65, v66, s[80:81]{SC}")
    g.L(l1)

def phi(g, reg, tmp):
    g.I(f"v_mul_f32 {tmp}, s51, {reg}")
    g.I(f"v_exp_f32_e64 {tmp}, {tmp} clamp")
    g.I(f"v_max_f32 {reg}, s50, {reg}")
    g.I(f"v_add_f32 {reg}, {reg}, {tmp}")

def store_h(g, tiles_idx, kb0_s):
    g.I(f"s_lshl_b32 s53, {sRB}, 3")
    g.I(f"s_lshl_b32 s54, {sWAVE}, 1")
    g.I("s_add_u32 s53, s53, s54")
    g.I("s_mul_i32 s53, s53, 48")
    g.I(f"s_add_u32 s53, s53, {kb0_s}")
    g.I("s_lshl_b32 s53, s53, 10")
    g.I("v_lshlrev_b32 v1, 4, v0")
    for kbl in range(len(tiles_idx) // 2):
        for rt in range(2):
            a0 = acc(tiles_idx[2*kbl], rt); a1 = acc(tiles_idx[2*kbl+1], rt)
            d = 16 + ((kbl * 2 + rt) % 4) * 4
            g.I(f"v_cvt_pk_bf16_f32 v{d}, v{a0}, v{a0+1}")
            g.I(f"v_cvt_pk_bf16_f32 v{d+1}, v{a0+2}, v{a0+3}")
            g.I(f"v_cvt_pk_bf16_f32 v{d+2}, v{a1}, v{a1+1}")
            g.I(f"v_cvt_pk_bf16_f32 v{d+3}, v{a1+2}, v{a1+3}")
            for j in range(4):
                g.I(f"v_pk_max_i16 v{d+j}, v{d+j}, 0")
            g.I(f"s_add_u32 s54, s53, {H_OFF + rt*48*1024 + kbl*1024}")
            g.I(f"buffer_store_dwordx4 {vr(d)}, v1, {R4(SRD_WS)}, s54 offen{SC}")

def nonce_to_lds(g):
    lab = g.newlabel("Lnz"); loop = g.newlabel("Lnzl"); ok = g.newlabel("Lnzok")
    g.I(f"s_cmp_lg_u32 {sWAVE}, 0")
    g.I(f"s_cbranch_scc1 {lab}")
    g.I("s_mov_b32 s52, 0")
    g.I("s_waitcnt vmcnt(0)")
    g.L(loop)
    g.I(f"v_readfirstlane_b32 {sNONCE}, v65")
    g.I(f"s_cmp_lg_u32 {sNONCE}, 0")
    g.I(f"s_cbranch_scc1 {ok}")
    g.I(f"global_load_dword v65, v66, s[80:81]{SC}")
    g.I("s_add_u32 s52, s52, 1")
    g.I(f"s_cmp_lt_u32 s52, {SPIN_MAX}")
    g.I("s_waitcnt vmcnt(0)")
    g.I(f"s_cbranch_scc1 {loop}")
    g.L(ok)
    g.I(f"v_mov_b32 v66, {NONCE_LDS}")
    g.I("ds_write_b32 v66, v65")
    g.L(lab)

def p1_epilogue_A(g):
    g.C("==== P1 epilogue A")
    g.I(f"s_mov_b32 s50, {EPS6}")
    g.I(f"s_mov_b32 s51, {LOG2E}")
    g.I(f"s_lshl_b32 s52, {sA}, 1")
    store_h(g, [10, 11, 12, 13], "s52")
    KF = lambda t: 86 + 4 * t
    VF = lambda t: 106 + 4 * t
    for t in range(5):
        for rt in range(2):
            for i in range(4):
                phi(g, f"v{acc(t,rt)+i}", f"v{2 + i}")
        for rt in range(2):
            a = acc(t, rt)
            g.I(f"v_cvt_pk_bf16_f32 v{KF(t)+2*rt}, v{a}, v{a+1}")
            g.I(f"v_cvt_pk_bf16_f32 v{KF(t)+2*rt+1}, v{a+2}, v{a+3}")
    nonce_to_lds(g)
    g.I("s_waitcnt vmcnt(0) lgkmcnt(0)")
    g.I("s_barrier")
    publish_flag(g, "H")
    for t in range(5):
        for rt in range(2):
            a = acc(5 + t, rt)
            g.I(f"v_cvt_pk_bf16_f32 v{VF(t)+2*rt}, v{a}, v{a+1}")
            g.I(f"v_cvt_pk_bf16_f32 v{VF(t)+2*rt+1}, v{a+2}, v{a+3}")
    for j in range(4):
        g.I(f"v_mov_b32 v{32+j}, 0x3f803f80")
    P = lambda idx: ACC + 4 * idx
    for t in range(5):
        for tp in range(5):
            if abs(t - tp) <= 1:
                g.I(f"v_mfma_f32_16x16x32_bf16 {vr(P(2*t+tp))}, {vr(KF(t))}, {vr(VF(tp))}, 0")
    for t in range(5):
        g.I(f"v_mfma_f32_16x16x32_bf16 {vr(P(13+t))}, {vr(KF(t))}, v[32:35], 0")
    for idx in range(18):
        g.I(f"ds_write_b128 v{KVA+idx}, {vr(P(idx))}")
    g.I("s_waitcnt lgkmcnt(0)")
    g.I("s_barrier")
    g.I(f"s_lshl_b32 s52, {sWAVE}, 6")
    g.I("v_add_u32 v5, s52, v0")
    g.I("v_lshlrev_b32 v5, 4, v5")
    g.I(f"v_add_u32 v6, {KS_LDS}, v5")
    g.I(f"v_add_u32 v7, 4096, v5")
    g.I(f"v_cmp_gt_u32 vcc, {420*16}, v7")
    g.I(f"v_mov_b32 v8, {BIG}")
    g.I("v_cndmask_b32 v7, v8, v7, vcc")
    g.I(f"v_add_u32 v9, 4096, v6")
    g.I("v_cndmask_b32 v9, v6, v9, vcc")
    for rnd in range(2):
        for w in range(4):
            g.I(f"ds_read_b128 {vr(16 + 16*rnd + 4*w)}, v{6 if rnd == 0 else 9} offset:{w*KS_W}")
    g.I(f"s_lshl_b32 s52, {sA}, 4")
    g.I(f"s_add_u32 s52, s52, {sRB}")
    g.I(f"s_mul_i32 s52, s52, {KVP_STRIDE}")
    g.I(f"s_add_u32 s52, s52, {KVP_OFF}")
    g.I("s_waitcnt lgkmcnt(0)")
    for rnd in range(2):
        b = 16 + 16 * rnd
        for j in range(4):
            g.I(f"v_add_f32 v{b+j}, v{b+j}, v{b+4+j}")
            g.I(f"v_add_f32 v{b+8+j}, v{b+8+j}, v{b+12+j}")
        for j in range(4):
            g.I(f"v_add_f32 v{b+j}, v{b+j}, v{b+8+j}")
        g.I(f"buffer_store_dwordx4 {vr(b)}, v{5 if rnd == 0 else 7}, {R4(SRD_WS)}, s52 offen{SC}")
    stamp(g, 3)

def p1_epilogue_B(g):
    g.C("==== P1 epilogue B")
    g.I(f"s_mov_b32 s50, {EPS6}")
    g.I(f"s_mov_b32 s51, {LOG2E}")
    g.I(f"s_lshl_b32 s52, {sA}, 2")
    g.I("s_add_u32 s52, s52, 16")
    store_h(g, list(range(5, 13)), "s52")
    QD = lambda t, rt: 86 + (2 * t + rt) * 2
    for t in range(5):
        for rt in range(2):
            a = acc(t, rt)
            for i in range(4):
                phi(g, f"v{a+i}", f"v{2 + i}")
            d = QD(t, rt)
            g.I(f"v_cvt_pk_bf16_f32 v{d}, v{a}, v{a+1}")
            g.I(f"v_cvt_pk_bf16_f32 v{d+1}, v{a+2}, v{a+3}")
    nonce_to_lds(g)
    g.I("s_waitcnt vmcnt(0) lgkmcnt(0)")
    g.I("s_barrier")
    publish_flag(g, "H")
    g.I("v_and_b32 v1, 15, v0")
    g.I("v_lshrrev_b32 v2, 4, v0")
    g.I("v_lshlrev_b32 v1, 4, v1")
    g.I("v_lshrrev_b32 v3, 1, v2")
    g.I("v_lshl_add_u32 v1, v3, 8, v1")
    g.I("v_and_b32 v3, 1, v2")
    g.I("v_lshl_add_u32 v1, v3, 3, v1")
    g.I(f"s_lshl_b32 s52, {sRB}, 3")
    g.I(f"s_lshl_b32 s53, {sWAVE}, 1")
    g.I("s_add_u32 s52, s52, s53")
    g.I("s_mul_i32 s52, s52, 20480")
    g.I(f"s_mul_i32 s53, {sA}, 2560")
    g.I("s_add_u32 s52, s52, s53")
    g.I(f"s_add_u32 s52, s52, {PQ_OFF}")
    for t in range(5):
        for rt in range(2):
            d = QD(t, rt)
            g.I(f"s_add_u32 s53, s52, {rt*20480 + t*512}")
            g.I(f"buffer_store_dwordx2 {vr(d,2)}, v1, {R4(SRD_WS)}, s53 offen{SC}")
    skip = g.newlabel("Lng")
    g.I(f"s_cmp_lg_u32 {sA}, 0")
    g.I(f"s_cbranch_scc1 {skip}")
    g.I("v_and_b32 v1, 15, v0")
    g.I("v_lshlrev_b32 v1, 2, v1")
    g.I("v_cmp_gt_u32 vcc, 16, v0")
    g.I(f"v_mov_b32 v6, {BIG}")
    g.I("v_cndmask_b32 v1, v6, v1, vcc")
    g.I(f"s_lshl_b32 s52, {sRB}, 7")
    g.I(f"s_lshl_b32 s53, {sWAVE}, 5")
    g.I("s_add_u32 s52, s52, s53")
    g.I("s_lshl_b32 s52, s52, 2")
    g.I(f"s_add_u32 s52, s52, {G_OFF}")
    for rt in range(2):
        a = acc(13, rt)
        g.I(f"v_mul_f32 v2, s51, v{a}")
        g.I("v_exp_f32_e64 v2, -v2")
        g.I("v_add_f32 v2, 1.0, v2")
        g.I(f"v_rcp_f32 v{8+rt}, v2")
        g.I(f"s_add_u32 s53, s52, {rt*64}")
        g.I(f"buffer_store_dword v{8+rt}, v1, {R4(SRD_WS)}, s53 offen{SC}")
    g.L(skip)
    g.I("s_barrier")
    stamp(g, 3)

def flag_lane0(g, b=5):
    g.I(f"v_mov_b32 v{b}, {sNONCE}")
    g.I(f"v_mov_b32 v{b+1}, 0")
    g.I("v_cmp_eq_u32 vcc, 0, v0")
    g.I(f"v_mov_b32 v{b+2}, {BIG}")
    g.I(f"v_cndmask_b32 v{b+1}, v{b+2}, v{b+1}, vcc")

def pub_p2(g):
    def f():
        la, lb = g.newlabel("Lpub"), g.newlabel("Lpub")
        g.I(f"s_bitcmp1_b32 {sI}, 1")
        g.I(f"s_cbranch_scc1 {lb}")
        publish_flag(g, "K", "s4", "s5", 12)
        g.I(f"s_branch {la}")
        g.L(lb)
        publish_flag(g, "Q", "s4", "s5", 12)
        g.L(la)
    return f

def publish_flag(g, kind, t0="s52", t1="s53", b=5):
    lab = g.newlabel("Lfl")
    g.I(f"s_cmp_lg_u32 {sWAVE}, 0")
    g.I(f"s_cbranch_scc1 {lab}")
    flag_lane0(g, b)
    if kind == "H":
        g.I(f"s_lshr_b32 {t0}, {sXCD}, 1")
        g.I(f"s_lshl_b32 {t0}, {t0}, 2")
        g.I(f"s_and_b32 {t1}, {sI}, 3")
        g.I(f"s_add_u32 {t0}, {t0}, {t1}")
        g.I(f"s_lshl_b32 {t0}, {t0}, 2")
        g.I(f"s_lshl_b32 {t1}, {sRB}, 8")
        g.I(f"s_add_u32 {t0}, {t0}, {t1}")
        g.I(f"s_add_u32 {t0}, {t0}, {HF_OFF}")
    elif kind == "K":
        g.I(f"s_lshl_b32 {t0}, {sA}, 8")
        g.I(f"s_lshl_b32 {t1}, {sRB}, 2")
        g.I(f"s_add_u32 {t0}, {t0}, {t1}")
        g.I(f"s_add_u32 {t0}, {t0}, {KF_OFF}")
    else:
        g.I(f"s_lshl_b32 {t0}, {sRB}, 8")
        g.I(f"s_lshl_b32 {t1}, {sA}, 2")
        g.I(f"s_add_u32 {t0}, {t0}, {t1}")
        g.I(f"s_add_u32 {t0}, {t0}, {QF_OFF}")
    g.I(f"buffer_store_dword v{b}, v{b+1}, {R4(SRD_WS)}, {t0} offen{SC}")
    g.L(lab)

def read_nonce(g):
    g.I(f"v_mov_b32 v5, {NONCE_LDS}")
    g.I("ds_read_b32 v5, v5")
    g.I("s_waitcnt lgkmcnt(0)")
    g.I(f"v_readfirstlane_b32 {sNONCE}, v5")

def reducer(g):
    g.C("==== kv reducer")
    g.I(f"s_lshl_b32 s50, {sXCD}, 1")
    g.I(f"s_add_u32 s50, s50, {sI}")
    g.I("s_sub_u32 s50, s50, 30")
    g.I(f"s_lshl_b32 s51, {sWAVE}, 6")
    g.I("v_add_u32 v1, s51, v0")
    g.I("v_cmp_le_u32 vcc, 192, v1")
    g.I("v_cndmask_b32 v2, 0, 1, vcc")
    g.I("v_mul_u32_u24 v3, 192, v2")
    g.I("v_sub_u32 v3, v1, v3")
    g.I("v_cmp_le_u32 vcc, 96, v3")
    g.I("v_cndmask_b32 v4, 0, 1, vcc")
    g.I("v_mul_u32_u24 v5, 96, v4")
    g.I("v_sub_u32 v5, v3, v5")
    g.I("v_lshrrev_b32 v6, 5, v5")
    g.I("v_bfe_u32 v7, v5, 1, 4")
    g.I("v_and_b32 v8, 1, v5")
    g.I("v_lshl_add_u32 v9, v6, 1, v8")
    g.I("v_sub_u32 v9, v9, v2")
    g.I("v_lshrrev_b32 v10, 2, v7")
    g.I("v_and_b32 v11, 3, v7")
    g.I("v_mul_u32_u24 v10, 5, v10")
    g.I("v_add_u32 v12, v10, v11")
    g.I("v_add_u32 v13, 4, v10")
    g.I("v_cmp_eq_u32 vcc, 1, v11")
    g.I("v_cndmask_b32 v13, v13, 20, vcc")
    g.I("v_cmp_eq_u32 vcc, 1, v4")
    g.I("v_cndmask_b32 v12, v12, v13, vcc")
    g.I("s_and_b32 s51, s50, 1")
    g.I("s_lshl_b32 s51, s51, 1")
    g.I("v_add_u32 v16, s51, v2")
    g.I("v_mul_u32_u24 v16, 105, v16")
    g.I("v_mul_u32_u24 v15, 5, v12")
    g.I("v_add3_u32 v16, v16, v15, v9")
    g.I("v_lshlrev_b32 v16, 4, v16")
    g.I(f"v_mov_b32 v18, {BIG}")
    g.I("v_cmp_gt_u32 vcc, 5, v9")
    g.I("v_cndmask_b32 v16, v18, v16, vcc")
    g.I("v_mul_u32_u24 v15, v4, v11")
    g.I("v_cmp_gt_u32 vcc, 2, v15")
    g.I("v_cndmask_b32 v16, v18, v16, vcc")
    g.I("v_cmp_gt_u32 vcc, 384, v1")
    g.I("v_cndmask_b32 v16, v18, v16, vcc")
    g.I("v_mul_u32_u24 v17, 1536, v2")
    g.I("v_lshl_add_u32 v17, v3, 3, v17")
    g.I("v_cndmask_b32 v17, v18, v17, vcc")
    lab = g.newlabel("Lrp")
    g.I(f"s_cmp_lg_u32 {sWAVE}, 4")
    g.I(f"s_cbranch_scc1 {lab}")
    g.I("v_lshlrev_b32 v19, 2, v0")
    g.I("s_lshr_b32 s51, s50, 1")
    g.I("s_lshl_b32 s51, s51, 8")
    g.I("v_add_u32 v19, s51, v19")
    g.I("v_cmp_gt_u32 vcc, 16, v0")
    g.I("v_cndmask_b32 v19, v18, v19, vcc")
    poll(g, "v19", KF_OFF, 16)
    g.L(lab)
    stamp(g, 4)
    g.I("s_barrier")
    g.I("s_lshr_b32 s51, s50, 1")
    g.I(f"s_mul_i32 s51, s51, {16*KVP_STRIDE}")
    g.I(f"s_add_u32 s51, s51, {KVP_OFF}")
    for rb in range(16):
        g.I(f"s_add_u32 s52, s51, {rb*KVP_STRIDE}")
        g.I(f"buffer_load_dwordx4 {vr(32+4*rb)}, v16, {R4(SRD_WS)}, s52 offen{SC}")
    for rb in range(1, 16):
        g.I(f"s_waitcnt vmcnt({15-rb})")
        for j in range(4):
            g.I(f"v_add_f32 v{32+j}, v{32+j}, v{32+4*rb+j}")
    g.I("v_cvt_pk_bf16_f32 v20, v32, v33")
    g.I("v_cvt_pk_bf16_f32 v21, v34, v35")
    g.I(f"s_mul_i32 s52, s50, {2*KVF_STRIDE}")
    g.I(f"s_add_u32 s52, s52, {KVF_OFF}")
    g.I(f"buffer_store_dwordx2 v[20:21], v17, {R4(SRD_WS)}, s52 offen{SC}")
    g.I("s_waitcnt vmcnt(0)")
    g.I("s_barrier")
    lab = g.newlabel("Lrf")
    g.I(f"s_cmp_lg_u32 {sWAVE}, 0")
    g.I(f"s_cbranch_scc1 {lab}")
    g.I(f"v_mov_b32 v5, {sNONCE}")
    g.I("v_mov_b32 v6, 0")
    g.I("v_cmp_eq_u32 vcc, 0, v0")
    g.I("v_cndmask_b32 v6, v18, v6, vcc")
    g.I("s_lshl_b32 s52, s50, 2")
    g.I(f"s_add_u32 s52, s52, {FF_OFF}")
    g.I(f"buffer_store_dword v5, v6, {R4(SRD_WS)}, s52 offen{SC}")
    g.L(lab)
    stamp(g, 5)

def p2_body(g, nr, isL, vm, post_bp=None):
    g.C(f"==== P2 body nr={nr} L={isL}")
    ACC2 = 208
    A2 = lambda rt, ct: ACC2 + (rt * 4 + ct) * 4
    def AB(sidx, rt):
        if sidx < 8: return 104 + (sidx * 3 + rt) * 4
        if sidx < 11: return 16 + ((sidx - 8) * 3 + rt) * 4
        return 104 + rt * 4
    BF = lambda b, ct: (80 if b == 0 else 52) + ct * 4
    WA = [68 + k for k in range(10)]
    VK = 79
    VB = lambda ct: 96 + ct
    VA = 100
    VG = [101, 102, 103]
    KV = lambda hh, T: 104 + (hh * 2 + T) * 4
    PQ = lambda b, hh: (168 if b == 0 else 16) + hh * 4
    DD = lambda b, T: (200 if b == 0 else 92) + T * 4
    VAL = 48
    PK = 64
    WF = lambda k: 80 + (k % 3) * 4
    lk = LgkmTracker(g)
    g.I("v_and_b32 v1, 15, v0")
    g.I("v_lshrrev_b32 v2, 4, v0")
    g.I("v_bfe_u32 v3, v0, 2, 2")
    g.I("v_and_b32 v4, 3, v0")
    g.I(f"v_lshlrev_b32 v{VA}, 4, v0")
    g.I(f"v_mov_b32 v5, {BIG}")
    g.I("v_cmp_gt_u32 vcc, 48, v0")
    g.I(f"v_cndmask_b32 v{VK}, v5, v{VA}, vcc")
    g.I("v_and_b32 v6, 1, v2")
    g.I("v_lshrrev_b32 v7, 1, v3")
    g.I("v_lshlrev_b32 v7, 1, v7")
    g.I("v_lshl_add_u32 v7, v6, 2, v7")
    g.I("v_lshl_add_u32 v8, v2, 2, v3")
    g.I("v_and_b32 v9, 1, v4")
    g.I("v_lshlrev_b32 v9, 3, v9")
    g.I("v_lshl_add_u32 v9, v8, 7, v9")
    g.I("s_lshl_b32 s56, s53, 12")
    g.I("v_add_u32 v9, s56, v9")
    g.I("v_lshrrev_b32 v8, 1, v4")
    for ct in range(4):
        g.I(f"v_add_u32 v12, {2*ct}, v8")
        g.I("v_xor_b32 v12, v12, v7")
        g.I(f"v_lshl_add_u32 v{VB(ct)}, v12, 4, v9")
    VBH = lambda ct: 4 + ct
    VBH2 = lambda ct: 200 + ct
    for ct in range(4):
        g.I(f"v_add_u32 v{VBH2(ct)}, 0x20000, v{VB(ct)}")
    for rt in range(nr):
        for ct in range(4):
            for i in range(4):
                g.I(f"v_mov_b32 v{A2(rt,ct)+i}, 0")
    g.I("v_mul_u32_u24 v12, 5, v2")
    g.I("s_mul_i32 s56, s53, 20480")
    g.I("s_cmp_ge_u32 s53, 2")
    g.I(f"s_cselect_b32 s61, {94208 - 2*20480}, 0")
    g.I("s_add_u32 s56, s56, s61")
    g.I("v_lshlrev_b32 v13, 3, v4")
    g.I("v_add_u32 v13, s56, v13")
    for n in range(5):
        for half in range(2):
            g.I(f"v_add_u32 v14, {8*n + 4*half}, v3")
            g.I("v_mul_u32_u24 v15, 52, v14")
            g.I("v_lshrrev_b32 v15, 8, v15")
            g.I("v_mul_u32_u24 v15, 15, v15")
            g.I("v_add3_u32 v14, v14, v15, v12")
            g.I("v_bfe_u32 v15, v14, 1, 2")
            g.I("v_lshlrev_b32 v15, 5, v15")
            g.I("v_lshl_add_u32 v14, v14, 7, v15")
            g.I(f"v_add_u32 v{WA[2*n+half]}, v14, v13")
    g.I("v_lshlrev_b32 v11, 2, v1")
    for ct in range(4):
        g.I(f"v_add_u32 v{VBH(ct)}, 0x10000, v{VB(ct)}")
    g.I("s_mul_i32 s3, s55, 48")
    g.I("s_mul_i32 s56, s53, 12")
    g.I("s_add_u32 s3, s3, s56")
    g.I("s_lshl_b32 s3, s3, 10")
    if OPT["rot2"]:
        g.I("s_lshl_b32 s61, s50, 10")
    else:
        g.I("s_mov_b32 s61, 0")
    g.I("s_mul_i32 s62, s55, 20480")
    g.I("s_mul_i32 s56, s53, 5120")
    g.I("s_add_u32 s62, s62, s56")
    if isL:
        lab = g.newlabel("Lhp")
        g.I(f"s_cmp_lg_u32 {sWAVE}, 4")
        g.I(f"s_cbranch_scc1 {lab}")
        g.I("v_lshrrev_b32 v12, 4, v0")
        g.I("v_lshlrev_b32 v12, 8, v12")
        g.I("v_and_b32 v13, 15, v0")
        g.I("v_lshl_add_u32 v12, v13, 2, v12")
        g.I(f"s_lshl_b32 s56, {sXCD}, 9")
        g.I("v_add_u32 v12, s56, v12")
        g.I("v_cmp_gt_u32 vcc, 32, v0")
        g.I(f"v_mov_b32 v13, {BIG}")
        g.I("v_cndmask_b32 v12, v13, v12, vcc")
        poll(g, "v12", HF_OFF, 32)
        g.L(lab)
        vm.wait(("d", 6))
    else:
        g.I("s_waitcnt vmcnt(0)")
    stamp(g, 4)
    g.I("s_barrier")
    if post_bp:
        post_bp()
    def load_a(sidx):
        g.I("s_add_u32 s6, s3, s61")
        for rt in range(nr):
            g.I(f"s_add_u32 s56, s6, {H_OFF + rt*48*1024}")
            vm.issue(f"buffer_load_dwordx4 {vr(AB(sidx, rt))}, v{VA}, {R4(SRD_WS)}, s56 offen{SC}", ("a", sidx))
        g.I("s_add_u32 s61, s61, 1024")
        g.I(f"s_cmp_ge_u32 s61, {12*1024}")
        g.I(f"s_cselect_b32 s56, {12*1024}, 0")
        g.I("s_sub_u32 s61, s61, s56")
    def rd_b(sidx):
        base = W2R[sidx]
        for ct in range(4):
            for half in range(2):
                off = base + half * 2048
                if off + 16384 <= 65536:
                    reg = VB(ct)
                elif off >= 131072:
                    reg = VBH2(ct); off -= 131072
                elif off >= 65536:
                    reg = VBH(ct); off -= 65536
                else:
                    reg = VB(ct)
                lk.issue(f"ds_read_b64_tr_b16 {vr(BF(sidx % 2, ct) + 2*half, 2)}, v{reg} offset:{off}", ("b", sidx, ct))
    for sidx in range(6):
        load_a(sidx)
    if isL:
        dma_w2(g, vm, 7); dma_w2(g, vm, 8)
    for sidx in range(6, 11):
        load_a(sidx)
    def load_g():
        g.I("s_lshl_b32 s6, s55, 6")
        for rt in range(nr):
            g.I(f"s_add_u32 s56, s6, {G_OFF + rt*64}")
            vm.issue(f"buffer_load_dword v{VG[rt]}, v11, {R4(SRD_WS)}, s56 offen{SC}", ("g", 0))
    def load_pq(rt, h0=0, h1=8):
        for hh in range(h0, h1):
            g.I(f"s_add_u32 s56, s62, {PQ_OFF + rt*20480 + ((5*hh) >> 1)*256}")
            vm.issue(f"buffer_load_dwordx4 {vr(PQ(rt % 2, hh))}, v{VK}, {R4(SRD_WS)}, s56 offen{SC}", ("pq", rt, hh))
    rd_b(0)
    for sidx in range(12):
        if OPT["prof2"] and sidx in (0, 2, 3, 5, 6, 8, 10):
            lk.drain()
            stamp(g, {0: 1, 2: 2, 3: 3, 5: 4, 6: 5, 8: 6, 10: 7}[sidx], force=True)
        if sidx == 3:
            g.I("s_barrier")
            if isL:
                for k in (9, 10, 11):
                    dma_w2(g, vm, k)
        if sidx == 6:
            if isL:
                vm.wait(("d", 8))
            g.I("s_barrier")
        if sidx == 8:
            if isL:
                vm.wait(("d", 11))
                lab = g.newlabel("Lqp")
                g.I(f"s_cmp_lg_u32 {sWAVE}, 4")
                g.I(f"s_cbranch_scc1 {lab}")
                g.I("v_lshrrev_b32 v12, 3, v0")
                g.I("v_lshlrev_b32 v12, 8, v12")
                g.I("v_and_b32 v13, 7, v0")
                g.I("v_lshl_add_u32 v12, v13, 2, v12")
                g.I(f"s_lshl_b32 s56, {sXCD}, 9")
                g.I("v_add_u32 v12, s56, v12")
                g.I("v_cmp_gt_u32 vcc, 16, v0")
                g.I(f"v_mov_b32 v13, {BIG}")
                g.I("v_cndmask_b32 v12, v13, v12, vcc")
                poll(g, "v12", QF_OFF, 16)
                g.L(lab)
            g.I("s_barrier")
        nxt = sidx + 1
        pre = nxt < 12 and not (nxt == 7 and False)
        if nxt < 12:
            rd_b(nxt)
        vm.wait(("a", sidx))
        for ct in range(4):
            lk.wait(("b", sidx, ct))
            for rt in range(nr):
                a = A2(rt, ct)
                g.I(f"v_mfma_f32_16x16x32_bf16 {vr(a)}, {vr(BF(sidx % 2, ct))}, {vr(AB(sidx, rt))}, {vr(a)}")
        if sidx == 0:
            load_a(11)
        if sidx == 8:
            load_pq(0)
            load_g()
            if isL:
                dma_wo(g, vm, 0, 20)
    stamp(g, 5)
    lk.drain()
    g.I("v_lshlrev_b32 v12, 2, v0")
    g.I("s_lshl_b32 s56, s53, 4")
    g.I("v_add_u32 v12, s56, v12")
    g.I("v_cmp_gt_u32 vcc, 4, v0")
    g.I(f"v_mov_b32 v13, {BIG}")
    g.I("v_cndmask_b32 v12, v13, v12, vcc")
    poll(g, "v12", FF_OFF, 4)
    vm.q = []
    g.I("s_lshl_b32 s61, s53, 3")
    g.I(f"s_mul_i32 s61, s61, {KVF_STRIDE}")
    for hh in range(8):
        for T in range(2):
            g.I(f"s_add_u32 s56, s61, {KVF_OFF + hh*KVF_STRIDE + T*768}")
            vm.issue(f"buffer_load_dwordx4 {vr(KV(hh,T))}, v{VK}, {R4(SRD_WS)}, s56 offen{SC}", ("kv", hh))
    if nr > 1:
        load_pq(1)
    for rt in range(nr):
        g.I(f"v_sub_f32 v12, 1.0, v{VG[rt]}")
        for ct in range(4):
            for i in range(4):
                g.I(f"v_mul_f32 v{A2(rt,ct)+i}, v12, v{A2(rt,ct)+i}")
    g.I("s_barrier")
    stamp(g, 6)
    g.I(f"s_mov_b32 s61, {EPS6}")
    wcount = [0]
    def omfma(rt, hh):
        b = hh % 2
        vm.wait(("kv", hh))
        vm.wait(("pq", rt, hh))
        g.I(f"v_mfma_f32_16x16x32_bf16 {vr(DD(b,0))}, {vr(KV(hh,0))}, {vr(PQ(rt % 2, hh))}, 0")
        g.I(f"v_mfma_f32_16x16x32_bf16 {vr(DD(b,1))}, {vr(KV(hh,1))}, {vr(PQ(rt % 2, hh))}, 0")
    def norm(rt, hh):
        b = hh % 2
        d1, d2 = DD(b, 0), DD(b, 1)
        g.I(f"v_add_f32 v12, s61, v{d2+1}")
        g.I("v_rcp_f32 v12, v12")
        g.I(f"v_mul_f32 v12, v12, v{VG[rt]}")
        for j in range(5):
            v = 5 * hh + j
            src = d1 + j if j < 4 else d2
            g.I(f"v_mul_f32 v{VAL + (v % 16)}, v12, v{src}")
    def rd_wo(n, ct, k):
        for half in range(2):
            if ct == 0:
                ar = WA[2*n+half]
            else:
                ar = 13 + half
                g.I(f"v_xor_b32 v{ar}, {ct << 5}, v{WA[2*n+half]}")
            lk.issue(f"ds_read_b64_tr_b16 {vr(WF(k) + 2*half, 2)}, v{ar}", ("wf", k))
    def kstep(rt, n):
        base = VAL + (8 * n) % 16
        k0 = wcount[0]
        rd_wo(n, 0, k0); rd_wo(n, 1, k0 + 1); rd_wo(n, 2, k0 + 2)
        for j in range(4):
            g.I(f"v_cvt_pk_bf16_f32 v{PK+j}, v{base+2*j}, v{base+2*j+1}")
        for ct in range(4):
            k = k0 + ct
            lk.wait(("wf", k))
            a = A2(rt, ct)
            g.I(f"v_mfma_f32_16x16x32_bf16 {vr(a)}, {vr(WF(k))}, {vr(PK)}, {vr(a)}")
            if ct == 0:
                rd_wo(n, 3, k0 + 3)
        wcount[0] += 4
    for rt in range(nr):
        omfma(rt, 0)
        next_n = 0
        for hh in range(8):
            if hh + 1 < 8:
                omfma(rt, hh + 1)
            norm(rt, hh)
            done_vals = 5 * (hh + 1)
            while next_n < 5 and 8 * (next_n + 1) <= done_vals:
                kstep(rt, next_n); next_n += 1
        if rt + 2 < nr:
            load_pq(rt + 2)
    stamp(g, 7)

def p2_final(g):
    A2 = lambda rt, ct: 208 + (rt * 4 + ct) * 4
    def base_of(dst, w_s):
        g.I(f"s_mul_i32 {dst}, {w_s}, 9216")
        g.I(f"s_add_u32 {dst}, {dst}, 40960")
        g.I(f"s_cmp_ge_u32 {w_s}, 5")
        g.I(f"s_cselect_b32 s56, {135168 - 5*9216 - 40960}, 0")
        g.I(f"s_add_u32 {dst}, {dst}, s56")
    g.I("v_lshlrev_b32 v1, 4, v0")
    base_of("s57", sWAVE)
    g.I("v_add_u32 v2, s57, v1")
    g.I("v_and_b32 v3, 15, v0")
    g.I("v_mul_u32_u24 v3, 1280, v3")
    g.I("v_lshrrev_b32 v4, 4, v0")
    g.I("v_lshl_add_u32 v3, v4, 3, v3")
    g.I(f"s_mul_i32 s58, s55, {16*1280}")
    g.I("s_lshl_b32 s59, s50, 7")
    g.I("s_add_u32 s58, s58, s59")
    g.I("s_lshl_b32 s59, s53, 5")
    g.I("s_add_u32 s58, s58, s59")
    g.I("s_cmp_lt_u32 s51, 2")
    g.I("s_cselect_b32 s59, s54, 0")
    g.I("s_cmp_eq_u32 s59, 1")
    g.I(f"s_cselect_b32 s59, {BIG}, 0")
    g.I("v_add_u32 v5, s59, v3")
    labs = [g.newlabel("Lfk") for _ in range(4)]
    done = g.newlabel("Lfd")
    for kq in range(1, 4):
        g.I(f"s_cmp_eq_u32 s53, {kq}")
        g.I(f"s_cbranch_scc1 {labs[kq]}")
    for kq in range(4):
        g.L(labs[kq])
        others = [c for c in range(4) if c != kq]
        for rt in range(3):
            for k, ct in enumerate(others):
                g.I(f"ds_write_b128 v2, {vr(A2(rt, ct))} offset:{(rt*3 + k)*1024}")
        for k, src in enumerate(others):
            g.I("s_lshl_b32 s60, s54, 2")
            g.I(f"s_add_u32 s60, s60, {src}")
            base_of("s61", "s60")
            idx = kq if kq < src else kq - 1
            g.I(f"s_add_u32 s61, s61, {idx*1024}")
            g.I(f"v_add_u32 v{6+k}, s61, v1")
        g.I("s_waitcnt lgkmcnt(0)")
        g.I("s_barrier")
        for rt in range(3):
            for k in range(3):
                g.I(f"ds_read_b128 {vr(16 + (rt*3 + k)*4)}, v{6+k} offset:{rt*3*1024}")
        for rt in range(3):
            g.I(f"s_waitcnt lgkmcnt({6 - 3*rt})")
            a = A2(rt, kq)
            b = 16 + rt * 12
            for i in range(4):
                g.I(f"v_add_f32 v{b+i}, v{b+i}, v{b+4+i}")
                g.I(f"v_add_f32 v{a+i}, v{a+i}, v{b+8+i}")
            for i in range(4):
                g.I(f"v_add_f32 v{a+i}, v{a+i}, v{b+i}")
            g.I(f"v_cvt_pk_bf16_f32 v{b}, v{a}, v{a+1}")
            g.I(f"v_cvt_pk_bf16_f32 v{b+1}, v{a+2}, v{a+3}")
            g.I(f"s_add_u32 s56, s58, {rt*16*1280}")
            g.I(f"buffer_store_dwordx2 {vr(b,2)}, v{3 if rt < 2 else 5}, {R4(SRD_OUT)}, s56 offen")
        if kq < 3:
            g.I(f"s_branch {done}")
    g.L(done)

def kernel(g):
    end = "Lend"
    g.I("s_cmp_ge_u32 s2, 256")
    g.I(f"s_cbranch_scc1 {end}")
    g.I("s_load_dwordx16 s[64:79], s[0:1], 0")
    g.I("s_load_dwordx4 s[80:83], s[0:1], 64")
    if OPT["stamp"]:
        for k in range(8):
            g.I(f"s_mov_b32 s{84+2*k}, 0")
        g.I("s_memrealtime s[84:85]")
    g.I("v_lshrrev_b32 v1, 6, v0")
    g.I("v_and_b32 v0, 63, v0")
    g.I(f"v_readfirstlane_b32 {sWAVE}, v1")
    g.I(f"s_and_b32 {sXCD}, s2, 7")
    g.I(f"s_lshr_b32 {sI}, s2, 3")
    g.I(f"s_and_b32 {sRB}, {sXCD}, 1")
    g.I(f"s_lshl_b32 {sRB}, {sRB}, 3")
    g.I(f"s_lshr_b32 s50, {sI}, 2")
    g.I(f"s_add_u32 {sRB}, {sRB}, s50")
    g.I(f"s_lshr_b32 {sA}, {sXCD}, 1")
    g.I(f"s_lshl_b32 {sA}, {sA}, 1")
    g.I(f"s_and_b32 s50, {sI}, 1")
    g.I(f"s_add_u32 {sA}, {sA}, s50")
    g.I(f"s_mov_b32 {sNONCE}, 0")
    if OPT["prof"]:
        g.I("s_getreg_b32 s3, hwreg(HW_REG_XCC_ID)")
        g.I("s_and_b32 s3, s3, 15")
        g.I("s_add_u32 s92, s3, 1000")
    g.I(f"s_cmp_ge_u32 {sWAVE}, 4")
    g.I("s_cbranch_scc1 Lload")
    g.I(f"s_bitcmp1_b32 {sI}, 1")
    g.I("s_cbranch_scc1 LcB")
    p1_compute(g, "A")
    p1_epilogue_A(g)
    read_nonce(g)
    g.I("s_mov_b32 s7, 0")
    g.I("s_branch Lp2C")
    g.L("LcB")
    p1_compute(g, "B")
    p1_epilogue_B(g)
    read_nonce(g)
    g.L("Lp2C")
    def pub():
        la, lb = g.newlabel("Lpub"), g.newlabel("Lpub")
        g.I(f"s_bitcmp1_b32 {sI}, 1")
        g.I(f"s_cbranch_scc1 {lb}")
        save = None
        publish_flag(g, "K")
        g.I(f"s_branch {la}")
        g.L(lb)
        publish_flag(g, "Q")
        g.L(la)
    g.I(f"s_cmp_ge_u32 {sI}, 30")
    g.I("s_cbranch_scc1 LredC")
    p2_decode(g)
    vm = VmTracker(g)
    p2_body(g, 3, False, vm, post_bp=pub_p2(g))
    g.I("s_branch Lfin")
    g.L("LredC")
    g.I("s_waitcnt vmcnt(0)")
    g.I("s_barrier")
    pub()
    g.I("s_branch Lred")
    g.L("Lload")
    g.I(f"s_bitcmp1_b32 {sI}, 1")
    g.I("s_cbranch_scc1 LldB")
    p1_loader(g, "A")
    g.I("s_branch Lldtail")
    g.L("LldB")
    p1_loader(g, "B")
    g.L("Lldtail")
    g.I(f"s_cmp_ge_u32 {sI}, 30")
    g.I("s_cbranch_scc1 Lldred")
    p2_decode(g)
    p2_dma_setup(g)
    vmL = VmTracker(g)
    vmL.q = [("c", 8)] * 11 + [("c", 9)] * 11
    vmL.wait(("c", 8))
    g.I("s_barrier")
    dma_w2(g, vmL, 0); dma_w2(g, vmL, 1)
    vmL.wait(("c", 9))
    stamp(g, 3)
    g.I("s_barrier")
    for k in (2, 3, 4):
        dma_w2(g, vmL, k)
    g.I("s_barrier")
    dma_w2(g, vmL, 5); dma_w2(g, vmL, 6)
    read_nonce(g)
    g.I("s_barrier")
    l2 = "Lp2L2"
    g.I("s_cmp_lt_u32 s51, 2")
    g.I(f"s_cbranch_scc1 {l2}")
    vm3 = VmTracker(g); vm3.q = list(vmL.q)
    p2_body(g, 3, True, vm3)
    g.I("s_branch Lfin")
    g.L(l2)
    vm2 = VmTracker(g); vm2.q = list(vmL.q)
    p2_body(g, 2, True, vm2)
    g.L("Lfin")
    p2_final(g)
    g.I("s_branch Ldone")
    g.L("Lldred")
    g.I("s_waitcnt vmcnt(11)")
    g.I("s_barrier")
    g.I("s_waitcnt vmcnt(0)")
    g.I("s_barrier")
    g.I("s_barrier")
    read_nonce(g)
    g.I("s_barrier")
    g.I("s_barrier")
    g.L("Lred")
    reducer(g)
    g.L("Ldone")
    if OPT["stamp"]:
        g.I("s_waitcnt vmcnt(0)")
    stamp_flush(g)
    g.L(end)
    g.I("s_endpgm")
    g.L("Lcode_end")

def kd(name, vgpr, sgpr=102):
    return f""".p2align 6
.amdhsa_kernel {name}
  .amdhsa_next_free_vgpr {vgpr}
  .amdhsa_next_free_sgpr {sgpr}
  .amdhsa_accum_offset {vgpr}
  .amdhsa_group_segment_fixed_size 0
  .amdhsa_kernarg_size 80
  .amdhsa_user_sgpr_count 2
  .amdhsa_user_sgpr_kernarg_segment_ptr 1
  .amdhsa_system_sgpr_workgroup_id_x 1
.end_amdhsa_kernel
"""

HEADER = open("cdna_kernels/" + NAME + ".s.ref").read().split("; Override launch")[0]

def build():
    out = HEADER
    out += f"; @launch grid=(256,1,1) block=(512,1,1) lds={LDS_TOTAL}\n"
    out += '.amdgcn_target "amdgcn-amd-amdhsa--gfx950"\n.text\n'
    g = Gen()
    kernel(g)
    g.fix_hazards()
    for p in g.check_branches():
        print("BRANCH HAZARD:", p, file=sys.stderr)
    out += f".globl {KNAME}\n.p2align 8\n.type {KNAME},@function\n{KNAME}:\n" + g.text()
    out += '.section .rodata,"a"\n' + kd(KNAME, 256)
    return out

if __name__ == "__main__":
    args = sys.argv[1:]
    for a in list(args):
        if a.startswith("--"):
            k = a[2:]
            if k.startswith("no"):
                OPT[k[2:]] = False
            else:
                OPT[k] = True
            args.remove(a)
    path = args[0] if args else "v2.s"
    txt = build()
    open(path, "w").write(txt)
    print("wrote", path, len(txt), "bytes")
```

```python
import sys
from asmlib import Gen, LgkmTracker, VmTracker

NAME = "gated_mix__linear_attn_block__dense_activation_relu__prompt"
KNAME = NAME + "_kernel"
H_OFF = 0
PQ_OFF = 0x600000
G_OFF = 0x900000
KVP_OFF = 0x910000
KVP_STRIDE = 7168
KVF_OFF = 0xA00000
KVF_STRIDE = 1536
FL_OFF = 0xA10000
HF_OFF = FL_OFF
KF_OFF = FL_OFF + 0x2000
FF_OFF = FL_OFF + 0x4000
QF_OFF = FL_OFF + 0x6000
ST_OFF = 0xA80000
WS_USED = 0xB00000
STAGE = 45056
GW_LDS = 3 * STAGE
KS_LDS = GW_LDS + 1280
KS_W = 6720
NONCE_LDS = KS_LDS + 4 * KS_W + 16
LDS_TOTAL = 163840
W2R = [45056 + 16384*k for k in range(5)] + [0, 16384, 126976, 143360] + [45056, 61440, 77824]
WO_LDS = [0, 20480, 94208, 114688]
LOG2E = 0x3FB8AA3B
EPS6 = 0x358637BD
BIG = 0x40000000
SC = " sc1"
SPIN_MAX = 40000

OPT = dict(stamp=False, codepf=True, tlb=True, prof=False, rot=True, rot2=True, xdma=True, xlds=True, xmfma=True, warm2=False, mall=True, prof2=False)

SRD_X, SRD_QKV, SRD_W1, SRD_WS, SRD_GW, SRD_W2, SRD_WO, SRD_OUT = 8, 12, 16, 20, 24, 28, 32, 36
def R4(b): return f"s[{b}:{b+3}]"
sWAVE, sXCD, sI, sRB, sA, sNONCE = "s44", "s45", "s46", "s47", "s48", "s49"
def vr(b, n=4): return f"v[{b}:{b+n-1}]"

def stamp(g, k, force=False):
    if not OPT["stamp"]: return
    if OPT["prof2"] and not force: return
    if OPT["prof"] and k >= 4: return
    g.I(f"s_memrealtime s[{84+2*k}:{85+2*k}]")
    g.I("s_waitcnt lgkmcnt(0)")

def stamp_flush(g):
    if not OPT["stamp"]: return
    g.I("s_lshl_b32 s50, s2, 8")
    g.I(f"s_lshl_b32 s51, {sWAVE}, 5")
    g.I("s_add_u32 s50, s50, s51")
    g.I(f"s_add_u32 s50, s50, {ST_OFF}")
    g.I("v_mov_b32 v14, 0")
    for k in range(8):
        g.I(f"v_mov_b32 v15, s{84+2*k}")
        g.I(f"buffer_store_dword v15, v14, {R4(SRD_WS)}, s50 offen offset:{4*k}")

def srd(g, d, p, size):
    g.I(f"s_mov_b32 s{d}, s{p}")
    g.I(f"s_and_b32 s{d+1}, s{p+1}, 0xffff")
    g.I(f"s_mov_b32 s{d+2}, {size}")
    g.I(f"s_mov_b32 s{d+3}, 0x00020000")

def srds_p1(g):
    srd(g, SRD_X, 64, 2048 * 1280)
    srd(g, SRD_QKV, 66, 640 * 3840)
    srd(g, SRD_W1, 72, 640 * 3072)

def srds_rest(g):
    srd(g, SRD_WS, 82, WS_USED)
    srd(g, SRD_GW, 76, 1280)
    srd(g, SRD_W2, 74, 1536 * 1280)
    srd(g, SRD_WO, 68, 640 * 1280)
    srd(g, SRD_OUT, 78, 2048 * 1280)

def swap23(g, dst, src, t1, t2):
    g.I(f"v_and_b32 {t1}, 4, {src}")
    g.I(f"v_and_b32 {t2}, 8, {src}")
    g.I(f"v_and_b32 {dst}, 0x33, {src}")
    g.I(f"v_lshl_or_b32 {dst}, {t1}, 1, {dst}")
    g.I(f"v_lshrrev_b32 {t2}, 1, {t2}")
    g.I(f"v_or_b32 {dst}, {dst}, {t2}")

def rot_c0(g, dst):
    g.I(f"s_and_b32 {dst}, {sI}, 3")
    g.I(f"s_mul_i32 {dst}, {dst}, 3")
    g.I(f"s_lshr_b32 s4, {sI}, 2")
    g.I(f"s_add_u32 {dst}, {dst}, s4")
    g.I(f"s_cmp_ge_u32 {dst}, 10")
    g.I("s_cselect_b32 s4, 10, 0")
    g.I(f"s_sub_u32 {dst}, {dst}, s4")

def p1_loader(g, typ):
    g.C(f"==== P1 loader type {typ}")
    g.I(f"s_sub_u32 s52, {sWAVE}, 4")
    g.I("v_lshrrev_b32 v2, 3, v0")
    g.I("v_and_b32 v3, 7, v0")
    g.I("v_lshrrev_b32 v4, 4, v0")
    g.I(f"s_lshl_b32 s53, {sRB}, 2")
    g.I("s_add_u32 s53, s53, s52")
    g.I(f"s_mul_i32 s53, s53, {32*1280}")
    g.I("v_xor_b32 v5, v3, v4")
    g.I("v_lshlrev_b32 v5, 4, v5")
    g.I("v_mul_u32_u24 v6, 1280, v2")
    g.I("v_add_u32 v6, s53, v6")
    XO = [10, 11, 12, 13]
    g.I(f"v_add_u32 v{XO[0]}, v6, v5")
    g.I("v_xor_b32 v5, 64, v5")
    g.I(f"v_add_u32 v{XO[1]}, v6, v5")
    g.I(f"v_add_u32 v{XO[1]}, {8*1280}, v{XO[1]}")
    g.I(f"v_add_u32 v{XO[2]}, {16*1280}, v{XO[0]}")
    g.I(f"v_add_u32 v{XO[3]}, {16*1280}, v{XO[1]}")
    g.I("s_lshl_b32 s54, s52, 10")
    g.I("s_lshl_b32 s55, s52, 12")
    if OPT["rot"]:
        rot_c0(g, "s3")
        g.I("s_lshl_b32 s56, s3, 7")
        g.I(f"s_mul_i32 s57, s3, {64*3840}")
        g.I(f"s_mul_i32 s58, s3, {64*3072}")
    else:
        g.I("s_mov_b32 s56, 0")
        g.I("s_mov_b32 s57, 0")
        g.I("s_mov_b32 s58, 0")
    g.I("s_waitcnt lgkmcnt(0)")
    srd(g, SRD_X, 64, 2048 * 1280)
    def issue_x():
        for j in range(4):
            g.I(f"s_add_u32 m0, s55, {j*1024}")
            g.I(f"buffer_load_dwordx4 v{XO[j]}, {R4(SRD_X)}, s56 offen lds")
    issue_x()
    srd(g, SRD_QKV, 66, 640 * 3840)
    n10 = 5 if typ == "A" else 3
    QO = [14, 15, 16, 17, 18][:n10]
    g.I(f"s_mul_i32 s59, {sA}, 160")
    if typ == "A":
        g.I("s_add_u32 s59, s59, 1280")
    g.I("s_mov_b32 s60, 6554")
    g.I("s_mov_b32 s61, 3840")
    R10 = 16384
    RH = 36864 if typ == "A" else 28672
    for n in range(n10):
        g.I(f"s_add_u32 s62, s52, {4*n}")
        if typ == "A":
            g.I("s_cmp_ge_u32 s62, 10")
            g.I("s_cselect_b32 s63, 10, 0")
            g.I("s_cselect_b32 s50, 1280, 0")
            g.I("s_sub_u32 s62, s62, s63")
        g.I("s_lshl_b32 s62, s62, 6")
        g.I("v_add_u32 v5, s62, v0")
        g.I("v_mul_lo_u32 v6, v5, s60")
        g.I("v_lshrrev_b32 v6, 16, v6")
        g.I("v_mul_u32_u24 v7, 10, v6")
        g.I("v_sub_u32 v7, v5, v7")
        swap23(g, "v8", "v6", "v9", "v19")
        g.I("v_mul_lo_u32 v8, v8, s61")
        g.I("v_lshl_add_u32 v8, v7, 4, v8")
        if typ == "A":
            g.I("s_add_u32 s50, s50, s59")
            g.I(f"v_add_u32 v{QO[n]}, s50, v8")
        else:
            g.I(f"v_add_u32 v{QO[n]}, s59, v8")
            if n == 2:
                g.I("s_cmp_ge_u32 s52, 2")
                g.I(f"s_cselect_b32 s50, {BIG}, 0")
                g.I(f"v_add_u32 v{QO[n]}, s50, v{QO[n]}")
        g.I(f"s_add_u32 m0, s54, {R10 + 4096*n}")
        g.I(f"buffer_load_dwordx4 v{QO[n]}, {R4(SRD_QKV)}, s57 offen lds")
    srd(g, SRD_W1, 72, 640 * 3072)
    nH = 2 if typ == "A" else 4
    HO = [20, 21, 22, 23][:nH]
    g.I("v_lshlrev_b32 v5, 1, v4")
    g.I("v_xor_b32 v5, v3, v5")
    g.I("v_lshlrev_b32 v5, 4, v5")
    if typ == "A":
        g.I(f"s_lshl_b32 s59, {sA}, 7")
    else:
        g.I(f"s_lshl_b32 s59, {sA}, 8")
        g.I("s_add_u32 s59, s59, 1024")
    g.I("s_mov_b32 s61, 3072")
    for n in range(2):
        g.I(f"s_add_u32 s62, s52, {4*n}")
        g.I("s_lshl_b32 s62, s62, 3")
        g.I("v_add_u32 v6, s62, v2")
        swap23(g, "v8", "v6", "v9", "v19")
        g.I("v_mul_lo_u32 v8, v8, s61")
        g.I("v_add_u32 v8, v8, v5")
        g.I(f"v_add_u32 v{HO[n]}, s59, v8")
        if nH == 4:
            g.I(f"v_add_u32 v{HO[n+2]}, 128, v{HO[n]}")
    def issue_h():
        for n in range(nH):
            g.I(f"s_add_u32 m0, s54, {RH + 8192*(n//2) + 4096*(n % 2)}")
            g.I(f"buffer_load_dwordx4 v{HO[n]}, {R4(SRD_W1)}, s58 offen lds")
    def issue_q():
        for n in range(n10):
            g.I(f"s_add_u32 m0, s54, {R10 + 4096*n}")
            g.I(f"buffer_load_dwordx4 v{QO[n]}, {R4(SRD_QKV)}, s57 offen lds")
    issue_h()
    srds_rest(g)
    def advance():
        g.I("s_add_u32 s56, s56, 128")
        g.I(f"s_add_u32 s57, s57, {64*3840}")
        g.I(f"s_add_u32 s58, s58, {64*3072}")
        if OPT["rot"]:
            g.I("s_cmp_ge_u32 s56, 1280")
            g.I("s_cselect_b32 s56, 0, s56")
            g.I("s_cselect_b32 s57, 0, s57")
            g.I("s_cselect_b32 s58, 0, s58")
        g.I(f"s_add_u32 s54, s54, {STAGE}")
        g.I(f"s_add_u32 s55, s55, {STAGE}")
        g.I(f"s_cmp_ge_u32 s54, {3*STAGE}")
        g.I(f"s_cselect_b32 s62, {3*STAGE}, 0")
        g.I("s_sub_u32 s54, s54, s62")
        g.I("s_sub_u32 s55, s55, s62")
    def issue():
        advance()
        if OPT["xdma"]:
            issue_x(); issue_q(); issue_h()
    extra0 = 0
    if typ == "B":
        lab = g.newlabel("Lgw")
        g.I("s_cmp_lg_u32 s52, 0")
        g.I(f"s_cbranch_scc1 {lab}")
        g.I("v_lshlrev_b32 v5, 4, v0")
        g.I(f"s_mov_b32 m0, {GW_LDS}")
        g.I("v_add_u32 v6, 1024, v5")
        g.I(f"buffer_load_dwordx4 v5, {R4(SRD_GW)}, 0 offen lds")
        g.I(f"s_mov_b32 m0, {GW_LDS + 1024}")
        g.I("s_nop 0")
        g.I(f"buffer_load_dwordx4 v6, {R4(SRD_GW)}, 0 offen lds")
        g.L(lab)
    issue()
    issue()
    warmups(g, typ)
    stamp(g, 1)
    g.I("s_waitcnt vmcnt(24)")
    stamp(g, 2)
    g.I("s_barrier")
    g.I("s_waitcnt vmcnt(13)")
    g.I("s_barrier")
    issue()
    g.I("s_waitcnt vmcnt(13)")
    g.I("s_barrier")
    issue()
    g.I("s_mov_b32 s63, 3")
    loop = g.newlabel("Lld")
    g.L(loop)
    if OPT["prof"]:
        g.I("s_memtime s[4:5]")
        g.I("s_waitcnt lgkmcnt(0)")
    g.I("s_waitcnt vmcnt(11)")
    if OPT["prof"]:
        g.I("s_memtime s[6:7]")
        g.I("s_waitcnt lgkmcnt(0)")
        g.I("s_sub_u32 s4, s6, s4")
        g.I("s_add_u32 s94, s94, s4")
    g.I("s_barrier")
    if OPT["prof"]:
        g.I("s_memtime s[4:5]")
        g.I("s_waitcnt lgkmcnt(0)")
        g.I("s_sub_u32 s6, s4, s6")
        g.I("s_add_u32 s96, s96, s6")
    issue()
    if OPT["prof"]:
        g.I("s_memtime s[6:7]")
        g.I("s_waitcnt lgkmcnt(0)")
        g.I("s_sub_u32 s6, s6, s4")
        g.I("s_add_u32 s98, s98, s6")
    g.I("s_add_u32 s63, s63, 1")
    g.I("s_cmp_le_u32 s63, 7")
    g.I(f"s_cbranch_scc1 {loop}")

def p2_decode(g):
    g.I(f"s_mul_i32 s50, {sI}, 86")
    g.I("s_lshr_b32 s50, s50, 8")
    g.I("s_mul_i32 s51, s50, 3")
    g.I(f"s_sub_u32 s51, {sI}, s51")
    g.I("s_mul_i32 s52, s51, 5")
    g.I(f"s_lshl_b32 s56, {sXCD}, 4")
    g.I("s_add_u32 s52, s52, s56")
    g.I(f"s_and_b32 s53, {sWAVE}, 3")
    g.I(f"s_lshr_b32 s54, {sWAVE}, 2")
    g.I("s_mul_i32 s55, s54, 3")
    g.I("s_add_u32 s55, s55, s52")

VD2 = 78
def p2_dma_setup(g):
    g.I("v_lshrrev_b32 v5, 3, v0")
    g.I("v_and_b32 v6, 7, v0")
    g.I("v_lshrrev_b32 v2, 4, v0")
    g.I("v_lshlrev_b32 v7, 1, v2")
    g.I("v_xor_b32 v7, v6, v7")
    g.I("v_mul_u32_u24 v8, 1280, v5")
    g.I("s_lshl_b32 s56, s50, 7")
    g.I("v_add_u32 v8, s56, v8")
    g.I(f"v_lshl_add_u32 v{VD2}, v7, 4, v8")
    g.I(f"s_mul_i32 s57, s53, {12*32*1280}")
    g.I(f"s_add_u32 s63, s57, {12*32*1280}")
    if OPT["rot2"]:
        g.I(f"s_mul_i32 s56, s50, {32*1280}")
        g.I("s_add_u32 s57, s57, s56")
    g.I("s_lshl_b32 s58, s53, 12")
    g.I(f"s_mul_i32 s59, s53, {160*1280}")
    g.I("s_mul_i32 s60, s53, 20480")
    g.I("s_cmp_ge_u32 s53, 2")
    g.I(f"s_cselect_b32 s56, {94208 - 2*20480}, 0")
    g.I("s_add_u32 s60, s60, s56")

def dma_w2(g, vm, sidx):
    for j in range(4):
        g.I(f"s_add_u32 m0, s58, {W2R[sidx] + j*1024}")
        g.I(f"s_add_u32 s56, s57, {j * 8 * 1280}")
        vm.issue(f"buffer_load_dwordx4 v{VD2}, {R4(SRD_W2)}, s56 offen lds", ("d", sidx))
    g.I(f"s_add_u32 s57, s57, {32*1280}")
    g.I("s_cmp_ge_u32 s57, s63")
    g.I(f"s_cselect_b32 s56, {12*32*1280}, 0")
    g.I("s_sub_u32 s57, s57, s56")

def warm_late(g, vm, skip):
    g.I("v_mul_u32_u24 v9, 1280, v0")
    g.I("s_lshl_b32 s56, s50, 7")
    g.I("v_add_u32 v9, s56, v9")
    g.I("v_cmp_gt_u32 vcc, 32, v0")
    g.I(f"v_mov_b32 v10, {BIG}")
    g.I("v_cndmask_b32 v10, v10, v9, vcc")
    g.I(f"s_add_u32 s6, s57, {skip*32*1280}")
    g.I("s_cmp_ge_u32 s6, s63")
    g.I(f"s_cselect_b32 s56, {12*32*1280}, 0")
    g.I("s_sub_u32 s6, s6, s56")
    for k in range(3):
        vm.issue(f"buffer_load_dword v11, v10, {R4(SRD_W2)}, s6 offen", ("warm", 0))
        g.I(f"s_add_u32 s6, s6, {32*1280}")
        g.I("s_cmp_ge_u32 s6, s63")
        g.I(f"s_cselect_b32 s56, {12*32*1280}, 0")
        g.I("s_sub_u32 s6, s6, s56")
    for k in range(3):
        g.I(f"s_add_u32 s56, s59, {k*64*1280}")
        vm.issue(f"buffer_load_dword v11, v9, {R4(SRD_WO)}, s56 offen", ("warm", 0))

def dma_wo(g, vm, j0, j1):
    for j in range(j0, j1):
        g.I(f"s_add_u32 m0, s60, {j*1024}")
        g.I(f"s_add_u32 s56, s59, {j*8*1280}")
        vm.issue(f"buffer_load_dwordx4 v{VD2}, {R4(SRD_WO)}, s56 offen lds", ("wo", 0))

def poll(g, vaddr, soff_imm, nlanes, tmp="v14"):
    loop = g.newlabel("Lpoll"); done = g.newlabel("Lpd")
    g.I("s_mov_b32 s4, 0")
    g.I(f"s_mov_b32 s5, {soff_imm}")
    mask = (1 << nlanes) - 1
    g.I(f"s_mov_b32 s7, {mask:#x}")
    g.L(loop)
    g.I(f"buffer_load_dword {tmp}, {vaddr}, {R4(SRD_WS)}, s5 offen{SC}")
    g.I("s_waitcnt vmcnt(0)")
    g.I(f"v_cmp_eq_u32 vcc, {sNONCE}, {tmp}")
    g.I("s_and_b32 s6, vcc_lo, s7")
    g.I("s_cmp_eq_u32 s6, s7")
    g.I(f"s_cbranch_scc1 {done}")
    g.I("s_add_u32 s4, s4, 1")
    g.I(f"s_cmp_lt_u32 s4, {SPIN_MAX}")
    g.I("s_sleep 1")
    g.I(f"s_cbranch_scc1 {loop}")
    g.L(done)

ACC = 128
def acc(t, rt): return ACC + (2 * t + rt) * 4
KVA = 68

def warmups(g, typ):
    l1, l2, l3, le = [g.newlabel("Lwu") for _ in range(4)]
    g.I(f"v_mov_b32 v25, {BIG}")
    g.I("s_cmp_eq_u32 s52, 1"); g.I(f"s_cbranch_scc1 {l1}")
    g.I("s_cmp_eq_u32 s52, 2"); g.I(f"s_cbranch_scc1 {l2}")
    g.I("s_cmp_eq_u32 s52, 3"); g.I(f"s_cbranch_scc1 {l3}")
    g.I("s_getpc_b64 s[4:5]")
    g.L("Lpc_" + typ)
    g.I(f"s_sub_u32 s4, s4, Lpc_{typ}-{KNAME}")
    g.I("s_subb_u32 s5, s5, 0")
    g.I("v_and_b32 v26, 15, v0")
    g.I(f"s_lshl_b32 s6, {sI}, 4")
    g.I("v_add_u32 v26, s6, v26")
    g.I("v_lshlrev_b32 v26, 7, v26")
    g.I(f"v_min_u32 v26, Lcode_end-{KNAME}-4, v26")
    if OPT["codepf"]:
        g.I(f"global_load_dword v24, v26, s[4:5]")
    else:
        g.I(f"buffer_load_dword v24, v25, {R4(SRD_WS)}, 0 offen")
    g.I(f"buffer_load_dword v24, v25, {R4(SRD_WS)}, 0 offen")
    g.I(f"s_branch {le}")
    g.L(l1)
    g.I("v_lshlrev_b32 v26, 7, v0")
    g.I("v_cmp_gt_u32 vcc, 60, v0")
    g.I("v_cndmask_b32 v27, v25, v26, vcc")
    if not OPT["mall"]:
        g.I("v_mov_b32 v27, v25")
    g.I(f"s_mul_i32 s6, s2, {60*128}")
    g.I(f"buffer_load_dword v24, v27, {R4(SRD_W2)}, s6 offen")
    g.I("v_cmp_gt_u32 vcc, 25, v0")
    g.I("v_cndmask_b32 v27, v25, v26, vcc")
    if not OPT["mall"]:
        g.I("v_mov_b32 v27, v25")
    g.I(f"s_mul_i32 s6, s2, {25*128}")
    g.I(f"buffer_load_dword v24, v27, {R4(SRD_WO)}, s6 offen")
    g.I(f"s_branch {le}")
    g.L(l2)
    g.I("v_lshlrev_b32 v26, 21, v0")
    g.I(f"v_min_u32 v26, {BIG}, v26")
    if not OPT["tlb"]:
        g.I("v_mov_b32 v26, v25")
    g.I(f"buffer_load_dword v24, v26, {R4(SRD_WS)}, 0 offen")
    g.I(f"buffer_load_dword v24, v26, {R4(SRD_OUT)}, 0 offen")
    g.I(f"s_branch {le}")
    g.L(l3)
    g.I(f"buffer_load_dword v24, v25, {R4(SRD_WS)}, 0 offen")
    g.I(f"buffer_load_dword v24, v25, {R4(SRD_WS)}, 0 offen")
    g.L(le)

def p1_compute(g, typ):
    g.C(f"==== P1 compute type {typ}")
    g.I("s_waitcnt lgkmcnt(0)")
    srds_p1(g)
    srds_rest(g)
    lab = g.newlabel("Lnn")
    g.I(f"s_or_b32 s50, s2, {sWAVE}")
    g.I("s_cmp_lg_u32 s50, 0")
    g.I(f"s_cbranch_scc1 {lab}")
    g.I("s_memrealtime s[50:51]")
    g.I("s_waitcnt lgkmcnt(0)")
    g.I("s_or_b32 s50, s50, 1")
    g.I("v_mov_b32 v5, s50")
    g.I("v_mov_b32 v6, 0")
    g.I(f"global_store_dword v6, v5, s[80:81]{SC}")
    g.L(lab)
    g.I("v_mov_b32 v66, 0")
    g.I("v_mov_b32 v65, 0")
    g.I("v_and_b32 v1, 15, v0")
    g.I("v_lshrrev_b32 v2, 4, v0")
    g.I("v_bfe_u32 v3, v0, 2, 2")
    g.I("v_and_b32 v4, 3, v0")
    g.I("v_lshrrev_b32 v5, 1, v1")
    g.I("v_xor_b32 v5, v2, v5")
    g.I("v_lshlrev_b32 v5, 4, v5")
    g.I("v_lshl_add_u32 v5, v1, 7, v5")
    g.I(f"s_lshl_b32 s50, {sWAVE}, 12")
    g.I("v_add_u32 v48, s50, v5")
    g.I("v_xor_b32 v49, 64, v48")
    g.I("v_lshrrev_b32 v5, 1, v2")
    g.I("v_lshlrev_b32 v5, 4, v5")
    g.I("v_and_b32 v6, 1, v2")
    g.I("v_lshl_add_u32 v5, v6, 2, v5")
    g.I("v_add_u32 v5, v5, v3")
    g.I("v_mul_u32_u24 v50, 160, v5")
    g.I("v_lshl_add_u32 v50, v4, 3, v50")
    g.I("v_lshrrev_b32 v7, 1, v3")
    g.I("v_lshlrev_b32 v7, 1, v7")
    g.I("v_lshl_add_u32 v7, v6, 2, v7")
    g.I("v_lshrrev_b32 v8, 1, v4")
    g.I("v_and_b32 v9, 1, v4")
    g.I("v_lshlrev_b32 v9, 3, v9")
    g.I("v_lshl_add_u32 v9, v5, 7, v9")
    for t in range(4):
        g.I(f"v_add_u32 v10, {2*t}, v8")
        g.I("v_xor_b32 v10, v10, v7")
        g.I(f"v_lshl_add_u32 v{51+t}, v10, 4, v9")
    for k in range(7):
        g.I(f"v_mov_b32 v{56+k}, v{48+k}")
    if typ == "A":
        tiles = [("kv", t, "N") for t in range(5)] + [("kv", 5 + t, "N") for t in range(5)] + [("h", t, "T") for t in range(4)]
    else:
        tiles = [("kv", t, "T") for t in range(5)] + [("h", t, "T") for t in range(8)] + [("g", 0, "T")]
        g.I("v_lshlrev_b32 v63, 4, v2")
        g.I(f"v_add_u32 v63, {GW_LDS}, v63")
        if OPT["rot"]:
            rot_c0(g, "s3")
            g.I("s_lshl_b32 s5, s3, 7")
            g.I("v_add_u32 v63, s5, v63")
            g.I("s_mov_b32 s55, s3")
    g.I(f"s_mov_b32 s50, {EPS6}")
    for t in range(14):
        for rt in range(2):
            for i in range(4):
                g.I(f"v_mov_b32 v{acc(t,rt)+i}, " + ("s50" if t < 5 else "0"))
    if typ == "A":
        g.I(f"s_mul_i32 s50, {sWAVE}, {KS_W}")
        g.I(f"s_add_u32 s50, s50, {KS_LDS}")
        g.I(f"v_mov_b32 v15, {KS_LDS + 4*KS_W}")
        for t in range(5):
            g.I(f"v_lshl_add_u32 v5, v2, 2, {16*t}")
            g.I("v_mul_u32_u24 v6, 205, v5")
            g.I(f"v_lshrrev_b32 v{16+t}, 12, v6")
            g.I(f"v_mul_u32_u24 v6, 20, v{16+t}")
            g.I("v_sub_u32 v6, v5, v6")
            g.I(f"v_mul_u32_u24 v7, {105*16}, v{16+t}")
            g.I("v_lshl_add_u32 v7, v6, 2, v7")
            g.I(f"v_add_u32 v{21+t}, s50, v7")
            g.I(f"v_add_u32 v5, {16*t}, v1")
            g.I("v_mul_u32_u24 v6, 205, v5")
            g.I(f"v_lshrrev_b32 v{26+t}, 12, v6")
            g.I(f"v_mul_u32_u24 v6, 20, v{26+t}")
            g.I("v_sub_u32 v6, v5, v6")
            g.I(f"v_mul_u32_u24 v{31+t}, 80, v6")
        for t in range(5):
            for tp in range(5):
                if abs(t - tp) <= 1:
                    idx = 2 * t + tp
                    g.I(f"v_add_u32 v5, v{21+t}, v{31+tp}")
                    g.I(f"v_cmp_eq_u32 vcc, v{16+t}, v{26+tp}")
                    g.I(f"v_cndmask_b32 v{KVA+idx}, v15, v5, vcc")
        g.I("v_cmp_eq_u32 vcc, 0, v1")
        for t in range(5):
            g.I(f"v_add_u32 v5, {20*80}, v{21+t}")
            g.I(f"v_cndmask_b32 v{KVA+13+t}, v15, v5, vcc")
    XF = lambda ks, rt: 16 + (2 * ks + rt) * 4
    WF = lambda n: 86 + (n % 7) * 4
    R10 = 16384
    RH = 36864 if typ == "A" else 28672
    lk = LgkmTracker(g)
    NS = 2 * len(tiles)
    steps = [(ks, ti) for ks in range(2) for ti in range(len(tiles))]
    def rd_x(ks):
        if not OPT["xlds"]: return
        for rt in range(2):
            lk.issue(f"ds_read_b128 {vr(XF(ks,rt))}, v{56+ks} offset:{rt*2048}", ("x", ks))
    def rd_w(n, half):
        if not OPT["xlds"]: return
        ks, ti = steps[n % NS]
        kind, t, _ = tiles[ti]
        w = WF(n)
        tag = ("w", n % NS)
        if kind == "kv":
            off = R10 + ks * 5120 + half * 1280 + 32 * (t % 5) + (10240 if t >= 5 else 0)
            lk.issue(f"ds_read_b64_tr_b16 {vr(w + 2*half, 2)}, v58 offset:{off}", tag)
        elif kind == "h":
            off = RH + (t // 4) * 8192 + ks * 4096 + half * 1024
            lk.issue(f"ds_read_b64_tr_b16 {vr(w + 2*half, 2)}, v{59 + (t % 4)} offset:{off}", tag)
        else:
            if half == 0:
                lk.issue(f"ds_read_b128 {vr(w)}, v63 offset:{ks*64}", tag)
    D = 6
    assert NS % 7 == 0
    g.I("s_mov_b32 s50, 0")
    g.I("s_mov_b32 s51, 0")
    stamp(g, 1)
    g.I("s_barrier")
    rd_x(0)
    for n in range(D):
        rd_w(n, 0); rd_w(n, 1)
    loop = g.newlabel("Lp1"); last = g.newlabel("Lp1last")
    def mf(n, rt):
        ks, ti = steps[n]
        kind, t, ori = tiles[ti]
        a = acc(ti, rt)
        if not OPT["xmfma"]:
            return
        if ori == "N":
            g.I(f"v_mfma_f32_16x16x32_bf16 {vr(a)}, {vr(XF(ks,rt))}, {vr(WF(n))}, {vr(a)}")
        else:
            g.I(f"v_mfma_f32_16x16x32_bf16 {vr(a)}, {vr(WF(n))}, {vr(XF(ks,rt))}, {vr(a)}")
    g.L(loop)
    q_at_loop = list(lk.q)
    NB = NS - D
    BAR = NB + 2
    bwork = []
    bwork.append([f"s_add_u32 s51, s51, {STAGE}", f"s_cmp_ge_u32 s51, {3*STAGE}", f"s_cselect_b32 s52, {3*STAGE}, 0", "s_sub_u32 s51, s51, s52"])
    for k in range(7):
        bwork.append([f"v_add_u32 v{56+k}, s51, v{48+k}"])
    if typ == "B":
        bwork.append(["v_add_u32 v63, 128, v63"])
        if OPT["rot"]:
            bwork.append(["s_add_u32 s55, s55, 1", "s_cmp_eq_u32 s55, 10", "s_cselect_b32 s52, 1280, 0", "s_cselect_b32 s55, 0, s55", "v_subrev_u32 v63, s52, v63"])
    pend = []
    for n in range(NS):
        ks, ti = steps[n]
        if n == NB:
            g.I("s_add_u32 s50, s50, 1")
            g.I("s_cmp_eq_u32 s50, 10")
            g.I(f"s_cbranch_scc1 {last}")
        if n == BAR:
            in_loop_extras(g)
            lk.drain()
            if OPT["prof"]:
                g.I("s_memtime s[4:5]")
                g.I("s_waitcnt lgkmcnt(0)")
            g.I("s_barrier")
            if OPT["prof"]:
                g.I("s_memtime s[6:7]")
                g.I("s_waitcnt lgkmcnt(0)")
                g.I("s_sub_u32 s6, s6, s4")
                g.I("s_add_u32 s94, s94, s6")
            rd_x(0)
            pend = [(m, h) for m in range(NS, NS + D) for h in range(2)]
        if ti == 0:
            lk.wait(("x", ks))
        if n < BAR:
            lk.wait(("w", n))
        for rt in range(2):
            mf(n, rt)
            if n < NB:
                rd_w(n + D, rt)
            elif n < BAR:
                for _ in range(3):
                    if bwork:
                        for x in bwork.pop(0):
                            g.I(x)
            else:
                cnt = 2 if (n - BAR) < 2 else 1
                for _ in range(cnt):
                    if pend:
                        m, h = pend[0]
                        if (m - 7) < n or ((m - 7) == n and rt == 1 and False):
                            pend.pop(0); rd_w(m, h)
        if n == 6:
            rd_x(1)
    assert not bwork
    for m, h in pend:
        rd_w(m, h)
    assert lk.q == q_at_loop, (lk.q, q_at_loop)
    g.I(f"s_branch {loop}")
    g.L(last)
    g.I("s_waitcnt lgkmcnt(0)")
    for n in range(NB, NS):
        for rt in range(2):
            mf(n, rt)
    stamp(g, 2)

def in_loop_extras(g):
    l1 = g.newlabel("Lx")
    g.I(f"s_lshl_b32 s53, {sWAVE}, 4")
    g.I("s_add_u32 s53, s53, s50")
    g.I("s_cmp_lg_u32 s53, 6")
    g.I(f"s_cbranch_scc1 {l1}")
    g.I("v_mov_b32 v66, 0")
    g.I(f"global_load_dword v65, v66, s[80:81]{SC}")
    g.L(l1)

def phi(g, reg, tmp):
    g.I(f"v_mul_f32 {tmp}, s51, {reg}")
    g.I(f"v_exp_f32_e64 {tmp}, {tmp} clamp")
    g.I(f"v_max_f32 {reg}, s50, {reg}")
    g.I(f"v_add_f32 {reg}, {reg}, {tmp}")

def store_h(g, tiles_idx, kb0_s):
    g.I(f"s_lshl_b32 s53, {sRB}, 3")
    g.I(f"s_lshl_b32 s54, {sWAVE}, 1")
    g.I("s_add_u32 s53, s53, s54")
    g.I("s_mul_i32 s53, s53, 48")
    g.I(f"s_add_u32 s53, s53, {kb0_s}")
    g.I("s_lshl_b32 s53, s53, 10")
    g.I("v_lshlrev_b32 v1, 4, v0")
    for kbl in range(len(tiles_idx) // 2):
        for rt in range(2):
            a0 = acc(tiles_idx[2*kbl], rt); a1 = acc(tiles_idx[2*kbl+1], rt)
            d = 16 + ((kbl * 2 + rt) % 4) * 4
            g.I(f"v_cvt_pk_bf16_f32 v{d}, v{a0}, v{a0+1}")
            g.I(f"v_cvt_pk_bf16_f32 v{d+1}, v{a0+2}, v{a0+3}")
            g.I(f"v_cvt_pk_bf16_f32 v{d+2}, v{a1}, v{a1+1}")
            g.I(f"v_cvt_pk_bf16_f32 v{d+3}, v{a1+2}, v{a1+3}")
            for j in range(4):
                g.I(f"v_pk_max_i16 v{d+j}, v{d+j}, 0")
            g.I(f"s_add_u32 s54, s53, {H_OFF + rt*48*1024 + kbl*1024}")
            g.I(f"buffer_store_dwordx4 {vr(d)}, v1, {R4(SRD_WS)}, s54 offen{SC}")

def nonce_to_lds(g):
    lab = g.newlabel("Lnz"); loop = g.newlabel("Lnzl"); ok = g.newlabel("Lnzok")
    g.I(f"s_cmp_lg_u32 {sWAVE}, 0")
    g.I(f"s_cbranch_scc1 {lab}")
    g.I("s_mov_b32 s52, 0")
    g.I("s_waitcnt vmcnt(0)")
    g.L(loop)
    g.I(f"v_readfirstlane_b32 {sNONCE}, v65")
    g.I(f"s_cmp_lg_u32 {sNONCE}, 0")
    g.I(f"s_cbranch_scc1 {ok}")
    g.I(f"global_load_dword v65, v66, s[80:81]{SC}")
    g.I("s_add_u32 s52, s52, 1")
    g.I(f"s_cmp_lt_u32 s52, {SPIN_MAX}")
    g.I("s_waitcnt vmcnt(0)")
    g.I(f"s_cbranch_scc1 {loop}")
    g.L(ok)
    g.I(f"v_mov_b32 v66, {NONCE_LDS}")
    g.I("ds_write_b32 v66, v65")
    g.L(lab)

def p1_epilogue_A(g):
    g.C("==== P1 epilogue A")
    g.I(f"s_mov_b32 s50, {EPS6}")
    g.I(f"s_mov_b32 s51, {LOG2E}")
    g.I(f"s_lshl_b32 s52, {sA}, 1")
    store_h(g, [10, 11, 12, 13], "s52")
    KF = lambda t: 86 + 4 * t
    VF = lambda t: 106 + 4 * t
    for t in range(5):
        for rt in range(2):
            for i in range(4):
                phi(g, f"v{acc(t,rt)+i}", f"v{2 + i}")
        for rt in range(2):
            a = acc(t, rt)
            g.I(f"v_cvt_pk_bf16_f32 v{KF(t)+2*rt}, v{a}, v{a+1}")
            g.I(f"v_cvt_pk_bf16_f32 v{KF(t)+2*rt+1}, v{a+2}, v{a+3}")
    nonce_to_lds(g)
    g.I("s_waitcnt vmcnt(0) lgkmcnt(0)")
    g.I("s_barrier")
    publish_flag(g, "H")
    for t in range(5):
        for rt in range(2):
            a = acc(5 + t, rt)
            g.I(f"v_cvt_pk_bf16_f32 v{VF(t)+2*rt}, v{a}, v{a+1}")
            g.I(f"v_cvt_pk_bf16_f32 v{VF(t)+2*rt+1}, v{a+2}, v{a+3}")
    for j in range(4):
        g.I(f"v_mov_b32 v{32+j}, 0x3f803f80")
    P = lambda idx: ACC + 4 * idx
    for t in range(5):
        for tp in range(5):
            if abs(t - tp) <= 1:
                g.I(f"v_mfma_f32_16x16x32_bf16 {vr(P(2*t+tp))}, {vr(KF(t))}, {vr(VF(tp))}, 0")
    for t in range(5):
        g.I(f"v_mfma_f32_16x16x32_bf16 {vr(P(13+t))}, {vr(KF(t))}, v[32:35], 0")
    for idx in range(18):
        g.I(f"ds_write_b128 v{KVA+idx}, {vr(P(idx))}")
    g.I("s_waitcnt lgkmcnt(0)")
    g.I("s_barrier")
    g.I(f"s_lshl_b32 s52, {sWAVE}, 6")
    g.I("v_add_u32 v5, s52, v0")
    g.I("v_lshlrev_b32 v5, 4, v5")
    g.I(f"v_add_u32 v6, {KS_LDS}, v5")
    g.I(f"v_add_u32 v7, 4096, v5")
    g.I(f"v_cmp_gt_u32 vcc, {420*16}, v7")
    g.I(f"v_mov_b32 v8, {BIG}")
    g.I("v_cndmask_b32 v7, v8, v7, vcc")
    g.I(f"v_add_u32 v9, 4096, v6")
    g.I("v_cndmask_b32 v9, v6, v9, vcc")
    for rnd in range(2):
        for w in range(4):
            g.I(f"ds_read_b128 {vr(16 + 16*rnd + 4*w)}, v{6 if rnd == 0 else 9} offset:{w*KS_W}")
    g.I(f"s_lshl_b32 s52, {sA}, 4")
    g.I(f"s_add_u32 s52, s52, {sRB}")
    g.I(f"s_mul_i32 s52, s52, {KVP_STRIDE}")
    g.I(f"s_add_u32 s52, s52, {KVP_OFF}")
    g.I("s_waitcnt lgkmcnt(0)")
    for rnd in range(2):
        b = 16 + 16 * rnd
        for j in range(4):
            g.I(f"v_add_f32 v{b+j}, v{b+j}, v{b+4+j}")
            g.I(f"v_add_f32 v{b+8+j}, v{b+8+j}, v{b+12+j}")
        for j in range(4):
            g.I(f"v_add_f32 v{b+j}, v{b+j}, v{b+8+j}")
        g.I(f"buffer_store_dwordx4 {vr(b)}, v{5 if rnd == 0 else 7}, {R4(SRD_WS)}, s52 offen{SC}")
    stamp(g, 3)

def p1_epilogue_B(g):
    g.C("==== P1 epilogue B")
    g.I(f"s_mov_b32 s50, {EPS6}")
    g.I(f"s_mov_b32 s51, {LOG2E}")
    g.I(f"s_lshl_b32 s52, {sA}, 2")
    g.I("s_add_u32 s52, s52, 16")
    store_h(g, list(range(5, 13)), "s52")
    QD = lambda t, rt: 86 + (2 * t + rt) * 2
    for t in range(5):
        for rt in range(2):
            a = acc(t, rt)
            for i in range(4):
                phi(g, f"v{a+i}", f"v{2 + i}")
            d = QD(t, rt)
            g.I(f"v_cvt_pk_bf16_f32 v{d}, v{a}, v{a+1}")
            g.I(f"v_cvt_pk_bf16_f32 v{d+1}, v{a+2}, v{a+3}")
    nonce_to_lds(g)
    g.I("s_waitcnt vmcnt(0) lgkmcnt(0)")
    g.I("s_barrier")
    publish_flag(g, "H")
    g.I("v_and_b32 v1, 15, v0")
    g.I("v_lshrrev_b32 v2, 4, v0")
    g.I("v_lshlrev_b32 v1, 4, v1")
    g.I("v_lshrrev_b32 v3, 1, v2")
    g.I("v_lshl_add_u32 v1, v3, 8, v1")
    g.I("v_and_b32 v3, 1, v2")
    g.I("v_lshl_add_u32 v1, v3, 3, v1")
    g.I(f"s_lshl_b32 s52, {sRB}, 3")
    g.I(f"s_lshl_b32 s53, {sWAVE}, 1")
    g.I("s_add_u32 s52, s52, s53")
    g.I("s_mul_i32 s52, s52, 20480")
    g.I(f"s_mul_i32 s53, {sA}, 2560")
    g.I("s_add_u32 s52, s52, s53")
    g.I(f"s_add_u32 s52, s52, {PQ_OFF}")
    for t in range(5):
        for rt in range(2):
            d = QD(t, rt)
            g.I(f"s_add_u32 s53, s52, {rt*20480 + t*512}")
            g.I(f"buffer_store_dwordx2 {vr(d,2)}, v1, {R4(SRD_WS)}, s53 offen{SC}")
    skip = g.newlabel("Lng")
    g.I(f"s_cmp_lg_u32 {sA}, 0")
    g.I(f"s_cbranch_scc1 {skip}")
    g.I("v_and_b32 v1, 15, v0")
    g.I("v_lshlrev_b32 v1, 2, v1")
    g.I("v_cmp_gt_u32 vcc, 16, v0")
    g.I(f"v_mov_b32 v6, {BIG}")
    g.I("v_cndmask_b32 v1, v6, v1, vcc")
    g.I(f"s_lshl_b32 s52, {sRB}, 7")
    g.I(f"s_lshl_b32 s53, {sWAVE}, 5")
    g.I("s_add_u32 s52, s52, s53")
    g.I("s_lshl_b32 s52, s52, 2")
    g.I(f"s_add_u32 s52, s52, {G_OFF}")
    for rt in range(2):
        a = acc(13, rt)
        g.I(f"v_mul_f32 v2, s51, v{a}")
        g.I("v_exp_f32_e64 v2, -v2")
        g.I("v_add_f32 v2, 1.0, v2")
        g.I(f"v_rcp_f32 v{8+rt}, v2")
        g.I(f"s_add_u32 s53, s52, {rt*64}")
        g.I(f"buffer_store_dword v{8+rt}, v1, {R4(SRD_WS)}, s53 offen{SC}")
    g.L(skip)
    g.I("s_barrier")
    stamp(g, 3)

def flag_lane0(g):
    g.I(f"v_mov_b32 v5, {sNONCE}")
    g.I("v_mov_b32 v6, 0")
    g.I("v_cmp_eq_u32 vcc, 0, v0")
    g.I(f"v_mov_b32 v7, {BIG}")
    g.I("v_cndmask_b32 v6, v7, v6, vcc")

def pub_p2(g):
    def f():
        la, lb = g.newlabel("Lpub"), g.newlabel("Lpub")
        g.I(f"s_bitcmp1_b32 {sI}, 1")
        g.I(f"s_cbranch_scc1 {lb}")
        publish_flag(g, "K", "s4", "s5")
        g.I(f"s_branch {la}")
        g.L(lb)
        publish_flag(g, "Q", "s4", "s5")
        g.L(la)
    return f

def publish_flag(g, kind, t0="s52", t1="s53"):
    lab = g.newlabel("Lfl")
    g.I(f"s_cmp_lg_u32 {sWAVE}, 0")
    g.I(f"s_cbranch_scc1 {lab}")
    flag_lane0(g)
    if kind == "H":
        g.I(f"s_lshr_b32 {t0}, {sXCD}, 1")
        g.I(f"s_lshl_b32 {t0}, {t0}, 2")
        g.I(f"s_and_b32 {t1}, {sI}, 3")
        g.I(f"s_add_u32 {t0}, {t0}, {t1}")
        g.I(f"s_lshl_b32 {t0}, {t0}, 2")
        g.I(f"s_lshl_b32 {t1}, {sRB}, 8")
        g.I(f"s_add_u32 {t0}, {t0}, {t1}")
        g.I(f"s_add_u32 {t0}, {t0}, {HF_OFF}")
    elif kind == "K":
        g.I(f"s_lshl_b32 {t0}, {sA}, 8")
        g.I(f"s_lshl_b32 {t1}, {sRB}, 2")
        g.I(f"s_add_u32 {t0}, {t0}, {t1}")
        g.I(f"s_add_u32 {t0}, {t0}, {KF_OFF}")
    else:
        g.I(f"s_lshl_b32 {t0}, {sRB}, 8")
        g.I(f"s_lshl_b32 {t1}, {sA}, 2")
        g.I(f"s_add_u32 {t0}, {t0}, {t1}")
        g.I(f"s_add_u32 {t0}, {t0}, {QF_OFF}")
    g.I(f"buffer_store_dword v5, v6, {R4(SRD_WS)}, {t0} offen{SC}")
    g.L(lab)

def read_nonce(g):
    g.I(f"v_mov_b32 v5, {NONCE_LDS}")
    g.I("ds_read_b32 v5, v5")
    g.I("s_waitcnt lgkmcnt(0)")
    g.I(f"v_readfirstlane_b32 {sNONCE}, v5")

def reducer(g):
    g.C("==== kv reducer")
    g.I(f"s_lshl_b32 s50, {sXCD}, 1")
    g.I(f"s_add_u32 s50, s50, {sI}")
    g.I("s_sub_u32 s50, s50, 30")
    g.I(f"s_lshl_b32 s51, {sWAVE}, 6")
    g.I("v_add_u32 v1, s51, v0")
    g.I("v_cmp_le_u32 vcc, 192, v1")
    g.I("v_cndmask_b32 v2, 0, 1, vcc")
    g.I("v_mul_u32_u24 v3, 192, v2")
    g.I("v_sub_u32 v3, v1, v3")
    g.I("v_cmp_le_u32 vcc, 96, v3")
    g.I("v_cndmask_b32 v4, 0, 1, vcc")
    g.I("v_mul_u32_u24 v5, 96, v4")
    g.I("v_sub_u32 v5, v3, v5")
    g.I("v_lshrrev_b32 v6, 5, v5")
    g.I("v_bfe_u32 v7, v5, 1, 4")
    g.I("v_and_b32 v8, 1, v5")
    g.I("v_lshl_add_u32 v9, v6, 1, v8")
    g.I("v_sub_u32 v9, v9, v2")
    g.I("v_lshrrev_b32 v10, 2, v7")
    g.I("v_and_b32 v11, 3, v7")
    g.I("v_mul_u32_u24 v10, 5, v10")
    g.I("v_add_u32 v12, v10, v11")
    g.I("v_add_u32 v13, 4, v10")
    g.I("v_cmp_eq_u32 vcc, 1, v11")
    g.I("v_cndmask_b32 v13, v13, 20, vcc")
    g.I("v_cmp_eq_u32 vcc, 1, v4")
    g.I("v_cndmask_b32 v12, v12, v13, vcc")
    g.I("s_and_b32 s51, s50, 1")
    g.I("s_lshl_b32 s51, s51, 1")
    g.I("v_add_u32 v16, s51, v2")
    g.I("v_mul_u32_u24 v16, 105, v16")
    g.I("v_mul_u32_u24 v15, 5, v12")
    g.I("v_add3_u32 v16, v16, v15, v9")
    g.I("v_lshlrev_b32 v16, 4, v16")
    g.I(f"v_mov_b32 v18, {BIG}")
    g.I("v_cmp_gt_u32 vcc, 5, v9")
    g.I("v_cndmask_b32 v16, v18, v16, vcc")
    g.I("v_mul_u32_u24 v15, v4, v11")
    g.I("v_cmp_gt_u32 vcc, 2, v15")
    g.I("v_cndmask_b32 v16, v18, v16, vcc")
    g.I("v_cmp_gt_u32 vcc, 384, v1")
    g.I("v_cndmask_b32 v16, v18, v16, vcc")
    g.I("v_mul_u32_u24 v17, 1536, v2")
    g.I("v_lshl_add_u32 v17, v3, 3, v17")
    g.I("v_cndmask_b32 v17, v18, v17, vcc")
    lab = g.newlabel("Lrp")
    g.I(f"s_cmp_lg_u32 {sWAVE}, 4")
    g.I(f"s_cbranch_scc1 {lab}")
    g.I("v_lshlrev_b32 v19, 2, v0")
    g.I("s_lshr_b32 s51, s50, 1")
    g.I("s_lshl_b32 s51, s51, 8")
    g.I("v_add_u32 v19, s51, v19")
    g.I("v_cmp_gt_u32 vcc, 16, v0")
    g.I("v_cndmask_b32 v19, v18, v19, vcc")
    poll(g, "v19", KF_OFF, 16)
    g.L(lab)
    stamp(g, 4)
    g.I("s_barrier")
    g.I("s_lshr_b32 s51, s50, 1")
    g.I(f"s_mul_i32 s51, s51, {16*KVP_STRIDE}")
    g.I(f"s_add_u32 s51, s51, {KVP_OFF}")
    for rb in range(16):
        g.I(f"s_add_u32 s52, s51, {rb*KVP_STRIDE}")
        g.I(f"buffer_load_dwordx4 {vr(32+4*rb)}, v16, {R4(SRD_WS)}, s52 offen{SC}")
    for rb in range(1, 16):
        g.I(f"s_waitcnt vmcnt({15-rb})")
        for j in range(4):
            g.I(f"v_add_f32 v{32+j}, v{32+j}, v{32+4*rb+j}")
    g.I("v_cvt_pk_bf16_f32 v20, v32, v33")
    g.I("v_cvt_pk_bf16_f32 v21, v34, v35")
    g.I(f"s_mul_i32 s52, s50, {2*KVF_STRIDE}")
    g.I(f"s_add_u32 s52, s52, {KVF_OFF}")
    g.I(f"buffer_store_dwordx2 v[20:21], v17, {R4(SRD_WS)}, s52 offen{SC}")
    g.I("s_waitcnt vmcnt(0)")
    g.I("s_barrier")
    lab = g.newlabel("Lrf")
    g.I(f"s_cmp_lg_u32 {sWAVE}, 0")
    g.I(f"s_cbranch_scc1 {lab}")
    g.I(f"v_mov_b32 v5, {sNONCE}")
    g.I("v_mov_b32 v6, 0")
    g.I("v_cmp_eq_u32 vcc, 0, v0")
    g.I("v_cndmask_b32 v6, v18, v6, vcc")
    g.I("s_lshl_b32 s52, s50, 2")
    g.I(f"s_add_u32 s52, s52, {FF_OFF}")
    g.I(f"buffer_store_dword v5, v6, {R4(SRD_WS)}, s52 offen{SC}")
    g.L(lab)
    stamp(g, 5)

def p2_body(g, nr, isL, vm, post_bp=None):
    g.C(f"==== P2 body nr={nr} L={isL}")
    ACC2 = 208
    A2 = lambda rt, ct: ACC2 + (rt * 4 + ct) * 4
    NAB = 3
    AB = lambda b, rt: 16 + (b * 3 + rt) * 4
    BF = lambda b, ct: (80 if b == 0 else 52) + ct * 4
    WA = [68 + k for k in range(10)]
    VK = 79
    VB = lambda ct: 96 + ct
    VA = 100
    VG = [101, 102, 103]
    KV = lambda hh, T: 104 + (hh * 2 + T) * 4
    PQ = lambda b, hh: (168 if b == 0 else 16) + hh * 4
    DD = lambda b, T: (200 if b == 0 else 92) + T * 4
    VAL = 48
    PK = 64
    WF = lambda k: 80 + (k % 3) * 4
    lk = LgkmTracker(g)
    g.I("v_and_b32 v1, 15, v0")
    g.I("v_lshrrev_b32 v2, 4, v0")
    g.I("v_bfe_u32 v3, v0, 2, 2")
    g.I("v_and_b32 v4, 3, v0")
    g.I(f"v_lshlrev_b32 v{VA}, 4, v0")
    g.I(f"v_mov_b32 v5, {BIG}")
    g.I("v_cmp_gt_u32 vcc, 48, v0")
    g.I(f"v_cndmask_b32 v{VK}, v5, v{VA}, vcc")
    g.I("v_and_b32 v6, 1, v2")
    g.I("v_lshrrev_b32 v7, 1, v3")
    g.I("v_lshlrev_b32 v7, 1, v7")
    g.I("v_lshl_add_u32 v7, v6, 2, v7")
    g.I("v_lshl_add_u32 v8, v2, 2, v3")
    g.I("v_and_b32 v9, 1, v4")
    g.I("v_lshlrev_b32 v9, 3, v9")
    g.I("v_lshl_add_u32 v9, v8, 7, v9")
    g.I("s_lshl_b32 s56, s53, 12")
    g.I("v_add_u32 v9, s56, v9")
    g.I("v_lshrrev_b32 v8, 1, v4")
    for ct in range(4):
        g.I(f"v_add_u32 v12, {2*ct}, v8")
        g.I("v_xor_b32 v12, v12, v7")
        g.I(f"v_lshl_add_u32 v{VB(ct)}, v12, 4, v9")
    VBH = lambda ct: 160 + ct
    for ct in range(4):
        g.I(f"v_add_u32 v{VBH(ct)}, 0x10000, v{VB(ct)}")
    VBH2 = lambda ct: 164 + ct
    for ct in range(4):
        g.I(f"v_add_u32 v{VBH2(ct)}, 0x20000, v{VB(ct)}")
    for rt in range(nr):
        for ct in range(4):
            for i in range(4):
                g.I(f"v_mov_b32 v{A2(rt,ct)+i}, 0")
    g.I("v_mul_u32_u24 v12, 5, v2")
    g.I("s_mul_i32 s56, s53, 20480")
    g.I("s_cmp_ge_u32 s53, 2")
    g.I(f"s_cselect_b32 s61, {94208 - 2*20480}, 0")
    g.I("s_add_u32 s56, s56, s61")
    g.I("v_lshlrev_b32 v13, 3, v4")
    g.I("v_add_u32 v13, s56, v13")
    for n in range(5):
        for half in range(2):
            g.I(f"v_add_u32 v14, {8*n + 4*half}, v3")
            g.I("v_mul_u32_u24 v15, 52, v14")
            g.I("v_lshrrev_b32 v15, 8, v15")
            g.I("v_mul_u32_u24 v15, 15, v15")
            g.I("v_add3_u32 v14, v14, v15, v12")
            g.I("v_bfe_u32 v15, v14, 1, 2")
            g.I("v_lshlrev_b32 v15, 5, v15")
            g.I("v_lshl_add_u32 v14, v14, 7, v15")
            g.I(f"v_add_u32 v{WA[2*n+half]}, v14, v13")
    g.I("s_mul_i32 s3, s55, 48")
    g.I("s_mul_i32 s56, s53, 12")
    g.I("s_add_u32 s3, s3, s56")
    g.I("s_lshl_b32 s3, s3, 10")
    if OPT["rot2"]:
        g.I("s_lshl_b32 s61, s50, 10")
    else:
        g.I("s_mov_b32 s61, 0")
    g.I("s_mul_i32 s62, s55, 20480")
    g.I("s_mul_i32 s56, s53, 5120")
    g.I("s_add_u32 s62, s62, s56")
    if isL:
        lab = g.newlabel("Lhp")
        g.I(f"s_cmp_lg_u32 {sWAVE}, 4")
        g.I(f"s_cbranch_scc1 {lab}")
        g.I("v_lshrrev_b32 v12, 4, v0")
        g.I("v_lshlrev_b32 v12, 8, v12")
        g.I("v_and_b32 v13, 15, v0")
        g.I("v_lshl_add_u32 v12, v13, 2, v12")
        g.I(f"s_lshl_b32 s56, {sXCD}, 9")
        g.I("v_add_u32 v12, s56, v12")
        g.I("v_cmp_gt_u32 vcc, 32, v0")
        g.I(f"v_mov_b32 v13, {BIG}")
        g.I("v_cndmask_b32 v12, v13, v12, vcc")
        poll(g, "v12", HF_OFF, 32)
        g.L(lab)
        vm.wait(("d", 6))
    else:
        g.I("s_waitcnt vmcnt(0)")
    stamp(g, 4)
    g.I("s_barrier")
    if post_bp:
        post_bp()
    if isL:
        dma_w2(g, vm, 7); dma_w2(g, vm, 8)
    def load_a(sidx):
        g.I("s_add_u32 s6, s3, s61")
        for rt in range(nr):
            g.I(f"s_add_u32 s56, s6, {H_OFF + rt*48*1024}")
            vm.issue(f"buffer_load_dwordx4 {vr(AB(sidx % NAB, rt))}, v{VA}, {R4(SRD_WS)}, s56 offen{SC}", ("a", sidx))
        g.I("s_add_u32 s61, s61, 1024")
        g.I(f"s_cmp_ge_u32 s61, {12*1024}")
        g.I(f"s_cselect_b32 s56, {12*1024}, 0")
        g.I("s_sub_u32 s61, s61, s56")
    def rd_b(sidx):
        base = W2R[sidx]
        for ct in range(4):
            for half in range(2):
                off = base + half * 2048
                if off + 16384 <= 65536:
                    reg = VB(ct)
                elif off >= 131072:
                    reg = VBH2(ct); off -= 131072
                elif off >= 65536:
                    reg = VBH(ct); off -= 65536
                else:
                    reg = VB(ct)
                lk.issue(f"ds_read_b64_tr_b16 {vr(BF(sidx % 2, ct) + 2*half, 2)}, v{reg} offset:{off}", ("b", sidx, ct))
    for sidx in range(NAB):
        load_a(sidx)
    g.I("v_lshlrev_b32 v11, 2, v1")
    def load_g():
        g.I("s_lshl_b32 s6, s55, 6")
        for rt in range(nr):
            g.I(f"s_add_u32 s56, s6, {G_OFF + rt*64}")
            vm.issue(f"buffer_load_dword v{VG[rt]}, v11, {R4(SRD_WS)}, s56 offen{SC}", ("g", 0))
    def load_pq(rt, h0=0, h1=8):
        for hh in range(h0, h1):
            g.I(f"s_add_u32 s56, s62, {PQ_OFF + rt*20480 + ((5*hh) >> 1)*256}")
            vm.issue(f"buffer_load_dwordx4 {vr(PQ(rt % 2, hh))}, v{VK}, {R4(SRD_WS)}, s56 offen{SC}", ("pq", rt, hh))
    rd_b(0)
    for sidx in range(12):
        if OPT["prof2"] and sidx in (0, 2, 3, 5, 6, 8, 10):
            lk.drain()
            stamp(g, {0: 1, 2: 2, 3: 3, 5: 4, 6: 5, 8: 6, 10: 7}[sidx], force=True)
        if sidx == 3:
            g.I("s_barrier")
            if isL:
                for k in (9, 10, 11):
                    dma_w2(g, vm, k)
        if sidx == 6:
            if isL:
                vm.wait(("d", 8))
            g.I("s_barrier")
        if sidx == 8:
            if isL:
                vm.wait(("d", 11))
                lab = g.newlabel("Lqp")
                g.I(f"s_cmp_lg_u32 {sWAVE}, 4")
                g.I(f"s_cbranch_scc1 {lab}")
                g.I("v_lshrrev_b32 v12, 3, v0")
                g.I("v_lshlrev_b32 v12, 8, v12")
                g.I("v_and_b32 v13, 7, v0")
                g.I("v_lshl_add_u32 v12, v13, 2, v12")
                g.I(f"s_lshl_b32 s56, {sXCD}, 9")
                g.I("v_add_u32 v12, s56, v12")
                g.I("v_cmp_gt_u32 vcc, 16, v0")
                g.I(f"v_mov_b32 v13, {BIG}")
                g.I("v_cndmask_b32 v12, v13, v12, vcc")
                poll(g, "v12", QF_OFF, 16)
                g.L(lab)
            g.I("s_barrier")
        nxt = sidx + 1
        pre = nxt < 12 and not (nxt == 7 and False)
        if nxt < 12:
            rd_b(nxt)
        vm.wait(("a", sidx))
        for ct in range(4):
            lk.wait(("b", sidx, ct))
            for rt in range(nr):
                a = A2(rt, ct)
                g.I(f"v_mfma_f32_16x16x32_bf16 {vr(a)}, {vr(BF(sidx % 2, ct))}, {vr(AB(sidx % NAB, rt))}, {vr(a)}")
        if sidx + NAB < 12:
            load_a(sidx + NAB)
        if sidx == 8:
            load_pq(0)
            load_g()
            if isL:
                dma_wo(g, vm, 0, 20)
    stamp(g, 5)
    lk.drain()
    g.I("v_lshlrev_b32 v12, 2, v0")
    g.I("s_lshl_b32 s56, s53, 4")
    g.I("v_add_u32 v12, s56, v12")
    g.I("v_cmp_gt_u32 vcc, 4, v0")
    g.I(f"v_mov_b32 v13, {BIG}")
    g.I("v_cndmask_b32 v12, v13, v12, vcc")
    poll(g, "v12", FF_OFF, 4)
    vm.q = []
    g.I("s_lshl_b32 s61, s53, 3")
    g.I(f"s_mul_i32 s61, s61, {KVF_STRIDE}")
    for hh in range(8):
        for T in range(2):
            g.I(f"s_add_u32 s56, s61, {KVF_OFF + hh*KVF_STRIDE + T*768}")
            vm.issue(f"buffer_load_dwordx4 {vr(KV(hh,T))}, v{VK}, {R4(SRD_WS)}, s56 offen{SC}", ("kv", hh))
    if nr > 1:
        load_pq(1)
    for rt in range(nr):
        g.I(f"v_sub_f32 v12, 1.0, v{VG[rt]}")
        for ct in range(4):
            for i in range(4):
                g.I(f"v_mul_f32 v{A2(rt,ct)+i}, v12, v{A2(rt,ct)+i}")
    g.I("s_barrier")
    stamp(g, 6)
    g.I(f"s_mov_b32 s61, {EPS6}")
    wcount = [0]
    def omfma(rt, hh):
        b = hh % 2
        vm.wait(("kv", hh))
        vm.wait(("pq", rt, hh))
        g.I(f"v_mfma_f32_16x16x32_bf16 {vr(DD(b,0))}, {vr(KV(hh,0))}, {vr(PQ(rt % 2, hh))}, 0")
        g.I(f"v_mfma_f32_16x16x32_bf16 {vr(DD(b,1))}, {vr(KV(hh,1))}, {vr(PQ(rt % 2, hh))}, 0")
    def norm(rt, hh):
        b = hh % 2
        d1, d2 = DD(b, 0), DD(b, 1)
        g.I(f"v_add_f32 v12, s61, v{d2+1}")
        g.I("v_rcp_f32 v12, v12")
        g.I(f"v_mul_f32 v12, v12, v{VG[rt]}")
        for j in range(5):
            v = 5 * hh + j
            src = d1 + j if j < 4 else d2
            g.I(f"v_mul_f32 v{VAL + (v % 16)}, v12, v{src}")
    def rd_wo(n, ct, k):
        for half in range(2):
            if ct == 0:
                ar = WA[2*n+half]
            else:
                ar = 13 + half
                g.I(f"v_xor_b32 v{ar}, {ct << 5}, v{WA[2*n+half]}")
            lk.issue(f"ds_read_b64_tr_b16 {vr(WF(k) + 2*half, 2)}, v{ar}", ("wf", k))
    def kstep(rt, n):
        base = VAL + (8 * n) % 16
        k0 = wcount[0]
        rd_wo(n, 0, k0); rd_wo(n, 1, k0 + 1); rd_wo(n, 2, k0 + 2)
        for j in range(4):
            g.I(f"v_cvt_pk_bf16_f32 v{PK+j}, v{base+2*j}, v{base+2*j+1}")
        for ct in range(4):
            k = k0 + ct
            lk.wait(("wf", k))
            a = A2(rt, ct)
            g.I(f"v_mfma_f32_16x16x32_bf16 {vr(a)}, {vr(WF(k))}, {vr(PK)}, {vr(a)}")
            if ct == 0:
                rd_wo(n, 3, k0 + 3)
        wcount[0] += 4
    for rt in range(nr):
        omfma(rt, 0)
        next_n = 0
        for hh in range(8):
            if hh + 1 < 8:
                omfma(rt, hh + 1)
            norm(rt, hh)
            done_vals = 5 * (hh + 1)
            while next_n < 5 and 8 * (next_n + 1) <= done_vals:
                kstep(rt, next_n); next_n += 1
        if rt + 2 < nr:
            load_pq(rt + 2)
    stamp(g, 7)

def p2_final(g):
    A2 = lambda rt, ct: 208 + (rt * 4 + ct) * 4
    def base_of(dst, w_s):
        g.I(f"s_mul_i32 {dst}, {w_s}, 9216")
        g.I(f"s_add_u32 {dst}, {dst}, 40960")
        g.I(f"s_cmp_ge_u32 {w_s}, 5")
        g.I(f"s_cselect_b32 s56, {135168 - 5*9216 - 40960}, 0")
        g.I(f"s_add_u32 {dst}, {dst}, s56")
    g.I("v_lshlrev_b32 v1, 4, v0")
    base_of("s57", sWAVE)
    g.I("v_add_u32 v2, s57, v1")
    g.I("v_and_b32 v3, 15, v0")
    g.I("v_mul_u32_u24 v3, 1280, v3")
    g.I("v_lshrrev_b32 v4, 4, v0")
    g.I("v_lshl_add_u32 v3, v4, 3, v3")
    g.I(f"s_mul_i32 s58, s55, {16*1280}")
    g.I("s_lshl_b32 s59, s50, 7")
    g.I("s_add_u32 s58, s58, s59")
    g.I("s_lshl_b32 s59, s53, 5")
    g.I("s_add_u32 s58, s58, s59")
    g.I("s_cmp_lt_u32 s51, 2")
    g.I("s_cselect_b32 s59, s54, 0")
    g.I("s_cmp_eq_u32 s59, 1")
    g.I(f"s_cselect_b32 s59, {BIG}, 0")
    g.I("v_add_u32 v5, s59, v3")
    labs = [g.newlabel("Lfk") for _ in range(4)]
    done = g.newlabel("Lfd")
    for kq in range(1, 4):
        g.I(f"s_cmp_eq_u32 s53, {kq}")
        g.I(f"s_cbranch_scc1 {labs[kq]}")
    for kq in range(4):
        g.L(labs[kq])
        others = [c for c in range(4) if c != kq]
        for rt in range(3):
            for k, ct in enumerate(others):
                g.I(f"ds_write_b128 v2, {vr(A2(rt, ct))} offset:{(rt*3 + k)*1024}")
        for k, src in enumerate(others):
            g.I("s_lshl_b32 s60, s54, 2")
            g.I(f"s_add_u32 s60, s60, {src}")
            base_of("s61", "s60")
            idx = kq if kq < src else kq - 1
            g.I(f"s_add_u32 s61, s61, {idx*1024}")
            g.I(f"v_add_u32 v{6+k}, s61, v1")
        g.I("s_waitcnt lgkmcnt(0)")
        g.I("s_barrier")
        for rt in range(3):
            for k in range(3):
                g.I(f"ds_read_b128 {vr(16 + (rt*3 + k)*4)}, v{6+k} offset:{rt*3*1024}")
        for rt in range(3):
            g.I(f"s_waitcnt lgkmcnt({6 - 3*rt})")
            a = A2(rt, kq)
            b = 16 + rt * 12
            for i in range(4):
                g.I(f"v_add_f32 v{b+i}, v{b+i}, v{b+4+i}")
                g.I(f"v_add_f32 v{a+i}, v{a+i}, v{b+8+i}")
            for i in range(4):
                g.I(f"v_add_f32 v{a+i}, v{a+i}, v{b+i}")
            g.I(f"v_cvt_pk_bf16_f32 v{b}, v{a}, v{a+1}")
            g.I(f"v_cvt_pk_bf16_f32 v{b+1}, v{a+2}, v{a+3}")
            g.I(f"s_add_u32 s56, s58, {rt*16*1280}")
            g.I(f"buffer_store_dwordx2 {vr(b,2)}, v{3 if rt < 2 else 5}, {R4(SRD_OUT)}, s56 offen")
        if kq < 3:
            g.I(f"s_branch {done}")
    g.L(done)

def kernel(g):
    end = "Lend"
    g.I("s_cmp_ge_u32 s2, 256")
    g.I(f"s_cbranch_scc1 {end}")
    g.I("s_load_dwordx16 s[64:79], s[0:1], 0")
    g.I("s_load_dwordx4 s[80:83], s[0:1], 64")
    if OPT["stamp"]:
        for k in range(8):
            g.I(f"s_mov_b32 s{84+2*k}, 0")
        g.I("s_memrealtime s[84:85]")
    g.I("v_lshrrev_b32 v1, 6, v0")
    g.I("v_and_b32 v0, 63, v0")
    g.I(f"v_readfirstlane_b32 {sWAVE}, v1")
    g.I(f"s_and_b32 {sXCD}, s2, 7")
    g.I(f"s_lshr_b32 {sI}, s2, 3")
    g.I(f"s_and_b32 {sRB}, {sXCD}, 1")
    g.I(f"s_lshl_b32 {sRB}, {sRB}, 3")
    g.I(f"s_lshr_b32 s50, {sI}, 2")
    g.I(f"s_add_u32 {sRB}, {sRB}, s50")
    g.I(f"s_lshr_b32 {sA}, {sXCD}, 1")
    g.I(f"s_lshl_b32 {sA}, {sA}, 1")
    g.I(f"s_and_b32 s50, {sI}, 1")
    g.I(f"s_add_u32 {sA}, {sA}, s50")
    g.I(f"s_mov_b32 {sNONCE}, 0")
    if OPT["prof"]:
        g.I("s_getreg_b32 s3, hwreg(HW_REG_XCC_ID)")
        g.I("s_and_b32 s3, s3, 15")
        g.I("s_add_u32 s92, s3, 1000")
    g.I(f"s_cmp_ge_u32 {sWAVE}, 4")
    g.I("s_cbranch_scc1 Lload")
    g.I(f"s_bitcmp1_b32 {sI}, 1")
    g.I("s_cbranch_scc1 LcB")
    p1_compute(g, "A")
    p1_epilogue_A(g)
    read_nonce(g)
    g.I("s_mov_b32 s7, 0")
    g.I("s_branch Lp2C")
    g.L("LcB")
    p1_compute(g, "B")
    p1_epilogue_B(g)
    read_nonce(g)
    g.L("Lp2C")
    def pub():
        la, lb = g.newlabel("Lpub"), g.newlabel("Lpub")
        g.I(f"s_bitcmp1_b32 {sI}, 1")
        g.I(f"s_cbranch_scc1 {lb}")
        save = None
        publish_flag(g, "K")
        g.I(f"s_branch {la}")
        g.L(lb)
        publish_flag(g, "Q")
        g.L(la)
    g.I(f"s_cmp_ge_u32 {sI}, 30")
    g.I("s_cbranch_scc1 LredC")
    p2_decode(g)
    vm = VmTracker(g)
    p2_body(g, 3, False, vm, post_bp=pub_p2(g))
    g.I("s_branch Lfin")
    g.L("LredC")
    g.I("s_waitcnt vmcnt(0)")
    g.I("s_barrier")
    pub()
    g.I("s_branch Lred")
    g.L("Lload")
    g.I(f"s_bitcmp1_b32 {sI}, 1")
    g.I("s_cbranch_scc1 LldB")
    p1_loader(g, "A")
    g.I("s_branch Lldtail")
    g.L("LldB")
    p1_loader(g, "B")
    g.L("Lldtail")
    g.I(f"s_cmp_ge_u32 {sI}, 30")
    g.I("s_cbranch_scc1 Lldred")
    p2_decode(g)
    p2_dma_setup(g)
    vmL = VmTracker(g)
    vmL.q = [("c", 8)] * 11 + [("c", 9)] * 11
    vmL.wait(("c", 8))
    g.I("s_barrier")
    dma_w2(g, vmL, 0); dma_w2(g, vmL, 1)
    vmL.wait(("c", 9))
    stamp(g, 3)
    g.I("s_barrier")
    for k in (2, 3, 4):
        dma_w2(g, vmL, k)
    g.I("s_barrier")
    dma_w2(g, vmL, 5); dma_w2(g, vmL, 6)
    read_nonce(g)
    g.I("s_barrier")
    l2 = "Lp2L2"
    g.I("s_cmp_lt_u32 s51, 2")
    g.I(f"s_cbranch_scc1 {l2}")
    vm3 = VmTracker(g); vm3.q = list(vmL.q)
    p2_body(g, 3, True, vm3)
    g.I("s_branch Lfin")
    g.L(l2)
    vm2 = VmTracker(g); vm2.q = list(vmL.q)
    p2_body(g, 2, True, vm2)
    g.L("Lfin")
    p2_final(g)
    g.I("s_branch Ldone")
    g.L("Lldred")
    g.I("s_waitcnt vmcnt(11)")
    g.I("s_barrier")
    g.I("s_waitcnt vmcnt(0)")
    g.I("s_barrier")
    g.I("s_barrier")
    read_nonce(g)
    g.I("s_barrier")
    g.I("s_barrier")
    g.L("Lred")
    reducer(g)
    g.L("Ldone")
    if OPT["stamp"]:
        g.I("s_waitcnt vmcnt(0)")
    stamp_flush(g)
    g.L(end)
    g.I("s_endpgm")
    g.L("Lcode_end")

def kd(name, vgpr, sgpr=102):
    return f""".p2align 6
.amdhsa_kernel {name}
  .amdhsa_next_free_vgpr {vgpr}
  .amdhsa_next_free_sgpr {sgpr}
  .amdhsa_accum_offset {vgpr}
  .amdhsa_group_segment_fixed_size 0
  .amdhsa_kernarg_size 80
  .amdhsa_user_sgpr_count 2
  .amdhsa_user_sgpr_kernarg_segment_ptr 1
  .amdhsa_system_sgpr_workgroup_id_x 1
.end_amdhsa_kernel
"""

HEADER = open("cdna_kernels/" + NAME + ".s.ref").read().split("; Override launch")[0]

def build():
    out = HEADER
    out += f"; @launch grid=(256,1,1) block=(512,1,1) lds={LDS_TOTAL}\n"
    out += '.amdgcn_target "amdgcn-amd-amdhsa--gfx950"\n.text\n'
    g = Gen()
    kernel(g)
    g.fix_hazards()
    for p in g.check_branches():
        print("BRANCH HAZARD:", p, file=sys.stderr)
    out += f".globl {KNAME}\n.p2align 8\n.type {KNAME},@function\n{KNAME}:\n" + g.text()
    out += '.section .rodata,"a"\n' + kd(KNAME, 256)
    return out

if __name__ == "__main__":
    args = sys.argv[1:]
    for a in list(args):
        if a.startswith("--"):
            k = a[2:]
            if k.startswith("no"):
                OPT[k[2:]] = False
            else:
                OPT[k] = True
            args.remove(a)
    path = args[0] if args else "v2.s"
    txt = build()
    open(path, "w").write(txt)
    print("wrote", path, len(txt), "bytes")
```

```python
import sys
from asmlib import Gen, LgkmTracker, VmTracker

NAME = "gated_mix__linear_attn_block__dense_activation_relu__prompt"
KNAME = NAME + "_kernel"
H_OFF = 0
PQ_OFF = 0x600000
G_OFF = 0x900000
KVP_OFF = 0x910000
KVP_STRIDE = 7168
KVF_OFF = 0xA00000
KVF_STRIDE = 1536
FL_OFF = 0xA10000
HF_OFF = FL_OFF
KF_OFF = FL_OFF + 0x2000
FF_OFF = FL_OFF + 0x4000
QF_OFF = FL_OFF + 0x6000
ST_OFF = 0xA80000
WS_USED = 0xB00000
STAGE = 45056
GW_LDS = 3 * STAGE
KS_LDS = GW_LDS + 1280
KS_W = 6720
NONCE_LDS = KS_LDS + 4 * KS_W + 16
LDS_TOTAL = 163840
W2R = [45056 + 16384*k for k in range(5)] + [0, 16384, 126976, 143360] + [45056, 61440, 77824]
WO_LDS = [0, 20480, 94208, 114688]
LOG2E = 0x3FB8AA3B
EPS6 = 0x358637BD
BIG = 0x40000000
SC = " sc1"
SPIN_MAX = 40000

OPT = dict(stamp=False, codepf=True, tlb=True, prof=False, rot=True, rot2=True, xdma=True, xlds=True, xmfma=True, warm2=False, mall=True, prof2=False, prof3=False, span=False)

SRD_X, SRD_QKV, SRD_W1, SRD_WS, SRD_GW, SRD_W2, SRD_WO, SRD_OUT = 8, 12, 16, 20, 24, 28, 32, 36
def R4(b): return f"s[{b}:{b+3}]"
sWAVE, sXCD, sI, sRB, sA, sNONCE = "s44", "s45", "s46", "s47", "s48", "s49"
def vr(b, n=4): return f"v[{b}:{b+n-1}]"

def stamp(g, k, force=False):
    if not OPT["stamp"]: return
    if (OPT["prof2"] or OPT["prof3"]) and not force: return
    if OPT["prof"] and k >= 4: return
    g.I(f"s_memrealtime s[{84+2*k}:{85+2*k}]")
    g.I("s_waitcnt lgkmcnt(0)")

def stamp_flush(g):
    if not OPT["stamp"]: return
    g.I("s_lshl_b32 s50, s2, 8")
    g.I(f"s_lshl_b32 s51, {sWAVE}, 5")
    g.I("s_add_u32 s50, s50, s51")
    g.I(f"s_add_u32 s50, s50, {ST_OFF}")
    g.I("v_mov_b32 v14, 0")
    for k in range(8):
        g.I(f"v_mov_b32 v15, s{84+2*k}")
        g.I(f"buffer_store_dword v15, v14, {R4(SRD_WS)}, s50 offen offset:{4*k}")

def srd(g, d, p, size):
    g.I(f"s_mov_b32 s{d}, s{p}")
    g.I(f"s_and_b32 s{d+1}, s{p+1}, 0xffff")
    g.I(f"s_mov_b32 s{d+2}, {size}")
    g.I(f"s_mov_b32 s{d+3}, 0x00020000")

def srds_p1(g):
    srd(g, SRD_X, 64, 2048 * 1280)
    srd(g, SRD_QKV, 66, 640 * 3840)
    srd(g, SRD_W1, 72, 640 * 3072)

def srds_rest(g):
    srd(g, SRD_WS, 82, WS_USED)
    srd(g, SRD_GW, 76, 1280)
    srd(g, SRD_W2, 74, 1536 * 1280)
    srd(g, SRD_WO, 68, 640 * 1280)
    srd(g, SRD_OUT, 78, 2048 * 1280)

def swap23(g, dst, src, t1, t2):
    g.I(f"v_and_b32 {t1}, 4, {src}")
    g.I(f"v_and_b32 {t2}, 8, {src}")
    g.I(f"v_and_b32 {dst}, 0x33, {src}")
    g.I(f"v_lshl_or_b32 {dst}, {t1}, 1, {dst}")
    g.I(f"v_lshrrev_b32 {t2}, 1, {t2}")
    g.I(f"v_or_b32 {dst}, {dst}, {t2}")

def rot_c0(g, dst):
    g.I(f"s_and_b32 {dst}, {sI}, 3")
    g.I(f"s_mul_i32 {dst}, {dst}, 3")
    g.I(f"s_lshr_b32 s4, {sI}, 2")
    g.I(f"s_add_u32 {dst}, {dst}, s4")
    g.I(f"s_cmp_ge_u32 {dst}, 10")
    g.I("s_cselect_b32 s4, 10, 0")
    g.I(f"s_sub_u32 {dst}, {dst}, s4")

def p1_loader(g, typ):
    g.C(f"==== P1 loader type {typ}")
    g.I(f"s_sub_u32 s52, {sWAVE}, 4")
    g.I("v_lshrrev_b32 v2, 3, v0")
    g.I("v_and_b32 v3, 7, v0")
    g.I("v_lshrrev_b32 v4, 4, v0")
    g.I(f"s_lshl_b32 s53, {sRB}, 2")
    g.I("s_add_u32 s53, s53, s52")
    g.I(f"s_mul_i32 s53, s53, {32*1280}")
    g.I("v_xor_b32 v5, v3, v4")
    g.I("v_lshlrev_b32 v5, 4, v5")
    g.I("v_mul_u32_u24 v6, 1280, v2")
    g.I("v_add_u32 v6, s53, v6")
    XO = [10, 11, 12, 13]
    g.I(f"v_add_u32 v{XO[0]}, v6, v5")
    g.I("v_xor_b32 v5, 64, v5")
    g.I(f"v_add_u32 v{XO[1]}, v6, v5")
    g.I(f"v_add_u32 v{XO[1]}, {8*1280}, v{XO[1]}")
    g.I(f"v_add_u32 v{XO[2]}, {16*1280}, v{XO[0]}")
    g.I(f"v_add_u32 v{XO[3]}, {16*1280}, v{XO[1]}")
    g.I("s_lshl_b32 s54, s52, 10")
    g.I("s_lshl_b32 s55, s52, 12")
    if OPT["rot"]:
        rot_c0(g, "s3")
        g.I("s_lshl_b32 s56, s3, 7")
        g.I(f"s_mul_i32 s57, s3, {64*3840}")
        g.I(f"s_mul_i32 s58, s3, {64*3072}")
    else:
        g.I("s_mov_b32 s56, 0")
        g.I("s_mov_b32 s57, 0")
        g.I("s_mov_b32 s58, 0")
    g.I("s_waitcnt lgkmcnt(0)")
    srd(g, SRD_X, 64, 2048 * 1280)
    def issue_x():
        for j in range(4):
            g.I(f"s_add_u32 m0, s55, {j*1024}")
            g.I(f"buffer_load_dwordx4 v{XO[j]}, {R4(SRD_X)}, s56 offen lds")
    issue_x()
    srd(g, SRD_QKV, 66, 640 * 3840)
    n10 = 5 if typ == "A" else 3
    QO = [14, 15, 16, 17, 18][:n10]
    g.I(f"s_mul_i32 s59, {sA}, 160")
    if typ == "A":
        g.I("s_add_u32 s59, s59, 1280")
    g.I("s_mov_b32 s60, 6554")
    g.I("s_mov_b32 s61, 3840")
    R10 = 16384
    RH = 36864 if typ == "A" else 28672
    for n in range(n10):
        g.I(f"s_add_u32 s62, s52, {4*n}")
        if typ == "A":
            g.I("s_cmp_ge_u32 s62, 10")
            g.I("s_cselect_b32 s63, 10, 0")
            g.I("s_cselect_b32 s50, 1280, 0")
            g.I("s_sub_u32 s62, s62, s63")
        g.I("s_lshl_b32 s62, s62, 6")
        g.I("v_add_u32 v5, s62, v0")
        g.I("v_mul_lo_u32 v6, v5, s60")
        g.I("v_lshrrev_b32 v6, 16, v6")
        g.I("v_mul_u32_u24 v7, 10, v6")
        g.I("v_sub_u32 v7, v5, v7")
        swap23(g, "v8", "v6", "v9", "v19")
        g.I("v_mul_lo_u32 v8, v8, s61")
        g.I("v_lshl_add_u32 v8, v7, 4, v8")
        if typ == "A":
            g.I("s_add_u32 s50, s50, s59")
            g.I(f"v_add_u32 v{QO[n]}, s50, v8")
        else:
            g.I(f"v_add_u32 v{QO[n]}, s59, v8")
            if n == 2:
                g.I("s_cmp_ge_u32 s52, 2")
                g.I(f"s_cselect_b32 s50, {BIG}, 0")
                g.I(f"v_add_u32 v{QO[n]}, s50, v{QO[n]}")
        g.I(f"s_add_u32 m0, s54, {R10 + 4096*n}")
        g.I(f"buffer_load_dwordx4 v{QO[n]}, {R4(SRD_QKV)}, s57 offen lds")
    srd(g, SRD_W1, 72, 640 * 3072)
    nH = 2 if typ == "A" else 4
    HO = [20, 21, 22, 23][:nH]
    g.I("v_lshlrev_b32 v5, 1, v4")
    g.I("v_xor_b32 v5, v3, v5")
    g.I("v_lshlrev_b32 v5, 4, v5")
    if typ == "A":
        g.I(f"s_lshl_b32 s59, {sA}, 7")
    else:
        g.I(f"s_lshl_b32 s59, {sA}, 8")
        g.I("s_add_u32 s59, s59, 1024")
    g.I("s_mov_b32 s61, 3072")
    for n in range(2):
        g.I(f"s_add_u32 s62, s52, {4*n}")
        g.I("s_lshl_b32 s62, s62, 3")
        g.I("v_add_u32 v6, s62, v2")
        swap23(g, "v8", "v6", "v9", "v19")
        g.I("v_mul_lo_u32 v8, v8, s61")
        g.I("v_add_u32 v8, v8, v5")
        g.I(f"v_add_u32 v{HO[n]}, s59, v8")
        if nH == 4:
            g.I(f"v_add_u32 v{HO[n+2]}, 128, v{HO[n]}")
    def issue_h():
        for n in range(nH):
            g.I(f"s_add_u32 m0, s54, {RH + 8192*(n//2) + 4096*(n % 2)}")
            g.I(f"buffer_load_dwordx4 v{HO[n]}, {R4(SRD_W1)}, s58 offen lds")
    def issue_q():
        for n in range(n10):
            g.I(f"s_add_u32 m0, s54, {R10 + 4096*n}")
            g.I(f"buffer_load_dwordx4 v{QO[n]}, {R4(SRD_QKV)}, s57 offen lds")
    issue_h()
    srds_rest(g)
    def advance():
        g.I("s_add_u32 s56, s56, 128")
        g.I(f"s_add_u32 s57, s57, {64*3840}")
        g.I(f"s_add_u32 s58, s58, {64*3072}")
        if OPT["rot"]:
            g.I("s_cmp_ge_u32 s56, 1280")
            g.I("s_cselect_b32 s56, 0, s56")
            g.I("s_cselect_b32 s57, 0, s57")
            g.I("s_cselect_b32 s58, 0, s58")
        g.I(f"s_add_u32 s54, s54, {STAGE}")
        g.I(f"s_add_u32 s55, s55, {STAGE}")
        g.I(f"s_cmp_ge_u32 s54, {3*STAGE}")
        g.I(f"s_cselect_b32 s62, {3*STAGE}, 0")
        g.I("s_sub_u32 s54, s54, s62")
        g.I("s_sub_u32 s55, s55, s62")
    def issue():
        advance()
        if OPT["xdma"]:
            issue_x(); issue_q(); issue_h()
    extra0 = 0
    if typ == "B":
        lab = g.newlabel("Lgw")
        g.I("s_cmp_lg_u32 s52, 0")
        g.I(f"s_cbranch_scc1 {lab}")
        g.I("v_lshlrev_b32 v5, 4, v0")
        g.I(f"s_mov_b32 m0, {GW_LDS}")
        g.I("v_add_u32 v6, 1024, v5")
        g.I(f"buffer_load_dwordx4 v5, {R4(SRD_GW)}, 0 offen lds")
        g.I(f"s_mov_b32 m0, {GW_LDS + 1024}")
        g.I("s_nop 0")
        g.I(f"buffer_load_dwordx4 v6, {R4(SRD_GW)}, 0 offen lds")
        g.L(lab)
    issue()
    stamp(g, 1)
    g.I("s_waitcnt vmcnt(11)")
    stamp(g, 2)
    g.I("s_barrier")
    issue()
    warmups(g, typ)
    g.I("s_waitcnt vmcnt(13)")
    g.I("s_barrier")
    issue()
    g.I("s_waitcnt vmcnt(13)")
    g.I("s_barrier")
    issue()
    g.I("s_mov_b32 s63, 3")
    loop = g.newlabel("Lld")
    g.L(loop)
    if OPT["prof"]:
        g.I("s_memtime s[4:5]")
        g.I("s_waitcnt lgkmcnt(0)")
    g.I("s_waitcnt vmcnt(11)")
    if OPT["prof"]:
        g.I("s_memtime s[6:7]")
        g.I("s_waitcnt lgkmcnt(0)")
        g.I("s_sub_u32 s4, s6, s4")
        g.I("s_add_u32 s94, s94, s4")
    g.I("s_barrier")
    if OPT["prof"]:
        g.I("s_memtime s[4:5]")
        g.I("s_waitcnt lgkmcnt(0)")
        g.I("s_sub_u32 s6, s4, s6")
        g.I("s_add_u32 s96, s96, s6")
    issue()
    if OPT["prof"]:
        g.I("s_memtime s[6:7]")
        g.I("s_waitcnt lgkmcnt(0)")
        g.I("s_sub_u32 s6, s6, s4")
        g.I("s_add_u32 s98, s98, s6")
    g.I("s_add_u32 s63, s63, 1")
    g.I("s_cmp_le_u32 s63, 7")
    g.I(f"s_cbranch_scc1 {loop}")

def p2_decode(g):
    g.I(f"s_mul_i32 s50, {sI}, 86")
    g.I("s_lshr_b32 s50, s50, 8")
    g.I("s_mul_i32 s51, s50, 3")
    g.I(f"s_sub_u32 s51, {sI}, s51")
    g.I("s_mul_i32 s52, s51, 5")
    g.I(f"s_lshl_b32 s56, {sXCD}, 4")
    g.I("s_add_u32 s52, s52, s56")
    g.I(f"s_and_b32 s53, {sWAVE}, 3")
    g.I(f"s_lshr_b32 s54, {sWAVE}, 2")
    g.I("s_mul_i32 s55, s54, 3")
    g.I("s_add_u32 s55, s55, s52")

VD2 = 78
def p2_dma_setup(g):
    g.I("v_lshrrev_b32 v5, 3, v0")
    g.I("v_and_b32 v6, 7, v0")
    g.I("v_lshrrev_b32 v2, 4, v0")
    g.I("v_lshlrev_b32 v7, 1, v2")
    g.I("v_xor_b32 v7, v6, v7")
    g.I("v_mul_u32_u24 v8, 1280, v5")
    g.I("s_lshl_b32 s56, s50, 7")
    g.I("v_add_u32 v8, s56, v8")
    g.I(f"v_lshl_add_u32 v{VD2}, v7, 4, v8")
    g.I(f"s_mul_i32 s57, s53, {12*32*1280}")
    g.I(f"s_add_u32 s63, s57, {12*32*1280}")
    if OPT["rot2"]:
        g.I(f"s_mul_i32 s56, s50, {32*1280}")
        g.I("s_add_u32 s57, s57, s56")
    g.I("s_lshl_b32 s58, s53, 12")
    g.I(f"s_mul_i32 s59, s53, {160*1280}")
    g.I("s_mul_i32 s60, s53, 20480")
    g.I("s_cmp_ge_u32 s53, 2")
    g.I(f"s_cselect_b32 s56, {94208 - 2*20480}, 0")
    g.I("s_add_u32 s60, s60, s56")

def dma_w2(g, vm, sidx):
    for j in range(4):
        g.I(f"s_add_u32 m0, s58, {W2R[sidx] + j*1024}")
        g.I(f"s_add_u32 s56, s57, {j * 8 * 1280}")
        vm.issue(f"buffer_load_dwordx4 v{VD2}, {R4(SRD_W2)}, s56 offen lds", ("d", sidx))
    g.I(f"s_add_u32 s57, s57, {32*1280}")
    g.I("s_cmp_ge_u32 s57, s63")
    g.I(f"s_cselect_b32 s56, {12*32*1280}, 0")
    g.I("s_sub_u32 s57, s57, s56")

def warm_late(g, vm, skip):
    g.I("v_mul_u32_u24 v9, 1280, v0")
    g.I("s_lshl_b32 s56, s50, 7")
    g.I("v_add_u32 v9, s56, v9")
    g.I("v_cmp_gt_u32 vcc, 32, v0")
    g.I(f"v_mov_b32 v10, {BIG}")
    g.I("v_cndmask_b32 v10, v10, v9, vcc")
    g.I(f"s_add_u32 s6, s57, {skip*32*1280}")
    g.I("s_cmp_ge_u32 s6, s63")
    g.I(f"s_cselect_b32 s56, {12*32*1280}, 0")
    g.I("s_sub_u32 s6, s6, s56")
    for k in range(3):
        vm.issue(f"buffer_load_dword v11, v10, {R4(SRD_W2)}, s6 offen", ("warm", 0))
        g.I(f"s_add_u32 s6, s6, {32*1280}")
        g.I("s_cmp_ge_u32 s6, s63")
        g.I(f"s_cselect_b32 s56, {12*32*1280}, 0")
        g.I("s_sub_u32 s6, s6, s56")
    for k in range(3):
        g.I(f"s_add_u32 s56, s59, {k*64*1280}")
        vm.issue(f"buffer_load_dword v11, v9, {R4(SRD_WO)}, s56 offen", ("warm", 0))

def dma_wo(g, vm, j0, j1):
    for j in range(j0, j1):
        g.I(f"s_add_u32 m0, s60, {j*1024}")
        g.I(f"s_add_u32 s56, s59, {j*8*1280}")
        vm.issue(f"buffer_load_dwordx4 v{VD2}, {R4(SRD_WO)}, s56 offen lds", ("wo", 0))

def poll(g, vaddr, soff_imm, nlanes, tmp="v14"):
    loop = g.newlabel("Lpoll"); done = g.newlabel("Lpd")
    g.I("s_mov_b32 s4, 0")
    g.I(f"s_mov_b32 s5, {soff_imm}")
    mask = (1 << nlanes) - 1
    g.I(f"s_mov_b32 s7, {mask:#x}")
    g.L(loop)
    g.I(f"buffer_load_dword {tmp}, {vaddr}, {R4(SRD_WS)}, s5 offen{SC}")
    g.I("s_waitcnt vmcnt(0)")
    g.I(f"v_cmp_eq_u32 vcc, {sNONCE}, {tmp}")
    g.I("s_and_b32 s6, vcc_lo, s7")
    g.I("s_cmp_eq_u32 s6, s7")
    g.I(f"s_cbranch_scc1 {done}")
    g.I("s_add_u32 s4, s4, 1")
    g.I(f"s_cmp_lt_u32 s4, {SPIN_MAX}")
    g.I("s_sleep 1")
    g.I(f"s_cbranch_scc1 {loop}")
    g.L(done)

ACC = 128
def acc(t, rt): return ACC + (2 * t + rt) * 4
KVA = 68

def warmups(g, typ):
    l1, l2, l3, le = [g.newlabel("Lwu") for _ in range(4)]
    g.I(f"v_mov_b32 v25, {BIG}")
    g.I("s_cmp_eq_u32 s52, 1"); g.I(f"s_cbranch_scc1 {l1}")
    g.I("s_cmp_eq_u32 s52, 2"); g.I(f"s_cbranch_scc1 {l2}")
    g.I("s_cmp_eq_u32 s52, 3"); g.I(f"s_cbranch_scc1 {l3}")
    g.I("s_getpc_b64 s[4:5]")
    g.L("Lpc_" + typ)
    g.I(f"s_sub_u32 s4, s4, Lpc_{typ}-{KNAME}")
    g.I("s_subb_u32 s5, s5, 0")
    g.I("v_and_b32 v26, 15, v0")
    g.I(f"s_lshl_b32 s6, {sI}, 4")
    g.I("v_add_u32 v26, s6, v26")
    g.I("v_lshlrev_b32 v26, 7, v26")
    g.I(f"v_min_u32 v26, Lcode_end-{KNAME}-4, v26")
    if OPT["codepf"]:
        g.I(f"global_load_dword v24, v26, s[4:5]")
    else:
        g.I(f"buffer_load_dword v24, v25, {R4(SRD_WS)}, 0 offen")
    g.I(f"buffer_load_dword v24, v25, {R4(SRD_WS)}, 0 offen")
    g.I(f"s_branch {le}")
    g.L(l1)
    g.I("v_lshlrev_b32 v26, 7, v0")
    g.I("v_cmp_gt_u32 vcc, 60, v0")
    g.I("v_cndmask_b32 v27, v25, v26, vcc")
    if not OPT["mall"]:
        g.I("v_mov_b32 v27, v25")
    g.I(f"s_mul_i32 s6, s2, {60*128}")
    g.I(f"buffer_load_dword v24, v27, {R4(SRD_W2)}, s6 offen")
    g.I("v_cmp_gt_u32 vcc, 25, v0")
    g.I("v_cndmask_b32 v27, v25, v26, vcc")
    if not OPT["mall"]:
        g.I("v_mov_b32 v27, v25")
    g.I(f"s_mul_i32 s6, s2, {25*128}")
    g.I(f"buffer_load_dword v24, v27, {R4(SRD_WO)}, s6 offen")
    g.I(f"s_branch {le}")
    g.L(l2)
    g.I("v_lshlrev_b32 v26, 21, v0")
    g.I(f"v_min_u32 v26, {BIG}, v26")
    if not OPT["tlb"]:
        g.I("v_mov_b32 v26, v25")
    g.I(f"buffer_load_dword v24, v26, {R4(SRD_WS)}, 0 offen")
    g.I(f"buffer_load_dword v24, v26, {R4(SRD_OUT)}, 0 offen")
    g.I(f"s_branch {le}")
    g.L(l3)
    g.I(f"buffer_load_dword v24, v25, {R4(SRD_WS)}, 0 offen")
    g.I(f"buffer_load_dword v24, v25, {R4(SRD_WS)}, 0 offen")
    g.L(le)

def p1_compute(g, typ):
    g.C(f"==== P1 compute type {typ}")
    g.I("s_waitcnt lgkmcnt(0)")
    srds_p1(g)
    srds_rest(g)
    lab = g.newlabel("Lnn")
    g.I(f"s_or_b32 s50, s2, {sWAVE}")
    g.I("s_cmp_lg_u32 s50, 0")
    g.I(f"s_cbranch_scc1 {lab}")
    g.I("s_memrealtime s[50:51]")
    g.I("s_waitcnt lgkmcnt(0)")
    g.I("s_or_b32 s50, s50, 1")
    g.I("v_mov_b32 v5, s50")
    g.I("v_mov_b32 v6, 0")
    g.I(f"global_store_dword v6, v5, s[80:81]{SC}")
    g.L(lab)
    g.I("v_mov_b32 v66, 0")
    g.I("v_mov_b32 v65, 0")
    g.I("v_and_b32 v1, 15, v0")
    g.I("v_lshrrev_b32 v2, 4, v0")
    g.I("v_bfe_u32 v3, v0, 2, 2")
    g.I("v_and_b32 v4, 3, v0")
    g.I("v_lshrrev_b32 v5, 1, v1")
    g.I("v_xor_b32 v5, v2, v5")
    g.I("v_lshlrev_b32 v5, 4, v5")
    g.I("v_lshl_add_u32 v5, v1, 7, v5")
    g.I(f"s_lshl_b32 s50, {sWAVE}, 12")
    g.I("v_add_u32 v48, s50, v5")
    g.I("v_xor_b32 v49, 64, v48")
    g.I("v_lshrrev_b32 v5, 1, v2")
    g.I("v_lshlrev_b32 v5, 4, v5")
    g.I("v_and_b32 v6, 1, v2")
    g.I("v_lshl_add_u32 v5, v6, 2, v5")
    g.I("v_add_u32 v5, v5, v3")
    g.I("v_mul_u32_u24 v50, 160, v5")
    g.I("v_lshl_add_u32 v50, v4, 3, v50")
    g.I("v_lshrrev_b32 v7, 1, v3")
    g.I("v_lshlrev_b32 v7, 1, v7")
    g.I("v_lshl_add_u32 v7, v6, 2, v7")
    g.I("v_lshrrev_b32 v8, 1, v4")
    g.I("v_and_b32 v9, 1, v4")
    g.I("v_lshlrev_b32 v9, 3, v9")
    g.I("v_lshl_add_u32 v9, v5, 7, v9")
    for t in range(4):
        g.I(f"v_add_u32 v10, {2*t}, v8")
        g.I("v_xor_b32 v10, v10, v7")
        g.I(f"v_lshl_add_u32 v{51+t}, v10, 4, v9")
    for k in range(7):
        g.I(f"v_mov_b32 v{56+k}, v{48+k}")
    if typ == "A":
        tiles = [("kv", t, "N") for t in range(5)] + [("kv", 5 + t, "N") for t in range(5)] + [("h", t, "T") for t in range(4)]
    else:
        tiles = [("kv", t, "T") for t in range(5)] + [("h", t, "T") for t in range(8)] + [("g", 0, "T")]
        g.I("v_lshlrev_b32 v63, 4, v2")
        g.I(f"v_add_u32 v63, {GW_LDS}, v63")
        if OPT["rot"]:
            rot_c0(g, "s3")
            g.I("s_lshl_b32 s5, s3, 7")
            g.I("v_add_u32 v63, s5, v63")
            g.I("s_mov_b32 s55, s3")
    g.I(f"s_mov_b32 s50, {EPS6}")
    for t in range(14):
        for rt in range(2):
            for i in range(4):
                g.I(f"v_mov_b32 v{acc(t,rt)+i}, " + ("s50" if t < 5 else "0"))
    if typ == "A":
        g.I(f"s_mul_i32 s50, {sWAVE}, {KS_W}")
        g.I(f"s_add_u32 s50, s50, {KS_LDS}")
        g.I(f"v_mov_b32 v15, {KS_LDS + 4*KS_W}")
        for t in range(5):
            g.I(f"v_lshl_add_u32 v5, v2, 2, {16*t}")
            g.I("v_mul_u32_u24 v6, 205, v5")
            g.I(f"v_lshrrev_b32 v{16+t}, 12, v6")
            g.I(f"v_mul_u32_u24 v6, 20, v{16+t}")
            g.I("v_sub_u32 v6, v5, v6")
            g.I(f"v_mul_u32_u24 v7, {105*16}, v{16+t}")
            g.I("v_lshl_add_u32 v7, v6, 2, v7")
            g.I(f"v_add_u32 v{21+t}, s50, v7")
            g.I(f"v_add_u32 v5, {16*t}, v1")
            g.I("v_mul_u32_u24 v6, 205, v5")
            g.I(f"v_lshrrev_b32 v{26+t}, 12, v6")
            g.I(f"v_mul_u32_u24 v6, 20, v{26+t}")
            g.I("v_sub_u32 v6, v5, v6")
            g.I(f"v_mul_u32_u24 v{31+t}, 80, v6")
        for t in range(5):
            for tp in range(5):
                if abs(t - tp) <= 1:
                    idx = 2 * t + tp
                    g.I(f"v_add_u32 v5, v{21+t}, v{31+tp}")
                    g.I(f"v_cmp_eq_u32 vcc, v{16+t}, v{26+tp}")
                    g.I(f"v_cndmask_b32 v{KVA+idx}, v15, v5, vcc")
        g.I("v_cmp_eq_u32 vcc, 0, v1")
        for t in range(5):
            g.I(f"v_add_u32 v5, {20*80}, v{21+t}")
            g.I(f"v_cndmask_b32 v{KVA+13+t}, v15, v5, vcc")
    XF = lambda ks, rt: 16 + (2 * ks + rt) * 4
    WF = lambda n: 86 + (n % 7) * 4
    R10 = 16384
    RH = 36864 if typ == "A" else 28672
    lk = LgkmTracker(g)
    NS = 2 * len(tiles)
    steps = [(ks, ti) for ks in range(2) for ti in range(len(tiles))]
    def rd_x(ks):
        if not OPT["xlds"]: return
        for rt in range(2):
            lk.issue(f"ds_read_b128 {vr(XF(ks,rt))}, v{56+ks} offset:{rt*2048}", ("x", ks))
    def rd_w(n, half):
        if not OPT["xlds"]: return
        ks, ti = steps[n % NS]
        kind, t, _ = tiles[ti]
        w = WF(n)
        tag = ("w", n % NS)
        if kind == "kv":
            off = R10 + ks * 5120 + half * 1280 + 32 * (t % 5) + (10240 if t >= 5 else 0)
            lk.issue(f"ds_read_b64_tr_b16 {vr(w + 2*half, 2)}, v58 offset:{off}", tag)
        elif kind == "h":
            off = RH + (t // 4) * 8192 + ks * 4096 + half * 1024
            lk.issue(f"ds_read_b64_tr_b16 {vr(w + 2*half, 2)}, v{59 + (t % 4)} offset:{off}", tag)
        else:
            if half == 0:
                lk.issue(f"ds_read_b128 {vr(w)}, v63 offset:{ks*64}", tag)
    D = 6
    assert NS % 7 == 0
    g.I("s_mov_b32 s50, 0")
    g.I("s_mov_b32 s51, 0")
    g.I("s_barrier")
    stamp(g, 1, force=True)
    rd_x(0)
    for n in range(D):
        rd_w(n, 0); rd_w(n, 1)
    loop = g.newlabel("Lp1"); last = g.newlabel("Lp1last")
    def mf(n, rt):
        ks, ti = steps[n]
        kind, t, ori = tiles[ti]
        a = acc(ti, rt)
        if not OPT["xmfma"]:
            return
        if ori == "N":
            g.I(f"v_mfma_f32_16x16x32_bf16 {vr(a)}, {vr(XF(ks,rt))}, {vr(WF(n))}, {vr(a)}")
        else:
            g.I(f"v_mfma_f32_16x16x32_bf16 {vr(a)}, {vr(WF(n))}, {vr(XF(ks,rt))}, {vr(a)}")
    g.L(loop)
    q_at_loop = list(lk.q)
    NB = NS - D
    BAR = NB + 2
    bwork = []
    bwork.append([f"s_add_u32 s51, s51, {STAGE}", f"s_cmp_ge_u32 s51, {3*STAGE}", f"s_cselect_b32 s52, {3*STAGE}, 0", "s_sub_u32 s51, s51, s52"])
    for k in range(7):
        bwork.append([f"v_add_u32 v{56+k}, s51, v{48+k}"])
    if typ == "B":
        bwork.append(["v_add_u32 v63, 128, v63"])
        if OPT["rot"]:
            bwork.append(["s_add_u32 s55, s55, 1", "s_cmp_eq_u32 s55, 10", "s_cselect_b32 s52, 1280, 0", "s_cselect_b32 s55, 0, s55", "v_subrev_u32 v63, s52, v63"])
    pend = []
    for n in range(NS):
        ks, ti = steps[n]
        if n == NB:
            g.I("s_add_u32 s50, s50, 1")
            g.I("s_cmp_eq_u32 s50, 10")
            g.I(f"s_cbranch_scc1 {last}")
        if n == BAR:
            in_loop_extras(g)
            lk.drain()
            if OPT["prof3"]:
                for slot, cval in ((2, 1), (3, 2), (4, 3), (5, 4), (6, 6), (7, 9)):
                    lb = g.newlabel("Lp3")
                    g.I(f"s_cmp_lg_u32 s50, {cval}")
                    g.I(f"s_cbranch_scc1 {lb}")
                    stamp(g, slot, force=True)
                    g.L(lb)
            if OPT["prof"]:
                g.I("s_memtime s[4:5]")
                g.I("s_waitcnt lgkmcnt(0)")
            g.I("s_barrier")
            if OPT["prof"]:
                g.I("s_memtime s[6:7]")
                g.I("s_waitcnt lgkmcnt(0)")
                g.I("s_sub_u32 s6, s6, s4")
                g.I("s_add_u32 s94, s94, s6")
            rd_x(0)
            pend = [(m, h) for m in range(NS, NS + D) for h in range(2)]
        if ti == 0:
            lk.wait(("x", ks))
        if n < BAR:
            lk.wait(("w", n))
        for rt in range(2):
            mf(n, rt)
            if n < NB:
                rd_w(n + D, rt)
            elif n < BAR:
                for _ in range(3):
                    if bwork:
                        for x in bwork.pop(0):
                            g.I(x)
            else:
                cnt = 2 if (n - BAR) < 2 else 1
                for _ in range(cnt):
                    if pend:
                        m, h = pend[0]
                        if (m - 7) < n or ((m - 7) == n and rt == 1 and False):
                            pend.pop(0); rd_w(m, h)
        if n == 6:
            rd_x(1)
    assert not bwork
    for m, h in pend:
        rd_w(m, h)
    assert lk.q == q_at_loop, (lk.q, q_at_loop)
    g.I(f"s_branch {loop}")
    g.L(last)
    g.I("s_waitcnt lgkmcnt(0)")
    for n in range(NB, NS):
        for rt in range(2):
            mf(n, rt)
    stamp(g, 2)

def in_loop_extras(g):
    l1 = g.newlabel("Lx")
    g.I(f"s_lshl_b32 s53, {sWAVE}, 4")
    g.I("s_add_u32 s53, s53, s50")
    g.I("s_cmp_lg_u32 s53, 6")
    g.I(f"s_cbranch_scc1 {l1}")
    g.I("v_mov_b32 v66, 0")
    g.I(f"global_load_dword v65, v66, s[80:81]{SC}")
    g.L(l1)

def phi(g, reg, tmp):
    g.I(f"v_mul_f32 {tmp}, s51, {reg}")
    g.I(f"v_exp_f32_e64 {tmp}, {tmp} clamp")
    g.I(f"v_max_f32 {reg}, s50, {reg}")
    g.I(f"v_add_f32 {reg}, {reg}, {tmp}")

def store_h(g, tiles_idx, kb0_s):
    g.I(f"s_lshl_b32 s53, {sRB}, 3")
    g.I(f"s_lshl_b32 s54, {sWAVE}, 1")
    g.I("s_add_u32 s53, s53, s54")
    g.I("s_mul_i32 s53, s53, 48")
    g.I(f"s_add_u32 s53, s53, {kb0_s}")
    g.I("s_lshl_b32 s53, s53, 10")
    g.I("v_lshlrev_b32 v1, 4, v0")
    for kbl in range(len(tiles_idx) // 2):
        for rt in range(2):
            a0 = acc(tiles_idx[2*kbl], rt); a1 = acc(tiles_idx[2*kbl+1], rt)
            d = 16 + ((kbl * 2 + rt) % 4) * 4
            g.I(f"v_cvt_pk_bf16_f32 v{d}, v{a0}, v{a0+1}")
            g.I(f"v_cvt_pk_bf16_f32 v{d+1}, v{a0+2}, v{a0+3}")
            g.I(f"v_cvt_pk_bf16_f32 v{d+2}, v{a1}, v{a1+1}")
            g.I(f"v_cvt_pk_bf16_f32 v{d+3}, v{a1+2}, v{a1+3}")
            for j in range(4):
                g.I(f"v_pk_max_i16 v{d+j}, v{d+j}, 0")
            g.I(f"s_add_u32 s54, s53, {H_OFF + rt*48*1024 + kbl*1024}")
            g.I(f"buffer_store_dwordx4 {vr(d)}, v1, {R4(SRD_WS)}, s54 offen{SC}")

def nonce_to_lds(g):
    lab = g.newlabel("Lnz"); loop = g.newlabel("Lnzl"); ok = g.newlabel("Lnzok")
    g.I(f"s_cmp_lg_u32 {sWAVE}, 0")
    g.I(f"s_cbranch_scc1 {lab}")
    g.I("s_mov_b32 s52, 0")
    g.I("s_waitcnt vmcnt(0)")
    g.L(loop)
    g.I(f"v_readfirstlane_b32 {sNONCE}, v65")
    g.I(f"s_cmp_lg_u32 {sNONCE}, 0")
    g.I(f"s_cbranch_scc1 {ok}")
    g.I(f"global_load_dword v65, v66, s[80:81]{SC}")
    g.I("s_add_u32 s52, s52, 1")
    g.I(f"s_cmp_lt_u32 s52, {SPIN_MAX}")
    g.I("s_waitcnt vmcnt(0)")
    g.I(f"s_cbranch_scc1 {loop}")
    g.L(ok)
    g.I(f"v_mov_b32 v66, {NONCE_LDS}")
    g.I("ds_write_b32 v66, v65")
    g.L(lab)

def p1_epilogue_A(g):
    g.C("==== P1 epilogue A")
    g.I(f"s_mov_b32 s50, {EPS6}")
    g.I(f"s_mov_b32 s51, {LOG2E}")
    g.I(f"s_lshl_b32 s52, {sA}, 1")
    store_h(g, [10, 11, 12, 13], "s52")
    KF = lambda t: 86 + 4 * t
    VF = lambda t: 106 + 4 * t
    for t in range(5):
        for rt in range(2):
            for i in range(4):
                phi(g, f"v{acc(t,rt)+i}", f"v{2 + i}")
        for rt in range(2):
            a = acc(t, rt)
            g.I(f"v_cvt_pk_bf16_f32 v{KF(t)+2*rt}, v{a}, v{a+1}")
            g.I(f"v_cvt_pk_bf16_f32 v{KF(t)+2*rt+1}, v{a+2}, v{a+3}")
    nonce_to_lds(g)
    g.I("s_waitcnt vmcnt(0) lgkmcnt(0)")
    g.I("s_barrier")
    publish_flag(g, "H")
    for t in range(5):
        for rt in range(2):
            a = acc(5 + t, rt)
            g.I(f"v_cvt_pk_bf16_f32 v{VF(t)+2*rt}, v{a}, v{a+1}")
            g.I(f"v_cvt_pk_bf16_f32 v{VF(t)+2*rt+1}, v{a+2}, v{a+3}")
    for j in range(4):
        g.I(f"v_mov_b32 v{32+j}, 0x3f803f80")
    P = lambda idx: ACC + 4 * idx
    for t in range(5):
        for tp in range(5):
            if abs(t - tp) <= 1:
                g.I(f"v_mfma_f32_16x16x32_bf16 {vr(P(2*t+tp))}, {vr(KF(t))}, {vr(VF(tp))}, 0")
    for t in range(5):
        g.I(f"v_mfma_f32_16x16x32_bf16 {vr(P(13+t))}, {vr(KF(t))}, v[32:35], 0")
    for idx in range(18):
        g.I(f"ds_write_b128 v{KVA+idx}, {vr(P(idx))}")
    g.I("s_waitcnt lgkmcnt(0)")
    g.I("s_barrier")
    g.I(f"s_lshl_b32 s52, {sWAVE}, 6")
    g.I("v_add_u32 v5, s52, v0")
    g.I("v_lshlrev_b32 v5, 4, v5")
    g.I(f"v_add_u32 v6, {KS_LDS}, v5")
    g.I(f"v_add_u32 v7, 4096, v5")
    g.I(f"v_cmp_gt_u32 vcc, {420*16}, v7")
    g.I(f"v_mov_b32 v8, {BIG}")
    g.I("v_cndmask_b32 v7, v8, v7, vcc")
    g.I(f"v_add_u32 v9, 4096, v6")
    g.I("v_cndmask_b32 v9, v6, v9, vcc")
    for rnd in range(2):
        for w in range(4):
            g.I(f"ds_read_b128 {vr(16 + 16*rnd + 4*w)}, v{6 if rnd == 0 else 9} offset:{w*KS_W}")
    g.I(f"s_lshl_b32 s52, {sA}, 4")
    g.I(f"s_add_u32 s52, s52, {sRB}")
    g.I(f"s_mul_i32 s52, s52, {KVP_STRIDE}")
    g.I(f"s_add_u32 s52, s52, {KVP_OFF}")
    g.I("s_waitcnt lgkmcnt(0)")
    for rnd in range(2):
        b = 16 + 16 * rnd
        for j in range(4):
            g.I(f"v_add_f32 v{b+j}, v{b+j}, v{b+4+j}")
            g.I(f"v_add_f32 v{b+8+j}, v{b+8+j}, v{b+12+j}")
        for j in range(4):
            g.I(f"v_add_f32 v{b+j}, v{b+j}, v{b+8+j}")
        g.I(f"buffer_store_dwordx4 {vr(b)}, v{5 if rnd == 0 else 7}, {R4(SRD_WS)}, s52 offen{SC}")
    stamp(g, 3)

def p1_epilogue_B(g):
    g.C("==== P1 epilogue B")
    g.I(f"s_mov_b32 s50, {EPS6}")
    g.I(f"s_mov_b32 s51, {LOG2E}")
    g.I(f"s_lshl_b32 s52, {sA}, 2")
    g.I("s_add_u32 s52, s52, 16")
    store_h(g, list(range(5, 13)), "s52")
    QD = lambda t, rt: 86 + (2 * t + rt) * 2
    for t in range(5):
        for rt in range(2):
            a = acc(t, rt)
            for i in range(4):
                phi(g, f"v{a+i}", f"v{2 + i}")
            d = QD(t, rt)
            g.I(f"v_cvt_pk_bf16_f32 v{d}, v{a}, v{a+1}")
            g.I(f"v_cvt_pk_bf16_f32 v{d+1}, v{a+2}, v{a+3}")
    nonce_to_lds(g)
    g.I("s_waitcnt vmcnt(0) lgkmcnt(0)")
    g.I("s_barrier")
    publish_flag(g, "H")
    g.I("v_and_b32 v1, 15, v0")
    g.I("v_lshrrev_b32 v2, 4, v0")
    g.I("v_lshlrev_b32 v1, 4, v1")
    g.I("v_lshrrev_b32 v3, 1, v2")
    g.I("v_lshl_add_u32 v1, v3, 8, v1")
    g.I("v_and_b32 v3, 1, v2")
    g.I("v_lshl_add_u32 v1, v3, 3, v1")
    g.I(f"s_lshl_b32 s52, {sRB}, 3")
    g.I(f"s_lshl_b32 s53, {sWAVE}, 1")
    g.I("s_add_u32 s52, s52, s53")
    g.I("s_mul_i32 s52, s52, 20480")
    g.I(f"s_mul_i32 s53, {sA}, 2560")
    g.I("s_add_u32 s52, s52, s53")
    g.I(f"s_add_u32 s52, s52, {PQ_OFF}")
    for t in range(5):
        for rt in range(2):
            d = QD(t, rt)
            g.I(f"s_add_u32 s53, s52, {rt*20480 + t*512}")
            g.I(f"buffer_store_dwordx2 {vr(d,2)}, v1, {R4(SRD_WS)}, s53 offen{SC}")
    skip = g.newlabel("Lng")
    g.I(f"s_cmp_lg_u32 {sA}, 0")
    g.I(f"s_cbranch_scc1 {skip}")
    g.I("v_and_b32 v1, 15, v0")
    g.I("v_lshlrev_b32 v1, 2, v1")
    g.I("v_cmp_gt_u32 vcc, 16, v0")
    g.I(f"v_mov_b32 v6, {BIG}")
    g.I("v_cndmask_b32 v1, v6, v1, vcc")
    g.I(f"s_lshl_b32 s52, {sRB}, 7")
    g.I(f"s_lshl_b32 s53, {sWAVE}, 5")
    g.I("s_add_u32 s52, s52, s53")
    g.I("s_lshl_b32 s52, s52, 2")
    g.I(f"s_add_u32 s52, s52, {G_OFF}")
    for rt in range(2):
        a = acc(13, rt)
        g.I(f"v_mul_f32 v2, s51, v{a}")
        g.I("v_exp_f32_e64 v2, -v2")
        g.I("v_add_f32 v2, 1.0, v2")
        g.I(f"v_rcp_f32 v{8+rt}, v2")
        g.I(f"s_add_u32 s53, s52, {rt*64}")
        g.I(f"buffer_store_dword v{8+rt}, v1, {R4(SRD_WS)}, s53 offen{SC}")
    g.L(skip)
    g.I("s_barrier")
    stamp(g, 3)

def flag_lane0(g, b=5):
    g.I(f"v_mov_b32 v{b}, {sNONCE}")
    g.I(f"v_mov_b32 v{b+1}, 0")
    g.I("v_cmp_eq_u32 vcc, 0, v0")
    g.I(f"v_mov_b32 v{b+2}, {BIG}")
    g.I(f"v_cndmask_b32 v{b+1}, v{b+2}, v{b+1}, vcc")

def pub_p2(g):
    def f():
        la, lb = g.newlabel("Lpub"), g.newlabel("Lpub")
        g.I(f"s_bitcmp1_b32 {sI}, 1")
        g.I(f"s_cbranch_scc1 {lb}")
        publish_flag(g, "K", "s4", "s5", 12)
        g.I(f"s_branch {la}")
        g.L(lb)
        publish_flag(g, "Q", "s4", "s5", 12)
        g.L(la)
    return f

def publish_flag(g, kind, t0="s52", t1="s53", b=5):
    lab = g.newlabel("Lfl")
    g.I(f"s_cmp_lg_u32 {sWAVE}, 0")
    g.I(f"s_cbranch_scc1 {lab}")
    flag_lane0(g, b)
    if kind == "H":
        g.I(f"s_lshr_b32 {t0}, {sXCD}, 1")
        g.I(f"s_lshl_b32 {t0}, {t0}, 2")
        g.I(f"s_and_b32 {t1}, {sI}, 3")
        g.I(f"s_add_u32 {t0}, {t0}, {t1}")
        g.I(f"s_lshl_b32 {t0}, {t0}, 2")
        g.I(f"s_lshl_b32 {t1}, {sRB}, 8")
        g.I(f"s_add_u32 {t0}, {t0}, {t1}")
        g.I(f"s_add_u32 {t0}, {t0}, {HF_OFF}")
    elif kind == "K":
        g.I(f"s_lshl_b32 {t0}, {sA}, 8")
        g.I(f"s_lshl_b32 {t1}, {sRB}, 2")
        g.I(f"s_add_u32 {t0}, {t0}, {t1}")
        g.I(f"s_add_u32 {t0}, {t0}, {KF_OFF}")
    else:
        g.I(f"s_lshl_b32 {t0}, {sRB}, 8")
        g.I(f"s_lshl_b32 {t1}, {sA}, 2")
        g.I(f"s_add_u32 {t0}, {t0}, {t1}")
        g.I(f"s_add_u32 {t0}, {t0}, {QF_OFF}")
    g.I(f"buffer_store_dword v{b}, v{b+1}, {R4(SRD_WS)}, {t0} offen{SC}")
    g.L(lab)

def read_nonce(g):
    g.I(f"v_mov_b32 v5, {NONCE_LDS}")
    g.I("ds_read_b32 v5, v5")
    g.I("s_waitcnt lgkmcnt(0)")
    g.I(f"v_readfirstlane_b32 {sNONCE}, v5")

def reducer(g):
    g.C("==== kv reducer")
    g.I(f"s_lshl_b32 s50, {sXCD}, 1")
    g.I(f"s_add_u32 s50, s50, {sI}")
    g.I("s_sub_u32 s50, s50, 30")
    g.I(f"s_lshl_b32 s51, {sWAVE}, 6")
    g.I("v_add_u32 v1, s51, v0")
    g.I("v_cmp_le_u32 vcc, 192, v1")
    g.I("v_cndmask_b32 v2, 0, 1, vcc")
    g.I("v_mul_u32_u24 v3, 192, v2")
    g.I("v_sub_u32 v3, v1, v3")
    g.I("v_cmp_le_u32 vcc, 96, v3")
    g.I("v_cndmask_b32 v4, 0, 1, vcc")
    g.I("v_mul_u32_u24 v5, 96, v4")
    g.I("v_sub_u32 v5, v3, v5")
    g.I("v_lshrrev_b32 v6, 5, v5")
    g.I("v_bfe_u32 v7, v5, 1, 4")
    g.I("v_and_b32 v8, 1, v5")
    g.I("v_lshl_add_u32 v9, v6, 1, v8")
    g.I("v_sub_u32 v9, v9, v2")
    g.I("v_lshrrev_b32 v10, 2, v7")
    g.I("v_and_b32 v11, 3, v7")
    g.I("v_mul_u32_u24 v10, 5, v10")
    g.I("v_add_u32 v12, v10, v11")
    g.I("v_add_u32 v13, 4, v10")
    g.I("v_cmp_eq_u32 vcc, 1, v11")
    g.I("v_cndmask_b32 v13, v13, 20, vcc")
    g.I("v_cmp_eq_u32 vcc, 1, v4")
    g.I("v_cndmask_b32 v12, v12, v13, vcc")
    g.I("s_and_b32 s51, s50, 1")
    g.I("s_lshl_b32 s51, s51, 1")
    g.I("v_add_u32 v16, s51, v2")
    g.I("v_mul_u32_u24 v16, 105, v16")
    g.I("v_mul_u32_u24 v15, 5, v12")
    g.I("v_add3_u32 v16, v16, v15, v9")
    g.I("v_lshlrev_b32 v16, 4, v16")
    g.I(f"v_mov_b32 v18, {BIG}")
    g.I("v_cmp_gt_u32 vcc, 5, v9")
    g.I("v_cndmask_b32 v16, v18, v16, vcc")
    g.I("v_mul_u32_u24 v15, v4, v11")
    g.I("v_cmp_gt_u32 vcc, 2, v15")
    g.I("v_cndmask_b32 v16, v18, v16, vcc")
    g.I("v_cmp_gt_u32 vcc, 384, v1")
    g.I("v_cndmask_b32 v16, v18, v16, vcc")
    g.I("v_mul_u32_u24 v17, 1536, v2")
    g.I("v_lshl_add_u32 v17, v3, 3, v17")
    g.I("v_cndmask_b32 v17, v18, v17, vcc")
    lab = g.newlabel("Lrp")
    g.I(f"s_cmp_lg_u32 {sWAVE}, 4")
    g.I(f"s_cbranch_scc1 {lab}")
    g.I("v_lshlrev_b32 v19, 2, v0")
    g.I("s_lshr_b32 s51, s50, 1")
    g.I("s_lshl_b32 s51, s51, 8")
    g.I("v_add_u32 v19, s51, v19")
    g.I("v_cmp_gt_u32 vcc, 16, v0")
    g.I("v_cndmask_b32 v19, v18, v19, vcc")
    poll(g, "v19", KF_OFF, 16)
    g.L(lab)
    stamp(g, 4)
    g.I("s_barrier")
    g.I("s_lshr_b32 s51, s50, 1")
    g.I(f"s_mul_i32 s51, s51, {16*KVP_STRIDE}")
    g.I(f"s_add_u32 s51, s51, {KVP_OFF}")
    for rb in range(16):
        g.I(f"s_add_u32 s52, s51, {rb*KVP_STRIDE}")
        g.I(f"buffer_load_dwordx4 {vr(32+4*rb)}, v16, {R4(SRD_WS)}, s52 offen{SC}")
    for rb in range(1, 16):
        g.I(f"s_waitcnt vmcnt({15-rb})")
        for j in range(4):
            g.I(f"v_add_f32 v{32+j}, v{32+j}, v{32+4*rb+j}")
    g.I("v_cvt_pk_bf16_f32 v20, v32, v33")
    g.I("v_cvt_pk_bf16_f32 v21, v34, v35")
    g.I(f"s_mul_i32 s52, s50, {2*KVF_STRIDE}")
    g.I(f"s_add_u32 s52, s52, {KVF_OFF}")
    g.I(f"buffer_store_dwordx2 v[20:21], v17, {R4(SRD_WS)}, s52 offen{SC}")
    g.I("s_waitcnt vmcnt(0)")
    g.I("s_barrier")
    lab = g.newlabel("Lrf")
    g.I(f"s_cmp_lg_u32 {sWAVE}, 0")
    g.I(f"s_cbranch_scc1 {lab}")
    g.I(f"v_mov_b32 v5, {sNONCE}")
    g.I("v_mov_b32 v6, 0")
    g.I("v_cmp_eq_u32 vcc, 0, v0")
    g.I("v_cndmask_b32 v6, v18, v6, vcc")
    g.I("s_lshl_b32 s52, s50, 2")
    g.I(f"s_add_u32 s52, s52, {FF_OFF}")
    g.I(f"buffer_store_dword v5, v6, {R4(SRD_WS)}, s52 offen{SC}")
    g.L(lab)
    stamp(g, 5)

def p2_body(g, nr, isL, vm, post_bp=None):
    g.C(f"==== P2 body nr={nr} L={isL}")
    ACC2 = 208
    A2 = lambda rt, ct: ACC2 + (rt * 4 + ct) * 4
    def AB(sidx, rt):
        if sidx < 8: return 104 + (sidx * 3 + rt) * 4
        if sidx < 11: return 16 + ((sidx - 8) * 3 + rt) * 4
        return 104 + rt * 4
    BF = lambda b, ct: (80 if b == 0 else 52) + ct * 4
    WA = [68 + k for k in range(10)]
    VK = 79
    VB = lambda ct: 96 + ct
    VA = 100
    VG = [101, 102, 103]
    KV = lambda hh, T: 104 + (hh * 2 + T) * 4
    PQ = lambda b, hh: (168 if b == 0 else 16) + hh * 4
    DD = lambda b, T: (200 if b == 0 else 92) + T * 4
    VAL = 48
    PK = 64
    WF = lambda k: 80 + (k % 3) * 4
    lk = LgkmTracker(g)
    g.I("v_and_b32 v1, 15, v0")
    g.I("v_lshrrev_b32 v2, 4, v0")
    g.I("v_bfe_u32 v3, v0, 2, 2")
    g.I("v_and_b32 v4, 3, v0")
    g.I(f"v_lshlrev_b32 v{VA}, 4, v0")
    g.I(f"v_mov_b32 v5, {BIG}")
    g.I("v_cmp_gt_u32 vcc, 48, v0")
    g.I(f"v_cndmask_b32 v{VK}, v5, v{VA}, vcc")
    g.I("v_and_b32 v6, 1, v2")
    g.I("v_lshrrev_b32 v7, 1, v3")
    g.I("v_lshlrev_b32 v7, 1, v7")
    g.I("v_lshl_add_u32 v7, v6, 2, v7")
    g.I("v_lshl_add_u32 v8, v2, 2, v3")
    g.I("v_and_b32 v9, 1, v4")
    g.I("v_lshlrev_b32 v9, 3, v9")
    g.I("v_lshl_add_u32 v9, v8, 7, v9")
    g.I("s_lshl_b32 s56, s53, 12")
    g.I("v_add_u32 v9, s56, v9")
    g.I("v_lshrrev_b32 v8, 1, v4")
    for ct in range(4):
        g.I(f"v_add_u32 v12, {2*ct}, v8")
        g.I("v_xor_b32 v12, v12, v7")
        g.I(f"v_lshl_add_u32 v{VB(ct)}, v12, 4, v9")
    VBH = lambda ct: 4 + ct
    VBH2 = lambda ct: 200 + ct
    for ct in range(4):
        g.I(f"v_add_u32 v{VBH2(ct)}, 0x20000, v{VB(ct)}")
    for rt in range(nr):
        for ct in range(4):
            for i in range(4):
                g.I(f"v_mov_b32 v{A2(rt,ct)+i}, 0")
    g.I("v_mul_u32_u24 v12, 5, v2")
    g.I("s_mul_i32 s56, s53, 20480")
    g.I("s_cmp_ge_u32 s53, 2")
    g.I(f"s_cselect_b32 s61, {94208 - 2*20480}, 0")
    g.I("s_add_u32 s56, s56, s61")
    g.I("v_lshlrev_b32 v13, 3, v4")
    g.I("v_add_u32 v13, s56, v13")
    for n in range(5):
        for half in range(2):
            g.I(f"v_add_u32 v14, {8*n + 4*half}, v3")
            g.I("v_mul_u32_u24 v15, 52, v14")
            g.I("v_lshrrev_b32 v15, 8, v15")
            g.I("v_mul_u32_u24 v15, 15, v15")
            g.I("v_add3_u32 v14, v14, v15, v12")
            g.I("v_bfe_u32 v15, v14, 1, 2")
            g.I("v_lshlrev_b32 v15, 5, v15")
            g.I("v_lshl_add_u32 v14, v14, 7, v15")
            g.I(f"v_add_u32 v{WA[2*n+half]}, v14, v13")
    g.I("v_lshlrev_b32 v11, 2, v1")
    for ct in range(4):
        g.I(f"v_add_u32 v{VBH(ct)}, 0x10000, v{VB(ct)}")
    g.I("s_mul_i32 s3, s55, 48")
    g.I("s_mul_i32 s56, s53, 12")
    g.I("s_add_u32 s3, s3, s56")
    g.I("s_lshl_b32 s3, s3, 10")
    if OPT["rot2"]:
        g.I("s_lshl_b32 s61, s50, 10")
    else:
        g.I("s_mov_b32 s61, 0")
    g.I("s_mul_i32 s62, s55, 20480")
    g.I("s_mul_i32 s56, s53, 5120")
    g.I("s_add_u32 s62, s62, s56")
    if isL:
        lab = g.newlabel("Lhp")
        g.I(f"s_cmp_lg_u32 {sWAVE}, 4")
        g.I(f"s_cbranch_scc1 {lab}")
        g.I("v_lshrrev_b32 v12, 4, v0")
        g.I("v_lshlrev_b32 v12, 8, v12")
        g.I("v_and_b32 v13, 15, v0")
        g.I("v_lshl_add_u32 v12, v13, 2, v12")
        g.I(f"s_lshl_b32 s56, {sXCD}, 9")
        g.I("v_add_u32 v12, s56, v12")
        g.I("v_cmp_gt_u32 vcc, 32, v0")
        g.I(f"v_mov_b32 v13, {BIG}")
        g.I("v_cndmask_b32 v12, v13, v12, vcc")
        poll(g, "v12", HF_OFF, 32)
        g.L(lab)
        vm.wait(("d", 6))
    else:
        g.I("s_waitcnt vmcnt(0)")
    stamp(g, 4)
    g.I("s_barrier")
    stamp(g, 1, force=OPT["prof2"])
    if post_bp:
        post_bp()
    def load_a(sidx):
        g.I("s_add_u32 s6, s3, s61")
        for rt in range(nr):
            g.I(f"s_add_u32 s56, s6, {H_OFF + rt*48*1024}")
            vm.issue(f"buffer_load_dwordx4 {vr(AB(sidx, rt))}, v{VA}, {R4(SRD_WS)}, s56 offen{SC}", ("a", sidx))
        g.I("s_add_u32 s61, s61, 1024")
        g.I(f"s_cmp_ge_u32 s61, {12*1024}")
        g.I(f"s_cselect_b32 s56, {12*1024}, 0")
        g.I("s_sub_u32 s61, s61, s56")
    def rd_b(sidx):
        base = W2R[sidx]
        for ct in range(4):
            for half in range(2):
                off = base + half * 2048
                if off + 16384 <= 65536:
                    reg = VB(ct)
                elif off >= 131072:
                    reg = VBH2(ct); off -= 131072
                elif off >= 65536:
                    reg = VBH(ct); off -= 65536
                else:
                    reg = VB(ct)
                lk.issue(f"ds_read_b64_tr_b16 {vr(BF(sidx % 2, ct) + 2*half, 2)}, v{reg} offset:{off}", ("b", sidx, ct))
    for sidx in range(6):
        load_a(sidx)
    if isL:
        dma_w2(g, vm, 7); dma_w2(g, vm, 8)
    for sidx in range(6, 11):
        load_a(sidx)
    def load_g():
        g.I("s_lshl_b32 s6, s55, 6")
        for rt in range(nr):
            g.I(f"s_add_u32 s56, s6, {G_OFF + rt*64}")
            vm.issue(f"buffer_load_dword v{VG[rt]}, v11, {R4(SRD_WS)}, s56 offen{SC}", ("g", 0))
    def load_pq(rt, h0=0, h1=8):
        for hh in range(h0, h1):
            g.I(f"s_add_u32 s56, s62, {PQ_OFF + rt*20480 + ((5*hh) >> 1)*256}")
            vm.issue(f"buffer_load_dwordx4 {vr(PQ(rt % 2, hh))}, v{VK}, {R4(SRD_WS)}, s56 offen{SC}", ("pq", rt, hh))
    rd_b(0)
    for sidx in range(12):
        if OPT["prof2"] and sidx in (0, 1, 3, 6, 8, 11):
            lk.drain()
            stamp(g, {0: 2, 1: 3, 3: 4, 6: 5, 8: 6, 11: 7}[sidx], force=True)
        if sidx == 3:
            g.I("s_barrier")
            if isL:
                for k in (9, 10, 11):
                    dma_w2(g, vm, k)
        if sidx == 6:
            if isL:
                vm.wait(("d", 8))
            g.I("s_barrier")
        if sidx == 8:
            if isL:
                vm.wait(("d", 11))
                lab = g.newlabel("Lqp")
                g.I(f"s_cmp_lg_u32 {sWAVE}, 4")
                g.I(f"s_cbranch_scc1 {lab}")
                g.I("v_lshrrev_b32 v12, 3, v0")
                g.I("v_lshlrev_b32 v12, 8, v12")
                g.I("v_and_b32 v13, 7, v0")
                g.I("v_lshl_add_u32 v12, v13, 2, v12")
                g.I(f"s_lshl_b32 s56, {sXCD}, 9")
                g.I("v_add_u32 v12, s56, v12")
                g.I("v_cmp_gt_u32 vcc, 16, v0")
                g.I(f"v_mov_b32 v13, {BIG}")
                g.I("v_cndmask_b32 v12, v13, v12, vcc")
                poll(g, "v12", QF_OFF, 16)
                g.L(lab)
            g.I("s_barrier")
        nxt = sidx + 1
        pre = nxt < 12 and not (nxt == 7 and False)
        if nxt < 12:
            rd_b(nxt)
        vm.wait(("a", sidx))
        for ct in range(4):
            lk.wait(("b", sidx, ct))
            for rt in range(nr):
                a = A2(rt, ct)
                g.I(f"v_mfma_f32_16x16x32_bf16 {vr(a)}, {vr(BF(sidx % 2, ct))}, {vr(AB(sidx, rt))}, {vr(a)}")
        if sidx == 0:
            load_a(11)
        if sidx == 8:
            load_pq(0)
            load_g()
            if isL:
                dma_wo(g, vm, 0, 20)
    stamp(g, 5)
    lk.drain()
    g.I("v_lshlrev_b32 v12, 2, v0")
    g.I("s_lshl_b32 s56, s53, 4")
    g.I("v_add_u32 v12, s56, v12")
    g.I("v_cmp_gt_u32 vcc, 4, v0")
    g.I(f"v_mov_b32 v13, {BIG}")
    g.I("v_cndmask_b32 v12, v13, v12, vcc")
    poll(g, "v12", FF_OFF, 4)
    vm.q = []
    g.I("s_lshl_b32 s61, s53, 3")
    g.I(f"s_mul_i32 s61, s61, {KVF_STRIDE}")
    for hh in range(8):
        for T in range(2):
            g.I(f"s_add_u32 s56, s61, {KVF_OFF + hh*KVF_STRIDE + T*768}")
            vm.issue(f"buffer_load_dwordx4 {vr(KV(hh,T))}, v{VK}, {R4(SRD_WS)}, s56 offen{SC}", ("kv", hh))
    if nr > 1:
        load_pq(1)
    for rt in range(nr):
        g.I(f"v_sub_f32 v12, 1.0, v{VG[rt]}")
        for ct in range(4):
            for i in range(4):
                g.I(f"v_mul_f32 v{A2(rt,ct)+i}, v12, v{A2(rt,ct)+i}")
    g.I("s_barrier")
    stamp(g, 6)
    g.I(f"s_mov_b32 s61, {EPS6}")
    wcount = [0]
    def omfma(rt, hh):
        b = hh % 2
        vm.wait(("kv", hh))
        vm.wait(("pq", rt, hh))
        g.I(f"v_mfma_f32_16x16x32_bf16 {vr(DD(b,0))}, {vr(KV(hh,0))}, {vr(PQ(rt % 2, hh))}, 0")
        g.I(f"v_mfma_f32_16x16x32_bf16 {vr(DD(b,1))}, {vr(KV(hh,1))}, {vr(PQ(rt % 2, hh))}, 0")
    def norm(rt, hh):
        b = hh % 2
        d1, d2 = DD(b, 0), DD(b, 1)
        g.I(f"v_add_f32 v12, s61, v{d2+1}")
        g.I("v_rcp_f32 v12, v12")
        g.I(f"v_mul_f32 v12, v12, v{VG[rt]}")
        for j in range(5):
            v = 5 * hh + j
            src = d1 + j if j < 4 else d2
            g.I(f"v_mul_f32 v{VAL + (v % 16)}, v12, v{src}")
    def rd_wo(n, ct, k):
        for half in range(2):
            if ct == 0:
                ar = WA[2*n+half]
            else:
                ar = 13 + half
                g.I(f"v_xor_b32 v{ar}, {ct << 5}, v{WA[2*n+half]}")
            lk.issue(f"ds_read_b64_tr_b16 {vr(WF(k) + 2*half, 2)}, v{ar}", ("wf", k))
    def kstep(rt, n):
        base = VAL + (8 * n) % 16
        k0 = wcount[0]
        rd_wo(n, 0, k0); rd_wo(n, 1, k0 + 1); rd_wo(n, 2, k0 + 2)
        for j in range(4):
            g.I(f"v_cvt_pk_bf16_f32 v{PK+j}, v{base+2*j}, v{base+2*j+1}")
        for ct in range(4):
            k = k0 + ct
            lk.wait(("wf", k))
            a = A2(rt, ct)
            g.I(f"v_mfma_f32_16x16x32_bf16 {vr(a)}, {vr(WF(k))}, {vr(PK)}, {vr(a)}")
            if ct == 0:
                rd_wo(n, 3, k0 + 3)
        wcount[0] += 4
    for rt in range(nr):
        omfma(rt, 0)
        next_n = 0
        for hh in range(8):
            if hh + 1 < 8:
                omfma(rt, hh + 1)
            norm(rt, hh)
            done_vals = 5 * (hh + 1)
            while next_n < 5 and 8 * (next_n + 1) <= done_vals:
                kstep(rt, next_n); next_n += 1
        if rt + 2 < nr:
            load_pq(rt + 2)
    stamp(g, 7)

def p2_final(g):
    A2 = lambda rt, ct: 208 + (rt * 4 + ct) * 4
    def base_of(dst, w_s):
        g.I(f"s_mul_i32 {dst}, {w_s}, 9216")
        g.I(f"s_add_u32 {dst}, {dst}, 40960")
        g.I(f"s_cmp_ge_u32 {w_s}, 5")
        g.I(f"s_cselect_b32 s56, {135168 - 5*9216 - 40960}, 0")
        g.I(f"s_add_u32 {dst}, {dst}, s56")
    g.I("v_lshlrev_b32 v1, 4, v0")
    base_of("s57", sWAVE)
    g.I("v_add_u32 v2, s57, v1")
    g.I("v_and_b32 v3, 15, v0")
    g.I("v_mul_u32_u24 v3, 1280, v3")
    g.I("v_lshrrev_b32 v4, 4, v0")
    g.I("v_lshl_add_u32 v3, v4, 3, v3")
    g.I(f"s_mul_i32 s58, s55, {16*1280}")
    g.I("s_lshl_b32 s59, s50, 7")
    g.I("s_add_u32 s58, s58, s59")
    g.I("s_lshl_b32 s59, s53, 5")
    g.I("s_add_u32 s58, s58, s59")
    g.I("s_cmp_lt_u32 s51, 2")
    g.I("s_cselect_b32 s59, s54, 0")
    g.I("s_cmp_eq_u32 s59, 1")
    g.I(f"s_cselect_b32 s59, {BIG}, 0")
    g.I("v_add_u32 v5, s59, v3")
    labs = [g.newlabel("Lfk") for _ in range(4)]
    done = g.newlabel("Lfd")
    for kq in range(1, 4):
        g.I(f"s_cmp_eq_u32 s53, {kq}")
        g.I(f"s_cbranch_scc1 {labs[kq]}")
    for kq in range(4):
        g.L(labs[kq])
        others = [c for c in range(4) if c != kq]
        for rt in range(3):
            for k, ct in enumerate(others):
                g.I(f"ds_write_b128 v2, {vr(A2(rt, ct))} offset:{(rt*3 + k)*1024}")
        for k, src in enumerate(others):
            g.I("s_lshl_b32 s60, s54, 2")
            g.I(f"s_add_u32 s60, s60, {src}")
            base_of("s61", "s60")
            idx = kq if kq < src else kq - 1
            g.I(f"s_add_u32 s61, s61, {idx*1024}")
            g.I(f"v_add_u32 v{6+k}, s61, v1")
        g.I("s_waitcnt lgkmcnt(0)")
        g.I("s_barrier")
        for rt in range(3):
            for k in range(3):
                g.I(f"ds_read_b128 {vr(16 + (rt*3 + k)*4)}, v{6+k} offset:{rt*3*1024}")
        for rt in range(3):
            g.I(f"s_waitcnt lgkmcnt({6 - 3*rt})")
            a = A2(rt, kq)
            b = 16 + rt * 12
            for i in range(4):
                g.I(f"v_add_f32 v{b+i}, v{b+i}, v{b+4+i}")
                g.I(f"v_add_f32 v{a+i}, v{a+i}, v{b+8+i}")
            for i in range(4):
                g.I(f"v_add_f32 v{a+i}, v{a+i}, v{b+i}")
            g.I(f"v_cvt_pk_bf16_f32 v{b}, v{a}, v{a+1}")
            g.I(f"v_cvt_pk_bf16_f32 v{b+1}, v{a+2}, v{a+3}")
            g.I(f"s_add_u32 s56, s58, {rt*16*1280}")
            g.I(f"buffer_store_dwordx2 {vr(b,2)}, v{3 if rt < 2 else 5}, {R4(SRD_OUT)}, s56 offen")
        if kq < 3:
            g.I(f"s_branch {done}")
    g.L(done)

def kernel(g):
    end = "Lend"
    g.I("s_cmp_ge_u32 s2, 256")
    g.I(f"s_cbranch_scc1 {end}")
    g.I("s_load_dwordx16 s[64:79], s[0:1], 0")
    g.I("s_load_dwordx4 s[80:83], s[0:1], 64")
    if OPT["stamp"]:
        for k in range(8):
            g.I(f"s_mov_b32 s{84+2*k}, 0")
        g.I("s_memrealtime s[84:85]")
    if OPT["span"]:
        g.I("s_memrealtime s[100:101]")
    g.I("v_lshrrev_b32 v1, 6, v0")
    g.I("v_and_b32 v0, 63, v0")
    g.I(f"v_readfirstlane_b32 {sWAVE}, v1")
    g.I(f"s_and_b32 {sXCD}, s2, 7")
    g.I(f"s_lshr_b32 {sI}, s2, 3")
    g.I(f"s_and_b32 {sRB}, {sXCD}, 1")
    g.I(f"s_lshl_b32 {sRB}, {sRB}, 3")
    g.I(f"s_lshr_b32 s50, {sI}, 2")
    g.I(f"s_add_u32 {sRB}, {sRB}, s50")
    g.I(f"s_lshr_b32 {sA}, {sXCD}, 1")
    g.I(f"s_lshl_b32 {sA}, {sA}, 1")
    g.I(f"s_and_b32 s50, {sI}, 1")
    g.I(f"s_add_u32 {sA}, {sA}, s50")
    g.I(f"s_mov_b32 {sNONCE}, 0")
    if OPT["prof"]:
        g.I("s_getreg_b32 s3, hwreg(HW_REG_XCC_ID)")
        g.I("s_and_b32 s3, s3, 15")
        g.I("s_add_u32 s92, s3, 1000")
    g.I(f"s_cmp_ge_u32 {sWAVE}, 4")
    g.I("s_cbranch_scc1 Lload")
    g.I(f"s_bitcmp1_b32 {sI}, 1")
    g.I("s_cbranch_scc1 LcB")
    p1_compute(g, "A")
    p1_epilogue_A(g)
    read_nonce(g)
    g.I("s_mov_b32 s7, 0")
    g.I("s_branch Lp2C")
    g.L("LcB")
    p1_compute(g, "B")
    p1_epilogue_B(g)
    read_nonce(g)
    g.L("Lp2C")
    def pub():
        la, lb = g.newlabel("Lpub"), g.newlabel("Lpub")
        g.I(f"s_bitcmp1_b32 {sI}, 1")
        g.I(f"s_cbranch_scc1 {lb}")
        save = None
        publish_flag(g, "K")
        g.I(f"s_branch {la}")
        g.L(lb)
        publish_flag(g, "Q")
        g.L(la)
    g.I(f"s_cmp_ge_u32 {sI}, 30")
    g.I("s_cbranch_scc1 LredC")
    p2_decode(g)
    vm = VmTracker(g)
    p2_body(g, 3, False, vm, post_bp=pub_p2(g))
    g.I("s_branch Lfin")
    g.L("LredC")
    g.I("s_waitcnt vmcnt(0)")
    g.I("s_barrier")
    pub()
    g.I("s_branch Lred")
    g.L("Lload")
    g.I(f"s_bitcmp1_b32 {sI}, 1")
    g.I("s_cbranch_scc1 LldB")
    p1_loader(g, "A")
    g.I("s_branch Lldtail")
    g.L("LldB")
    p1_loader(g, "B")
    g.L("Lldtail")
    g.I(f"s_cmp_ge_u32 {sI}, 30")
    g.I("s_cbranch_scc1 Lldred")
    p2_decode(g)
    p2_dma_setup(g)
    vmL = VmTracker(g)
    vmL.q = [("c", 8)] * 11 + [("c", 9)] * 11
    vmL.wait(("c", 8))
    g.I("s_barrier")
    dma_w2(g, vmL, 0); dma_w2(g, vmL, 1)
    vmL.wait(("c", 9))
    stamp(g, 3)
    g.I("s_barrier")
    for k in (2, 3, 4):
        dma_w2(g, vmL, k)
    g.I("s_barrier")
    dma_w2(g, vmL, 5); dma_w2(g, vmL, 6)
    read_nonce(g)
    g.I("s_barrier")
    l2 = "Lp2L2"
    g.I("s_cmp_lt_u32 s51, 2")
    g.I(f"s_cbranch_scc1 {l2}")
    vm3 = VmTracker(g); vm3.q = list(vmL.q)
    p2_body(g, 3, True, vm3)
    g.I("s_branch Lfin")
    g.L(l2)
    vm2 = VmTracker(g); vm2.q = list(vmL.q)
    p2_body(g, 2, True, vm2)
    g.L("Lfin")
    p2_final(g)
    g.I("s_branch Ldone")
    g.L("Lldred")
    g.I("s_waitcnt vmcnt(11)")
    g.I("s_barrier")
    g.I("s_waitcnt vmcnt(0)")
    g.I("s_barrier")
    g.I("s_barrier")
    read_nonce(g)
    g.I("s_barrier")
    g.I("s_barrier")
    g.L("Lred")
    reducer(g)
    g.L("Ldone")
    if OPT["span"]:
        g.I("s_waitcnt vmcnt(0)")
        g.I("s_memrealtime s[4:5]")
        g.I("s_waitcnt lgkmcnt(0)")
        g.I("s_not_b32 s6, s100")
        g.I("v_mov_b32 v1, 0")
        g.I("v_mov_b32 v2, s4")
        g.I("v_mov_b32 v3, s6")
        g.I("v_cmp_eq_u32 vcc, 0, v0")
        g.I("s_and_saveexec_b64 s[6:7], vcc")
        g.I("global_atomic_umax v1, v2, s[80:81] offset:4")
        g.I("global_atomic_umax v1, v3, s[80:81] offset:8")
        g.I("s_mov_b64 exec, s[6:7]")
    if OPT["stamp"]:
        g.I("s_waitcnt vmcnt(0)")
    stamp_flush(g)
    g.L(end)
    g.I("s_endpgm")
    g.L("Lcode_end")

def kd(name, vgpr, sgpr=102):
    return f""".p2align 6
.amdhsa_kernel {name}
  .amdhsa_next_free_vgpr {vgpr}
  .amdhsa_next_free_sgpr {sgpr}
  .amdhsa_accum_offset {vgpr}
  .amdhsa_group_segment_fixed_size 0
  .amdhsa_kernarg_size 80
  .amdhsa_user_sgpr_count 2
  .amdhsa_user_sgpr_kernarg_segment_ptr 1
  .amdhsa_system_sgpr_workgroup_id_x 1
.end_amdhsa_kernel
"""

HEADER = open("cdna_kernels/" + NAME + ".s.ref").read().split("; Override launch")[0]

def build():
    out = HEADER
    out += f"; @launch grid=(256,1,1) block=(512,1,1) lds={LDS_TOTAL}\n"
    out += '.amdgcn_target "amdgcn-amd-amdhsa--gfx950"\n.text\n'
    g = Gen()
    kernel(g)
    g.fix_hazards()
    for p in g.check_branches():
        print("BRANCH HAZARD:", p, file=sys.stderr)
    out += f".globl {KNAME}\n.p2align 8\n.type {KNAME},@function\n{KNAME}:\n" + g.text()
    out += '.section .rodata,"a"\n' + kd(KNAME, 256)
    return out

if __name__ == "__main__":
    args = sys.argv[1:]
    for a in list(args):
        if a.startswith("--"):
            k = a[2:]
            if k.startswith("no"):
                OPT[k[2:]] = False
            else:
                OPT[k] = True
            args.remove(a)
    path = args[0] if args else "v2.s"
    txt = build()
    open(path, "w").write(txt)
    print("wrote", path, len(txt), "bytes")
```

```python
import sys
from asmlib import Gen, LgkmTracker, VmTracker

NAME = "gated_mix__linear_attn_block__dense_activation_relu__prompt"
KNAME = NAME + "_kernel"
H_OFF = 0
PQ_OFF = 0x600000
G_OFF = 0x900000
KVP_OFF = 0x910000
KVP_STRIDE = 7168
KVF_OFF = 0xA00000
KVF_STRIDE = 1152
FL_OFF = 0xA10000
HF_OFF = FL_OFF
KF_OFF = FL_OFF + 0x2000
FF_OFF = FL_OFF + 0x4000
QF_OFF = FL_OFF + 0x6000
ST_OFF = 0xA80000
WS_USED = 0xB00000
STAGE = 45056
GW_LDS = 3 * STAGE
KS_LDS = GW_LDS + 1280
KS_W = 6720
NONCE_LDS = KS_LDS + 4 * KS_W + 16
CNT_LDS = NONCE_LDS + 4
CNT1_LDS = NONCE_LDS + 8
CNT2_LDS = NONCE_LDS + 12
LDS_TOTAL = 163840
W2R = [45056 + 16384*k for k in range(5)] + [0, 16384, 126976, 143360] + [0, 16384, 126976]
WO_BASE = 45056
LOG2E = 0x3FB8AA3B
EPS6 = 0x358637BD
BIG = 0x40000000
SC = " sc1"
SPIN_MAX = 40000

OPT = dict(stamp=False, codepf=True, tlb=True, prof=False, rot=True, rot2=True, xdma=True, xlds=True, xmfma=True, warm2=False, mall=True, prof2=False, prof3=False, span=False, clk=False, prio=False, prioL=False)

SRD_X, SRD_QKV, SRD_W1, SRD_WS, SRD_GW, SRD_W2, SRD_WO, SRD_OUT = 8, 12, 16, 20, 24, 28, 32, 36
def R4(b): return f"s[{b}:{b+3}]"
sWAVE, sXCD, sI, sRB, sA, sNONCE = "s44", "s45", "s46", "s47", "s48", "s49"
def vr(b, n=4): return f"v[{b}:{b+n-1}]"

def clkstamp(g, k):
    if not (OPT["stamp"] and OPT["clk"]): return
    g.I(f"s_memrealtime s[{84+2*k}:{85+2*k}]")
    g.I(f"s_memtime s[{86+2*k}:{87+2*k}]")
    g.I("s_waitcnt lgkmcnt(0)")

def stamp(g, k, force=False):
    if not OPT["stamp"]: return
    if OPT["clk"]: return
    if (OPT["prof2"] or OPT["prof3"]) and not force: return
    if OPT["prof"] and k >= 4: return
    g.I(f"s_memrealtime s[{84+2*k}:{85+2*k}]")
    g.I("s_waitcnt lgkmcnt(0)")

def stamp_flush(g):
    if not OPT["stamp"]: return
    g.I("s_lshl_b32 s50, s2, 8")
    g.I(f"s_lshl_b32 s51, {sWAVE}, 5")
    g.I("s_add_u32 s50, s50, s51")
    g.I(f"s_add_u32 s50, s50, {ST_OFF}")
    g.I("v_mov_b32 v14, 0")
    for k in range(8):
        g.I(f"v_mov_b32 v15, s{84+2*k}")
        g.I(f"buffer_store_dword v15, v14, {R4(SRD_WS)}, s50 offen offset:{4*k}")

def srd(g, d, p, size):
    g.I(f"s_mov_b32 s{d}, s{p}")
    g.I(f"s_and_b32 s{d+1}, s{p+1}, 0xffff")
    g.I(f"s_mov_b32 s{d+2}, {size}")
    g.I(f"s_mov_b32 s{d+3}, 0x00020000")

def srds_p1(g):
    srd(g, SRD_X, 64, 2048 * 1280)
    srd(g, SRD_QKV, 66, 640 * 3840)
    srd(g, SRD_W1, 72, 640 * 3072)

def srds_rest(g):
    srd(g, SRD_WS, 82, WS_USED)
    srd(g, SRD_GW, 76, 1280)
    srd(g, SRD_W2, 74, 1536 * 1280)
    srd(g, SRD_WO, 68, 640 * 1280)
    srd(g, SRD_OUT, 78, 2048 * 1280)

def swap23(g, dst, src, t1, t2):
    g.I(f"v_and_b32 {t1}, 4, {src}")
    g.I(f"v_and_b32 {t2}, 8, {src}")
    g.I(f"v_and_b32 {dst}, 0x33, {src}")
    g.I(f"v_lshl_or_b32 {dst}, {t1}, 1, {dst}")
    g.I(f"v_lshrrev_b32 {t2}, 1, {t2}")
    g.I(f"v_or_b32 {dst}, {dst}, {t2}")

ROT = dict(shj=0, mulj=1, mulr=3)
def rot_c0(g, dst):
    g.I(f"s_and_b32 {dst}, {sI}, 3")
    g.I(f"s_mul_i32 {dst}, {dst}, {ROT['mulr']}")
    g.I(f"s_lshr_b32 s4, {sI}, {2 + ROT['shj']}")
    g.I(f"s_mul_i32 s4, s4, {ROT['mulj']}")
    g.I(f"s_add_u32 {dst}, {dst}, s4")
    for _ in range(2):
        g.I(f"s_cmp_ge_u32 {dst}, 10")
        g.I("s_cselect_b32 s4, 10, 0")
        g.I(f"s_sub_u32 {dst}, {dst}, s4")

def p1_loader(g, typ):
    g.C(f"==== P1 loader type {typ}")
    g.I(f"s_sub_u32 s52, {sWAVE}, 4")
    g.I("v_lshrrev_b32 v2, 3, v0")
    g.I("v_and_b32 v3, 7, v0")
    g.I("v_lshrrev_b32 v4, 4, v0")
    g.I(f"s_lshl_b32 s53, {sRB}, 2")
    g.I("s_add_u32 s53, s53, s52")
    g.I(f"s_mul_i32 s53, s53, {32*1280}")
    g.I("v_xor_b32 v5, v3, v4")
    g.I("v_lshlrev_b32 v5, 4, v5")
    g.I("v_mul_u32_u24 v6, 1280, v2")
    g.I("v_add_u32 v6, s53, v6")
    XO = [10, 11, 12, 13]
    g.I(f"v_add_u32 v{XO[0]}, v6, v5")
    g.I("v_xor_b32 v5, 64, v5")
    g.I(f"v_add_u32 v{XO[1]}, v6, v5")
    g.I(f"v_add_u32 v{XO[1]}, {8*1280}, v{XO[1]}")
    g.I(f"v_add_u32 v{XO[2]}, {16*1280}, v{XO[0]}")
    g.I(f"v_add_u32 v{XO[3]}, {16*1280}, v{XO[1]}")
    g.I("s_lshl_b32 s54, s52, 10")
    g.I("s_lshl_b32 s55, s52, 12")
    if OPT["rot"]:
        rot_c0(g, "s3")
        g.I("s_lshl_b32 s56, s3, 7")
        g.I(f"s_mul_i32 s57, s3, {64*3840}")
        g.I(f"s_mul_i32 s58, s3, {64*3072}")
    else:
        g.I("s_mov_b32 s56, 0")
        g.I("s_mov_b32 s57, 0")
        g.I("s_mov_b32 s58, 0")
    g.I("s_waitcnt lgkmcnt(0)")
    srd(g, SRD_X, 64, 2048 * 1280)
    def issue_x():
        for j in range(4):
            g.I(f"s_add_u32 m0, s55, {j*1024}")
            g.I(f"buffer_load_dwordx4 v{XO[j]}, {R4(SRD_X)}, s56 offen lds")
    issue_x()
    srd(g, SRD_QKV, 66, 640 * 3840)
    n10 = 5 if typ == "A" else 3
    QO = [14, 15, 16, 17, 18][:n10]
    g.I(f"s_mul_i32 s59, {sA}, 160")
    if typ == "A":
        g.I("s_add_u32 s59, s59, 1280")
    g.I("s_mov_b32 s60, 6554")
    g.I("s_mov_b32 s61, 3840")
    R10 = 16384
    RH = 36864 if typ == "A" else 28672
    for n in range(n10):
        g.I(f"s_add_u32 s62, s52, {4*n}")
        if typ == "A":
            g.I("s_cmp_ge_u32 s62, 10")
            g.I("s_cselect_b32 s63, 10, 0")
            g.I("s_cselect_b32 s50, 1280, 0")
            g.I("s_sub_u32 s62, s62, s63")
        g.I("s_lshl_b32 s62, s62, 6")
        g.I("v_add_u32 v5, s62, v0")
        g.I("v_mul_lo_u32 v6, v5, s60")
        g.I("v_lshrrev_b32 v6, 16, v6")
        g.I("v_mul_u32_u24 v7, 10, v6")
        g.I("v_sub_u32 v7, v5, v7")
        swap23(g, "v8", "v6", "v9", "v19")
        g.I("v_mul_lo_u32 v8, v8, s61")
        g.I("v_lshl_add_u32 v8, v7, 4, v8")
        if typ == "A":
            g.I("s_add_u32 s50, s50, s59")
            g.I(f"v_add_u32 v{QO[n]}, s50, v8")
        else:
            g.I(f"v_add_u32 v{QO[n]}, s59, v8")
            if n == 2:
                g.I("s_cmp_ge_u32 s52, 2")
                g.I(f"s_cselect_b32 s50, {BIG}, 0")
                g.I(f"v_add_u32 v{QO[n]}, s50, v{QO[n]}")
        g.I(f"s_add_u32 m0, s54, {R10 + 4096*n}")
        g.I(f"buffer_load_dwordx4 v{QO[n]}, {R4(SRD_QKV)}, s57 offen lds")
    srd(g, SRD_W1, 72, 640 * 3072)
    nH = 2 if typ == "A" else 4
    HO = [20, 21, 22, 23][:nH]
    g.I("v_lshlrev_b32 v5, 1, v4")
    g.I("v_xor_b32 v5, v3, v5")
    g.I("v_lshlrev_b32 v5, 4, v5")
    if typ == "A":
        g.I(f"s_lshl_b32 s59, {sA}, 7")
    else:
        g.I(f"s_lshl_b32 s59, {sA}, 8")
        g.I("s_add_u32 s59, s59, 1024")
    g.I("s_mov_b32 s61, 3072")
    for n in range(2):
        g.I(f"s_add_u32 s62, s52, {4*n}")
        g.I("s_lshl_b32 s62, s62, 3")
        g.I("v_add_u32 v6, s62, v2")
        swap23(g, "v8", "v6", "v9", "v19")
        g.I("v_mul_lo_u32 v8, v8, s61")
        g.I("v_add_u32 v8, v8, v5")
        g.I(f"v_add_u32 v{HO[n]}, s59, v8")
        if nH == 4:
            g.I(f"v_add_u32 v{HO[n+2]}, 128, v{HO[n]}")
    def issue_h():
        for n in range(nH):
            g.I(f"s_add_u32 m0, s54, {RH + 8192*(n//2) + 4096*(n % 2)}")
            g.I(f"buffer_load_dwordx4 v{HO[n]}, {R4(SRD_W1)}, s58 offen lds")
    def issue_q():
        for n in range(n10):
            g.I(f"s_add_u32 m0, s54, {R10 + 4096*n}")
            g.I(f"buffer_load_dwordx4 v{QO[n]}, {R4(SRD_QKV)}, s57 offen lds")
    issue_h()
    srds_rest(g)
    def advance():
        g.I("s_add_u32 s56, s56, 128")
        g.I(f"s_add_u32 s57, s57, {64*3840}")
        g.I(f"s_add_u32 s58, s58, {64*3072}")
        if OPT["rot"]:
            g.I("s_cmp_ge_u32 s56, 1280")
            g.I("s_cselect_b32 s56, 0, s56")
            g.I("s_cselect_b32 s57, 0, s57")
            g.I("s_cselect_b32 s58, 0, s58")
        g.I(f"s_add_u32 s54, s54, {STAGE}")
        g.I(f"s_add_u32 s55, s55, {STAGE}")
        g.I(f"s_cmp_ge_u32 s54, {3*STAGE}")
        g.I(f"s_cselect_b32 s62, {3*STAGE}, 0")
        g.I("s_sub_u32 s54, s54, s62")
        g.I("s_sub_u32 s55, s55, s62")
    def issue():
        advance()
        if OPT["xdma"]:
            issue_x(); issue_q(); issue_h()
    extra0 = 0
    if typ == "B":
        lab = g.newlabel("Lgw")
        g.I("s_cmp_lg_u32 s52, 0")
        g.I(f"s_cbranch_scc1 {lab}")
        g.I("v_lshlrev_b32 v5, 4, v0")
        g.I(f"s_mov_b32 m0, {GW_LDS}")
        g.I("v_add_u32 v6, 1024, v5")
        g.I(f"buffer_load_dwordx4 v5, {R4(SRD_GW)}, 0 offen lds")
        g.I(f"s_mov_b32 m0, {GW_LDS + 1024}")
        g.I("s_nop 0")
        g.I(f"buffer_load_dwordx4 v6, {R4(SRD_GW)}, 0 offen lds")
        g.L(lab)
    issue()
    stamp(g, 1)
    g.I("s_waitcnt vmcnt(11)")
    stamp(g, 2)
    g.I("s_barrier")
    issue()
    warmups(g, typ)
    if OPT["prioL"]:
        g.I("s_setprio 2")
    g.I("s_waitcnt vmcnt(13)")
    g.I("s_barrier")
    issue()
    g.I("s_waitcnt vmcnt(13)")
    g.I("s_barrier")
    issue()
    g.I("s_mov_b32 s63, 3")
    loop = g.newlabel("Lld")
    g.L(loop)
    if OPT["prof"]:
        g.I("s_memtime s[4:5]")
        g.I("s_waitcnt lgkmcnt(0)")
    g.I("s_waitcnt vmcnt(11)")
    if OPT["prof"]:
        g.I("s_memtime s[6:7]")
        g.I("s_waitcnt lgkmcnt(0)")
        g.I("s_sub_u32 s4, s6, s4")
        g.I("s_add_u32 s94, s94, s4")
    g.I("s_barrier")
    if OPT["prof"]:
        g.I("s_memtime s[4:5]")
        g.I("s_waitcnt lgkmcnt(0)")
        g.I("s_sub_u32 s6, s4, s6")
        g.I("s_add_u32 s96, s96, s6")
    issue()
    if OPT["prof"]:
        g.I("s_memtime s[6:7]")
        g.I("s_waitcnt lgkmcnt(0)")
        g.I("s_sub_u32 s6, s6, s4")
        g.I("s_add_u32 s98, s98, s6")
    g.I("s_add_u32 s63, s63, 1")
    g.I("s_cmp_le_u32 s63, 7")
    g.I(f"s_cbranch_scc1 {loop}")

def p2_decode(g):
    g.I(f"s_mul_i32 s50, {sI}, 86")
    g.I("s_lshr_b32 s50, s50, 8")
    g.I("s_mul_i32 s51, s50, 3")
    g.I(f"s_sub_u32 s51, {sI}, s51")
    g.I("s_mul_i32 s52, s51, 5")
    g.I(f"s_lshl_b32 s56, {sXCD}, 4")
    g.I("s_add_u32 s52, s52, s56")
    g.I(f"s_and_b32 s53, {sWAVE}, 3")
    g.I(f"s_lshr_b32 s54, {sWAVE}, 2")
    g.I("s_mul_i32 s55, s54, 3")
    g.I("s_add_u32 s55, s55, s52")

VD2 = 78
def p2_dma_setup(g):
    g.I("v_lshrrev_b32 v5, 3, v0")
    g.I("v_and_b32 v6, 7, v0")
    g.I("v_lshrrev_b32 v2, 4, v0")
    g.I("v_lshlrev_b32 v7, 1, v2")
    g.I("v_xor_b32 v7, v6, v7")
    g.I("v_mul_u32_u24 v8, 1280, v5")
    g.I("s_lshl_b32 s56, s50, 7")
    g.I("v_add_u32 v8, s56, v8")
    g.I(f"v_lshl_add_u32 v{VD2}, v7, 4, v8")
    g.I(f"s_mul_i32 s57, s53, {12*32*1280}")
    g.I(f"s_add_u32 s63, s57, {12*32*1280}")
    if OPT["rot2"]:
        g.I(f"s_mul_i32 s56, s50, {32*1280}")
        g.I("s_add_u32 s57, s57, s56")
    g.I("s_lshl_b32 s58, s53, 12")
    g.I(f"s_mul_i32 s59, s53, {160*1280}")
    g.I("s_mul_i32 s60, s53, 20480")
    g.I(f"s_add_u32 s60, s60, {WO_BASE}")

def dma_w2(g, vm, sidx, slots=(0, 4)):
    for j in range(*slots):
        g.I(f"s_add_u32 m0, s58, {W2R[sidx] + j*1024}")
        g.I(f"s_add_u32 s56, s57, {j * 8 * 1280}")
        vm.issue(f"buffer_load_dwordx4 v{VD2}, {R4(SRD_W2)}, s56 offen lds", ("d", sidx))
    g.I(f"s_add_u32 s57, s57, {32*1280}")
    g.I("s_cmp_ge_u32 s57, s63")
    g.I(f"s_cselect_b32 s56, {12*32*1280}, 0")
    g.I("s_sub_u32 s57, s57, s56")

def warm_late(g, vm, skip):
    g.I("v_mul_u32_u24 v9, 1280, v0")
    g.I("s_lshl_b32 s56, s50, 7")
    g.I("v_add_u32 v9, s56, v9")
    g.I("v_cmp_gt_u32 vcc, 32, v0")
    g.I(f"v_mov_b32 v10, {BIG}")
    g.I("v_cndmask_b32 v10, v10, v9, vcc")
    g.I(f"s_add_u32 s6, s57, {skip*32*1280}")
    g.I("s_cmp_ge_u32 s6, s63")
    g.I(f"s_cselect_b32 s56, {12*32*1280}, 0")
    g.I("s_sub_u32 s6, s6, s56")
    for k in range(3):
        vm.issue(f"buffer_load_dword v11, v10, {R4(SRD_W2)}, s6 offen", ("warm", 0))
        g.I(f"s_add_u32 s6, s6, {32*1280}")
        g.I("s_cmp_ge_u32 s6, s63")
        g.I(f"s_cselect_b32 s56, {12*32*1280}, 0")
        g.I("s_sub_u32 s6, s6, s56")
    for k in range(3):
        g.I(f"s_add_u32 s56, s59, {k*64*1280}")
        vm.issue(f"buffer_load_dword v11, v9, {R4(SRD_WO)}, s56 offen", ("warm", 0))

def dma_wo(g, vm, j0, j1):
    for j in range(j0, j1):
        g.I(f"s_add_u32 m0, s60, {j*1024}")
        g.I(f"s_add_u32 s56, s59, {j*8*1280}")
        vm.issue(f"buffer_load_dwordx4 v{VD2}, {R4(SRD_WO)}, s56 offen lds", ("wo", 0))

def poll(g, vaddr, soff_imm, nlanes, tmp="v14"):
    loop = g.newlabel("Lpoll"); done = g.newlabel("Lpd")
    g.I("s_mov_b32 s4, 0")
    g.I(f"s_mov_b32 s5, {soff_imm}")
    mask = (1 << nlanes) - 1
    g.I(f"s_mov_b32 s7, {mask:#x}")
    g.L(loop)
    g.I(f"buffer_load_dword {tmp}, {vaddr}, {R4(SRD_WS)}, s5 offen{SC}")
    g.I("s_waitcnt vmcnt(0)")
    g.I(f"v_cmp_eq_u32 vcc, {sNONCE}, {tmp}")
    g.I("s_and_b32 s6, vcc_lo, s7")
    g.I("s_cmp_eq_u32 s6, s7")
    g.I(f"s_cbranch_scc1 {done}")
    g.I("s_add_u32 s4, s4, 1")
    g.I(f"s_cmp_lt_u32 s4, {SPIN_MAX}")
    g.I("s_sleep 1")
    g.I(f"s_cbranch_scc1 {loop}")
    g.L(done)

ACC = 128
def acc(t, rt): return ACC + (2 * t + rt) * 4
KVA = 68

def warmups(g, typ):
    l1, l2, l3, le = [g.newlabel("Lwu") for _ in range(4)]
    g.I(f"v_mov_b32 v25, {BIG}")
    g.I("s_cmp_eq_u32 s52, 1"); g.I(f"s_cbranch_scc1 {l1}")
    g.I("s_cmp_eq_u32 s52, 2"); g.I(f"s_cbranch_scc1 {l2}")
    g.I("s_cmp_eq_u32 s52, 3"); g.I(f"s_cbranch_scc1 {l3}")
    g.I("s_getpc_b64 s[4:5]")
    g.L("Lpc_" + typ)
    g.I(f"s_sub_u32 s4, s4, Lpc_{typ}-{KNAME}")
    g.I("s_subb_u32 s5, s5, 0")
    g.I("v_and_b32 v26, 15, v0")
    g.I(f"s_lshl_b32 s6, {sI}, 4")
    g.I("v_add_u32 v26, s6, v26")
    g.I("v_lshlrev_b32 v26, 7, v26")
    g.I(f"v_min_u32 v26, Lcode_end-{KNAME}-4, v26")
    if OPT["codepf"]:
        g.I(f"global_load_dword v24, v26, s[4:5]")
    else:
        g.I(f"buffer_load_dword v24, v25, {R4(SRD_WS)}, 0 offen")
    g.I(f"buffer_load_dword v24, v25, {R4(SRD_WS)}, 0 offen")
    g.I(f"s_branch {le}")
    g.L(l1)
    g.I("v_lshlrev_b32 v26, 7, v0")
    g.I("v_cmp_gt_u32 vcc, 60, v0")
    g.I("v_cndmask_b32 v27, v25, v26, vcc")
    if not OPT["mall"]:
        g.I("v_mov_b32 v27, v25")
    g.I(f"s_mul_i32 s6, s2, {60*128}")
    g.I(f"buffer_load_dword v24, v27, {R4(SRD_W2)}, s6 offen")
    g.I("v_cmp_gt_u32 vcc, 25, v0")
    g.I("v_cndmask_b32 v27, v25, v26, vcc")
    if not OPT["mall"]:
        g.I("v_mov_b32 v27, v25")
    g.I(f"s_mul_i32 s6, s2, {25*128}")
    g.I(f"buffer_load_dword v24, v27, {R4(SRD_WO)}, s6 offen")
    g.I(f"s_branch {le}")
    g.L(l2)
    g.I("v_lshlrev_b32 v26, 21, v0")
    g.I(f"v_min_u32 v26, {BIG}, v26")
    if not OPT["tlb"]:
        g.I("v_mov_b32 v26, v25")
    g.I(f"buffer_load_dword v24, v26, {R4(SRD_WS)}, 0 offen")
    g.I(f"buffer_load_dword v24, v26, {R4(SRD_OUT)}, 0 offen")
    g.I(f"s_branch {le}")
    g.L(l3)
    g.I(f"buffer_load_dword v24, v25, {R4(SRD_WS)}, 0 offen")
    g.I(f"buffer_load_dword v24, v25, {R4(SRD_WS)}, 0 offen")
    g.L(le)

def p1_compute(g, typ):
    g.C(f"==== P1 compute type {typ}")
    g.I("s_waitcnt lgkmcnt(0)")
    srds_p1(g)
    srds_rest(g)
    lab = g.newlabel("Lnn")
    g.I(f"s_or_b32 s50, s2, {sWAVE}")
    g.I("s_cmp_lg_u32 s50, 0")
    g.I(f"s_cbranch_scc1 {lab}")
    g.I("s_memrealtime s[50:51]")
    g.I("s_waitcnt lgkmcnt(0)")
    g.I("s_or_b32 s50, s50, 1")
    g.I("v_mov_b32 v5, s50")
    g.I("v_mov_b32 v6, 0")
    g.I(f"global_store_dword v6, v5, s[80:81]{SC}")
    g.L(lab)
    g.I("v_mov_b32 v66, 0")
    g.I("v_mov_b32 v65, 0")
    g.I(f"v_mov_b32 v5, {CNT_LDS}")
    g.I("ds_write_b32 v5, v66")
    g.I("ds_write_b32 v5, v66 offset:4")
    g.I("ds_write_b32 v5, v66 offset:8")
    g.I("v_and_b32 v1, 15, v0")
    g.I("v_lshrrev_b32 v2, 4, v0")
    g.I("v_bfe_u32 v3, v0, 2, 2")
    g.I("v_and_b32 v4, 3, v0")
    g.I("v_lshrrev_b32 v5, 1, v1")
    g.I("v_xor_b32 v5, v2, v5")
    g.I("v_lshlrev_b32 v5, 4, v5")
    g.I("v_lshl_add_u32 v5, v1, 7, v5")
    g.I(f"s_lshl_b32 s50, {sWAVE}, 12")
    g.I("v_add_u32 v48, s50, v5")
    g.I("v_xor_b32 v49, 64, v48")
    g.I("v_lshrrev_b32 v5, 1, v2")
    g.I("v_lshlrev_b32 v5, 4, v5")
    g.I("v_and_b32 v6, 1, v2")
    g.I("v_lshl_add_u32 v5, v6, 2, v5")
    g.I("v_add_u32 v5, v5, v3")
    g.I("v_mul_u32_u24 v50, 160, v5")
    g.I("v_lshl_add_u32 v50, v4, 3, v50")
    g.I("v_lshrrev_b32 v7, 1, v3")
    g.I("v_lshlrev_b32 v7, 1, v7")
    g.I("v_lshl_add_u32 v7, v6, 2, v7")
    g.I("v_lshrrev_b32 v8, 1, v4")
    g.I("v_and_b32 v9, 1, v4")
    g.I("v_lshlrev_b32 v9, 3, v9")
    g.I("v_lshl_add_u32 v9, v5, 7, v9")
    for t in range(4):
        g.I(f"v_add_u32 v10, {2*t}, v8")
        g.I("v_xor_b32 v10, v10, v7")
        g.I(f"v_lshl_add_u32 v{51+t}, v10, 4, v9")
    for k in range(7):
        g.I(f"v_mov_b32 v{56+k}, v{48+k}")
    if typ == "A":
        tiles = [("kv", t, "N") for t in range(5)] + [("kv", 5 + t, "N") for t in range(5)] + [("h", t, "T") for t in range(4)]
    else:
        tiles = [("kv", t, "T") for t in range(5)] + [("h", t, "T") for t in range(8)] + [("g", 0, "T")]
        g.I("v_lshlrev_b32 v63, 4, v2")
        g.I(f"v_add_u32 v63, {GW_LDS}, v63")
        if OPT["rot"]:
            rot_c0(g, "s3")
            g.I("s_lshl_b32 s5, s3, 7")
            g.I("v_add_u32 v63, s5, v63")
            g.I("s_mov_b32 s55, s3")
    g.I(f"s_mov_b32 s50, {EPS6}")
    for t in range(14):
        for rt in range(2):
            for i in range(4):
                g.I(f"v_mov_b32 v{acc(t,rt)+i}, " + ("s50" if t < 5 else "0"))
    if typ == "A":
        g.I(f"s_mul_i32 s50, {sWAVE}, {KS_W}")
        g.I(f"s_add_u32 s50, s50, {KS_LDS}")
        g.I(f"v_mov_b32 v15, {KS_LDS + 4*KS_W}")
        for t in range(5):
            g.I(f"v_lshl_add_u32 v5, v2, 2, {16*t}")
            g.I("v_mul_u32_u24 v6, 205, v5")
            g.I(f"v_lshrrev_b32 v{16+t}, 12, v6")
            g.I(f"v_mul_u32_u24 v6, 20, v{16+t}")
            g.I("v_sub_u32 v6, v5, v6")
            g.I(f"v_mul_u32_u24 v7, {105*16}, v{16+t}")
            g.I("v_lshl_add_u32 v7, v6, 2, v7")
            g.I(f"v_add_u32 v{21+t}, s50, v7")
            g.I(f"v_add_u32 v5, {16*t}, v1")
            g.I("v_mul_u32_u24 v6, 205, v5")
            g.I(f"v_lshrrev_b32 v{26+t}, 12, v6")
            g.I(f"v_mul_u32_u24 v6, 20, v{26+t}")
            g.I("v_sub_u32 v6, v5, v6")
            g.I(f"v_mul_u32_u24 v{31+t}, 80, v6")
        for t in range(5):
            for tp in range(5):
                if abs(t - tp) <= 1:
                    idx = 2 * t + tp
                    g.I(f"v_add_u32 v5, v{21+t}, v{31+tp}")
                    g.I(f"v_cmp_eq_u32 vcc, v{16+t}, v{26+tp}")
                    g.I(f"v_cndmask_b32 v{KVA+idx}, v15, v5, vcc")
        g.I("v_cmp_eq_u32 vcc, 0, v1")
        for t in range(5):
            g.I(f"v_add_u32 v5, {20*80}, v{21+t}")
            g.I(f"v_cndmask_b32 v{KVA+13+t}, v15, v5, vcc")
    XF = lambda ks, rt: 16 + (2 * ks + rt) * 4
    WF = lambda n: 86 + (n % 7) * 4
    R10 = 16384
    RH = 36864 if typ == "A" else 28672
    lk = LgkmTracker(g)
    NS = 2 * len(tiles)
    steps = [(ks, ti) for ks in range(2) for ti in range(len(tiles))]
    def rd_x(ks):
        if not OPT["xlds"]: return
        for rt in range(2):
            lk.issue(f"ds_read_b128 {vr(XF(ks,rt))}, v{56+ks} offset:{rt*2048}", ("x", ks))
    def rd_w(n, half):
        if not OPT["xlds"]: return
        ks, ti = steps[n % NS]
        kind, t, _ = tiles[ti]
        w = WF(n)
        tag = ("w", n % NS)
        if kind == "kv":
            off = R10 + ks * 5120 + half * 1280 + 32 * (t % 5) + (10240 if t >= 5 else 0)
            lk.issue(f"ds_read_b64_tr_b16 {vr(w + 2*half, 2)}, v58 offset:{off}", tag)
        elif kind == "h":
            off = RH + (t // 4) * 8192 + ks * 4096 + half * 1024
            lk.issue(f"ds_read_b64_tr_b16 {vr(w + 2*half, 2)}, v{59 + (t % 4)} offset:{off}", tag)
        else:
            if half == 0:
                lk.issue(f"ds_read_b128 {vr(w)}, v63 offset:{ks*64}", tag)
    D = 6
    assert NS % 7 == 0
    g.I("s_mov_b32 s50, 0")
    g.I("s_mov_b32 s51, 0")
    if OPT["prio"]:
        g.I("s_setprio 2")
    g.I("s_barrier")
    stamp(g, 1, force=True)
    clkstamp(g, 0)
    rd_x(0)
    for n in range(D):
        rd_w(n, 0); rd_w(n, 1)
    loop = g.newlabel("Lp1"); last = g.newlabel("Lp1last")
    def mf(n, rt):
        ks, ti = steps[n]
        kind, t, ori = tiles[ti]
        a = acc(ti, rt)
        if not OPT["xmfma"]:
            return
        if ori == "N":
            g.I(f"v_mfma_f32_16x16x32_bf16 {vr(a)}, {vr(XF(ks,rt))}, {vr(WF(n))}, {vr(a)}")
        else:
            g.I(f"v_mfma_f32_16x16x32_bf16 {vr(a)}, {vr(WF(n))}, {vr(XF(ks,rt))}, {vr(a)}")
    g.L(loop)
    q_at_loop = list(lk.q)
    NB = NS - D
    BAR = NB + 2
    bwork = []
    bwork.append([f"s_add_u32 s51, s51, {STAGE}", f"s_cmp_ge_u32 s51, {3*STAGE}", f"s_cselect_b32 s52, {3*STAGE}, 0", "s_sub_u32 s51, s51, s52"])
    for k in range(7):
        bwork.append([f"v_add_u32 v{56+k}, s51, v{48+k}"])
    if typ == "B":
        bwork.append(["v_add_u32 v63, 128, v63"])
        if OPT["rot"]:
            bwork.append(["s_add_u32 s55, s55, 1", "s_cmp_eq_u32 s55, 10", "s_cselect_b32 s52, 1280, 0", "s_cselect_b32 s55, 0, s55", "v_subrev_u32 v63, s52, v63"])
    pend = []
    for n in range(NS):
        ks, ti = steps[n]
        if n == NB:
            g.I("s_add_u32 s50, s50, 1")
            g.I("s_cmp_eq_u32 s50, 10")
            g.I(f"s_cbranch_scc1 {last}")
        if n == BAR:
            in_loop_extras(g)
            lk.drain()
            if OPT["prof3"]:
                for slot, cval in ((2, 1), (3, 2), (4, 3), (5, 4), (6, 6), (7, 9)):
                    lb = g.newlabel("Lp3")
                    g.I(f"s_cmp_lg_u32 s50, {cval}")
                    g.I(f"s_cbranch_scc1 {lb}")
                    stamp(g, slot, force=True)
                    g.L(lb)
            if OPT["prof"]:
                g.I("s_memtime s[4:5]")
                g.I("s_waitcnt lgkmcnt(0)")
            g.I("s_barrier")
            if OPT["prof"]:
                g.I("s_memtime s[6:7]")
                g.I("s_waitcnt lgkmcnt(0)")
                g.I("s_sub_u32 s6, s6, s4")
                g.I("s_add_u32 s94, s94, s6")
            rd_x(0)
            pend = [(m, h) for m in range(NS, NS + D) for h in range(2)]
        if ti == 0:
            lk.wait(("x", ks))
        if n < BAR:
            lk.wait(("w", n))
        for rt in range(2):
            mf(n, rt)
            if n < NB:
                rd_w(n + D, rt)
            elif n < BAR:
                for _ in range(3):
                    if bwork:
                        for x in bwork.pop(0):
                            g.I(x)
            else:
                cnt = 2 if (n - BAR) < 2 else 1
                for _ in range(cnt):
                    if pend:
                        m, h = pend[0]
                        if (m - 7) < n or ((m - 7) == n and rt == 1 and False):
                            pend.pop(0); rd_w(m, h)
        if n == 6:
            rd_x(1)
    assert not bwork
    for m, h in pend:
        rd_w(m, h)
    assert lk.q == q_at_loop, (lk.q, q_at_loop)
    g.I(f"s_branch {loop}")
    g.L(last)
    g.I("s_waitcnt lgkmcnt(0)")
    for n in range(NB, NS):
        for rt in range(2):
            mf(n, rt)
    stamp(g, 2)
    clkstamp(g, 2)
    if OPT["prio"]:
        g.I("s_setprio 0")

def in_loop_extras(g):
    l1 = g.newlabel("Lx")
    g.I(f"s_lshl_b32 s53, {sWAVE}, 4")
    g.I("s_add_u32 s53, s53, s50")
    g.I("s_cmp_lg_u32 s53, 6")
    g.I(f"s_cbranch_scc1 {l1}")
    g.I("v_mov_b32 v66, 0")
    g.I(f"global_load_dword v65, v66, s[80:81]{SC}")
    g.L(l1)

def phi(g, reg, tmp):
    g.I(f"v_mul_f32 {tmp}, s51, {reg}")
    g.I(f"v_exp_f32_e64 {tmp}, {tmp} clamp")
    g.I(f"v_max_f32 {reg}, s50, {reg}")
    g.I(f"v_add_f32 {reg}, {reg}, {tmp}")

def store_h(g, tiles_idx, kb0_s):
    g.I(f"s_lshl_b32 s53, {sRB}, 3")
    g.I(f"s_lshl_b32 s54, {sWAVE}, 1")
    g.I("s_add_u32 s53, s53, s54")
    g.I("s_mul_i32 s53, s53, 48")
    g.I(f"s_add_u32 s53, s53, {kb0_s}")
    g.I("s_lshl_b32 s53, s53, 10")
    g.I("v_lshlrev_b32 v1, 4, v0")
    for kbl in range(len(tiles_idx) // 2):
        for rt in range(2):
            a0 = acc(tiles_idx[2*kbl], rt); a1 = acc(tiles_idx[2*kbl+1], rt)
            d = 16 + ((kbl * 2 + rt) % 4) * 4
            g.I(f"v_cvt_pk_bf16_f32 v{d}, v{a0}, v{a0+1}")
            g.I(f"v_cvt_pk_bf16_f32 v{d+1}, v{a0+2}, v{a0+3}")
            g.I(f"v_cvt_pk_bf16_f32 v{d+2}, v{a1}, v{a1+1}")
            g.I(f"v_cvt_pk_bf16_f32 v{d+3}, v{a1+2}, v{a1+3}")
            for j in range(4):
                g.I(f"v_pk_max_i16 v{d+j}, v{d+j}, 0")
            g.I(f"s_add_u32 s54, s53, {H_OFF + rt*48*1024 + kbl*1024}")
            g.I(f"buffer_store_dwordx4 {vr(d)}, v1, {R4(SRD_WS)}, s54 offen{SC}")

def nonce_to_lds(g):
    lab = g.newlabel("Lnz"); loop = g.newlabel("Lnzl"); ok = g.newlabel("Lnzok")
    g.I(f"s_cmp_lg_u32 {sWAVE}, 0")
    g.I(f"s_cbranch_scc1 {lab}")
    g.I("s_mov_b32 s52, 0")
    g.I("s_waitcnt vmcnt(0)")
    g.L(loop)
    g.I(f"v_readfirstlane_b32 {sNONCE}, v65")
    g.I(f"s_cmp_lg_u32 {sNONCE}, 0")
    g.I(f"s_cbranch_scc1 {ok}")
    g.I(f"global_load_dword v65, v66, s[80:81]{SC}")
    g.I("s_add_u32 s52, s52, 1")
    g.I(f"s_cmp_lt_u32 s52, {SPIN_MAX}")
    g.I("s_waitcnt vmcnt(0)")
    g.I(f"s_cbranch_scc1 {loop}")
    g.L(ok)
    g.I(f"v_mov_b32 v66, {NONCE_LDS}")
    g.I("ds_write_b32 v66, v65")
    g.L(lab)

def p1_epilogue_A(g):
    g.C("==== P1 epilogue A")
    g.I(f"s_mov_b32 s50, {EPS6}")
    g.I(f"s_mov_b32 s51, {LOG2E}")
    g.I(f"s_lshl_b32 s52, {sA}, 1")
    store_h(g, [10, 11, 12, 13], "s52")
    KF = lambda t: 86 + 4 * t
    VF = lambda t: 106 + 4 * t
    for t in range(5):
        for rt in range(2):
            a = acc(5 + t, rt)
            g.I(f"v_cvt_pk_bf16_f32 v{VF(t)+2*rt}, v{a}, v{a+1}")
            g.I(f"v_cvt_pk_bf16_f32 v{VF(t)+2*rt+1}, v{a+2}, v{a+3}")
    for j in range(4):
        g.I(f"v_mov_b32 v{32+j}, 0x3f803f80")
    for t in range(5):
        for rt in range(2):
            for i in range(4):
                phi(g, f"v{acc(t,rt)+i}", f"v{2 + i}")
        for rt in range(2):
            a = acc(t, rt)
            g.I(f"v_cvt_pk_bf16_f32 v{KF(t)+2*rt}, v{a}, v{a+1}")
            g.I(f"v_cvt_pk_bf16_f32 v{KF(t)+2*rt+1}, v{a+2}, v{a+3}")
    P = lambda idx: 168 + 4 * idx
    for t in range(5):
        for tp in range(5):
            if abs(t - tp) <= 1:
                g.I(f"v_mfma_f32_16x16x32_bf16 {vr(P(2*t+tp))}, {vr(KF(t))}, {vr(VF(tp))}, 0")
    for t in range(5):
        g.I(f"v_mfma_f32_16x16x32_bf16 {vr(P(13+t))}, {vr(KF(t))}, v[32:35], 0")
    nonce_to_lds(g)
    for idx in range(18):
        g.I(f"ds_write_b128 v{KVA+idx}, {vr(P(idx))}")
    g.I("s_waitcnt vmcnt(0) lgkmcnt(0)")
    g.I("s_barrier")
    publish_flag(g, "H")
    g.I(f"s_lshl_b32 s52, {sWAVE}, 6")
    g.I("v_add_u32 v5, s52, v0")
    g.I("v_lshlrev_b32 v5, 4, v5")
    g.I(f"v_add_u32 v6, {KS_LDS}, v5")
    g.I(f"v_add_u32 v7, 4096, v5")
    g.I(f"v_cmp_gt_u32 vcc, {420*16}, v7")
    g.I(f"v_mov_b32 v8, {BIG}")
    g.I("v_cndmask_b32 v7, v8, v7, vcc")
    g.I(f"v_add_u32 v9, 4096, v6")
    g.I("v_cndmask_b32 v9, v6, v9, vcc")
    for rnd in range(2):
        for w in range(4):
            g.I(f"ds_read_b128 {vr(16 + 16*rnd + 4*w)}, v{6 if rnd == 0 else 9} offset:{w*KS_W}")
    g.I(f"s_lshl_b32 s52, {sA}, 4")
    g.I(f"s_add_u32 s52, s52, {sRB}")
    g.I(f"s_mul_i32 s52, s52, {KVP_STRIDE}")
    g.I(f"s_add_u32 s52, s52, {KVP_OFF}")
    g.I("s_waitcnt lgkmcnt(0)")
    for rnd in range(2):
        b = 16 + 16 * rnd
        for j in range(4):
            g.I(f"v_add_f32 v{b+j}, v{b+j}, v{b+4+j}")
            g.I(f"v_add_f32 v{b+8+j}, v{b+8+j}, v{b+12+j}")
        for j in range(4):
            g.I(f"v_add_f32 v{b+j}, v{b+j}, v{b+8+j}")
        g.I(f"buffer_store_dwordx4 {vr(b)}, v{5 if rnd == 0 else 7}, {R4(SRD_WS)}, s52 offen{SC}")
    stamp(g, 3)

def p1_epilogue_B(g):
    g.C("==== P1 epilogue B")
    g.I(f"s_mov_b32 s50, {EPS6}")
    g.I(f"s_mov_b32 s51, {LOG2E}")
    g.I(f"s_lshl_b32 s52, {sA}, 2")
    g.I("s_add_u32 s52, s52, 16")
    store_h(g, list(range(5, 13)), "s52")
    g.I("v_and_b32 v1, 15, v0")
    g.I("v_lshrrev_b32 v2, 4, v0")
    g.I("v_lshlrev_b32 v1, 4, v1")
    g.I("v_lshrrev_b32 v3, 1, v2")
    g.I("v_lshl_add_u32 v1, v3, 8, v1")
    g.I("v_and_b32 v3, 1, v2")
    g.I("v_lshl_add_u32 v1, v3, 3, v1")
    g.I(f"s_lshl_b32 s52, {sRB}, 3")
    g.I(f"s_lshl_b32 s53, {sWAVE}, 1")
    g.I("s_add_u32 s52, s52, s53")
    g.I("s_mul_i32 s52, s52, 20480")
    g.I(f"s_mul_i32 s53, {sA}, 2560")
    g.I("s_add_u32 s52, s52, s53")
    g.I(f"s_add_u32 s52, s52, {PQ_OFF}")
    for t in range(5):
        for rt in range(2):
            a = acc(t, rt)
            for i in range(4):
                phi(g, f"v{a+i}", f"v{2 + i}")
            d = 86 + (2 * t + rt) * 2
            g.I(f"v_cvt_pk_bf16_f32 v{d}, v{a}, v{a+1}")
            g.I(f"v_cvt_pk_bf16_f32 v{d+1}, v{a+2}, v{a+3}")
            g.I(f"s_add_u32 s53, s52, {rt*20480 + t*512}")
            g.I(f"buffer_store_dwordx2 {vr(d,2)}, v1, {R4(SRD_WS)}, s53 offen{SC}")
    skip = g.newlabel("Lng")
    g.I(f"s_cmp_lg_u32 {sA}, 0")
    g.I(f"s_cbranch_scc1 {skip}")
    g.I("v_and_b32 v1, 15, v0")
    g.I("v_lshlrev_b32 v1, 2, v1")
    g.I("v_cmp_gt_u32 vcc, 16, v0")
    g.I(f"v_mov_b32 v6, {BIG}")
    g.I("v_cndmask_b32 v1, v6, v1, vcc")
    g.I(f"s_lshl_b32 s52, {sRB}, 7")
    g.I(f"s_lshl_b32 s53, {sWAVE}, 5")
    g.I("s_add_u32 s52, s52, s53")
    g.I("s_lshl_b32 s52, s52, 2")
    g.I(f"s_add_u32 s52, s52, {G_OFF}")
    for rt in range(2):
        a = acc(13, rt)
        g.I(f"v_mul_f32 v2, s51, v{a}")
        g.I("v_exp_f32_e64 v2, -v2")
        g.I("v_add_f32 v2, 1.0, v2")
        g.I(f"v_rcp_f32 v{8+rt}, v2")
        g.I(f"s_add_u32 s53, s52, {rt*64}")
        g.I(f"buffer_store_dword v{8+rt}, v1, {R4(SRD_WS)}, s53 offen{SC}")
    g.L(skip)
    nonce_to_lds(g)
    g.I("s_waitcnt vmcnt(0) lgkmcnt(0)")
    g.I("s_barrier")
    publish_flag(g, "H")
    stamp(g, 3)

def flag_lane0(g, b=5):
    g.I(f"v_mov_b32 v{b}, {sNONCE}")
    g.I(f"v_mov_b32 v{b+1}, 0")
    g.I("v_cmp_eq_u32 vcc, 0, v0")
    g.I(f"v_mov_b32 v{b+2}, {BIG}")
    g.I(f"v_cndmask_b32 v{b+1}, v{b+2}, v{b+1}, vcc")

def lds_sig(g, addr):
    g.I(f"v_mov_b32 v12, {addr}")
    g.I("v_mov_b32 v13, 1")
    g.I("v_cmp_eq_u32 vcc, 0, v0")
    g.I("s_and_saveexec_b64 s[4:5], vcc")
    g.I("ds_add_u32 v12, v13")
    g.I("s_mov_b64 exec, s[4:5]")

def lds_wait(g, addr, n):
    loop = g.newlabel("Llw"); done = g.newlabel("Llwd")
    g.I(f"v_mov_b32 v12, {addr}")
    g.I("s_mov_b32 s4, 0")
    g.L(loop)
    g.I("ds_read_b32 v13, v12")
    g.I("s_waitcnt lgkmcnt(0)")
    g.I("v_readfirstlane_b32 s5, v13")
    g.I(f"s_cmp_ge_u32 s5, {n}")
    g.I(f"s_cbranch_scc1 {done}")
    g.I("s_add_u32 s4, s4, 1")
    g.I(f"s_cmp_lt_u32 s4, {SPIN_MAX*4}")
    g.I(f"s_cbranch_scc1 {loop}")
    g.L(done)

def pub_p2(g):
    def f():
        lb = g.newlabel("Lpub")
        g.I(f"s_bitcmp1_b32 {sI}, 1")
        g.I(f"s_cbranch_scc1 {lb}")
        g.I(f"v_mov_b32 v12, {CNT_LDS}")
        g.I("v_mov_b32 v13, 1")
        g.I("v_cmp_eq_u32 vcc, 0, v0")
        g.I("s_and_saveexec_b64 s[4:5], vcc")
        g.I("ds_add_rtn_u32 v13, v12, v13")
        g.I("s_waitcnt lgkmcnt(0)")
        g.I("s_mov_b64 exec, s[4:5]")
        g.I("v_readfirstlane_b32 s6, v13")
        g.I("s_cmp_lg_u32 s6, 3")
        g.I(f"s_cbranch_scc1 {lb}")
        publish_flag(g, "K", "s4", "s5", 12, anywave=True)
        g.L(lb)
    return f

def publish_flag(g, kind, t0="s52", t1="s53", b=5, anywave=False):
    lab = g.newlabel("Lfl")
    if not anywave:
        g.I(f"s_cmp_lg_u32 {sWAVE}, 0")
        g.I(f"s_cbranch_scc1 {lab}")
    flag_lane0(g, b)
    if kind == "H":
        g.I(f"s_lshr_b32 {t0}, {sXCD}, 1")
        g.I(f"s_lshl_b32 {t0}, {t0}, 2")
        g.I(f"s_and_b32 {t1}, {sI}, 3")
        g.I(f"s_add_u32 {t0}, {t0}, {t1}")
        g.I(f"s_lshl_b32 {t0}, {t0}, 2")
        g.I(f"s_lshl_b32 {t1}, {sRB}, 8")
        g.I(f"s_add_u32 {t0}, {t0}, {t1}")
        g.I(f"s_add_u32 {t0}, {t0}, {HF_OFF}")
    elif kind == "K":
        g.I(f"s_lshl_b32 {t0}, {sA}, 8")
        g.I(f"s_lshl_b32 {t1}, {sRB}, 2")
        g.I(f"s_add_u32 {t0}, {t0}, {t1}")
        g.I(f"s_add_u32 {t0}, {t0}, {KF_OFF}")
    else:
        g.I(f"s_lshl_b32 {t0}, {sRB}, 8")
        g.I(f"s_lshl_b32 {t1}, {sA}, 2")
        g.I(f"s_add_u32 {t0}, {t0}, {t1}")
        g.I(f"s_add_u32 {t0}, {t0}, {QF_OFF}")
    g.I(f"buffer_store_dword v{b}, v{b+1}, {R4(SRD_WS)}, {t0} offen{SC}")
    g.L(lab)

def read_nonce(g):
    g.I(f"v_mov_b32 v5, {NONCE_LDS}")
    g.I("ds_read_b32 v5, v5")
    g.I("s_waitcnt lgkmcnt(0)")
    g.I(f"v_readfirstlane_b32 {sNONCE}, v5")

def reducer(g):
    g.C("==== kv reducer")
    g.I(f"s_lshl_b32 s50, {sXCD}, 1")
    g.I(f"s_add_u32 s50, s50, {sI}")
    g.I("s_sub_u32 s50, s50, 30")
    g.I(f"s_lshl_b32 s51, {sWAVE}, 6")
    g.I("v_add_u32 v1, s51, v0")
    g.I("v_cmp_le_u32 vcc, 192, v1")
    g.I("v_cndmask_b32 v2, 0, 1, vcc")
    g.I("v_mul_u32_u24 v3, 192, v2")
    g.I("v_sub_u32 v3, v1, v3")
    g.I("v_cmp_le_u32 vcc, 96, v3")
    g.I("v_cndmask_b32 v4, 0, 1, vcc")
    g.I("v_mul_u32_u24 v5, 96, v4")
    g.I("v_sub_u32 v5, v3, v5")
    g.I("v_lshrrev_b32 v6, 5, v5")
    g.I("v_bfe_u32 v7, v5, 1, 4")
    g.I("v_and_b32 v8, 1, v5")
    g.I("v_lshl_add_u32 v9, v6, 1, v8")
    g.I("v_sub_u32 v9, v9, v2")
    g.I("v_lshrrev_b32 v10, 2, v7")
    g.I("v_and_b32 v11, 3, v7")
    g.I("v_mul_u32_u24 v10, 5, v10")
    g.I("v_add_u32 v12, v10, v11")
    g.I("v_add_u32 v13, 4, v10")
    g.I("v_cmp_eq_u32 vcc, 1, v11")
    g.I("v_cndmask_b32 v13, v13, 20, vcc")
    g.I("v_cmp_eq_u32 vcc, 1, v4")
    g.I("v_cndmask_b32 v12, v12, v13, vcc")
    g.I("s_and_b32 s51, s50, 1")
    g.I("s_lshl_b32 s51, s51, 1")
    g.I("v_add_u32 v16, s51, v2")
    g.I("v_mul_u32_u24 v16, 105, v16")
    g.I("v_mul_u32_u24 v15, 5, v12")
    g.I("v_add3_u32 v16, v16, v15, v9")
    g.I("v_lshlrev_b32 v16, 4, v16")
    g.I(f"v_mov_b32 v18, {BIG}")
    g.I("v_cmp_gt_u32 vcc, 5, v9")
    g.I("v_cndmask_b32 v16, v18, v16, vcc")
    g.I("v_mul_u32_u24 v15, v4, v11")
    g.I("v_cmp_gt_u32 vcc, 2, v15")
    g.I("v_cndmask_b32 v16, v18, v16, vcc")
    g.I("v_cmp_gt_u32 vcc, 384, v1")
    g.I("v_cndmask_b32 v16, v18, v16, vcc")
    g.I("v_lshlrev_b32 v17, 3, v3")
    g.I("v_lshrrev_b32 v20, 2, v7")
    g.I("v_lshlrev_b32 v20, 1, v20")
    g.I("v_and_b32 v21, 1, v7")
    g.I("v_add_u32 v20, v20, v21")
    g.I("v_lshlrev_b32 v20, 4, v20")
    g.I("v_lshl_add_u32 v20, v6, 7, v20")
    g.I("v_lshl_add_u32 v20, v8, 3, v20")
    g.I("v_add_u32 v20, 768, v20")
    g.I("v_cmp_eq_u32 s[4:5], 1, v4")
    g.I("v_cndmask_b32 v17, v17, v20, s[4:5]")
    g.I(f"v_mul_u32_u24 v21, {KVF_STRIDE}, v2")
    g.I("v_add_u32 v17, v17, v21")
    g.I("v_cndmask_b32 v17, v18, v17, vcc")
    g.I("v_cmp_gt_u32 vcc, 2, v15")
    g.I("v_cndmask_b32 v17, v18, v17, vcc")
    lab = g.newlabel("Lrp")
    g.I(f"s_cmp_lg_u32 {sWAVE}, 4")
    g.I(f"s_cbranch_scc1 {lab}")
    g.I("v_lshlrev_b32 v19, 2, v0")
    g.I("s_lshr_b32 s51, s50, 1")
    g.I("s_lshl_b32 s51, s51, 8")
    g.I("v_add_u32 v19, s51, v19")
    g.I("v_cmp_gt_u32 vcc, 16, v0")
    g.I("v_cndmask_b32 v19, v18, v19, vcc")
    poll(g, "v19", KF_OFF, 16)
    g.L(lab)
    stamp(g, 4)
    g.I("s_barrier")
    g.I("s_lshr_b32 s51, s50, 1")
    g.I(f"s_mul_i32 s51, s51, {16*KVP_STRIDE}")
    g.I(f"s_add_u32 s51, s51, {KVP_OFF}")
    for rb in range(16):
        g.I(f"s_add_u32 s52, s51, {rb*KVP_STRIDE}")
        g.I(f"buffer_load_dwordx4 {vr(32+4*rb)}, v16, {R4(SRD_WS)}, s52 offen{SC}")
    for rb in range(1, 16):
        g.I(f"s_waitcnt vmcnt({15-rb})")
        for j in range(4):
            g.I(f"v_add_f32 v{32+j}, v{32+j}, v{32+4*rb+j}")
    g.I("v_cvt_pk_bf16_f32 v20, v32, v33")
    g.I("v_cvt_pk_bf16_f32 v21, v34, v35")
    g.I(f"s_mul_i32 s52, s50, {2*KVF_STRIDE}")
    g.I(f"s_add_u32 s52, s52, {KVF_OFF}")
    g.I(f"buffer_store_dwordx2 v[20:21], v17, {R4(SRD_WS)}, s52 offen{SC}")
    g.I("s_waitcnt vmcnt(0)")
    g.I("s_barrier")
    lab = g.newlabel("Lrf")
    g.I(f"s_cmp_lg_u32 {sWAVE}, 0")
    g.I(f"s_cbranch_scc1 {lab}")
    g.I(f"v_mov_b32 v5, {sNONCE}")
    g.I("v_mov_b32 v6, 0")
    g.I("v_cmp_eq_u32 vcc, 0, v0")
    g.I("v_cndmask_b32 v6, v18, v6, vcc")
    g.I("s_lshl_b32 s52, s50, 2")
    g.I(f"s_add_u32 s52, s52, {FF_OFF}")
    g.I(f"buffer_store_dword v5, v6, {R4(SRD_WS)}, s52 offen{SC}")
    g.L(lab)
    stamp(g, 5)

def p2_body(g, nr, isL, vm, post_bp=None):
    g.C(f"==== P2 body nr={nr} L={isL}")
    ACC2 = 208
    A2 = lambda rt, ct: ACC2 + (rt * 4 + ct) * 4
    def AB(sidx, rt):
        if sidx < 4: return 104 + (sidx * 3 + rt) * 4
        if sidx < 7: return 16 + ((sidx - 4) * 3 + rt) * 4
        if sidx < 11: return 104 + ((sidx - 7) * 3 + rt) * 4
        return 16 + rt * 4
    BF = lambda b, ct: (80 if b == 0 else 52) + ct * 4
    WA = [68 + k for k in range(10)]
    VK = 79
    VB = lambda ct: 96 + ct
    VA = 100
    VG = [101, 102, 103]
    VBH = lambda ct: 4 + ct
    VBH2 = lambda ct: 200 + ct
    VK1 = 204
    PQ = lambda k: 152 + (k % 12) * 4
    KV = lambda hh, T: 28 + ((hh % 3) * 2 + T) * 4
    VAL = lambda rt: 104 + rt * 16
    DD = lambda k, T: (52 if k % 2 == 0 else 16) + T * 4
    WFR = lambda ct: 80 + ct * 4
    PK = lambda k: 64 if k % 2 == 0 else 96
    lk = LgkmTracker(g)
    half_slots = (2, 4) if isL else (0, 2)
    g.I("v_and_b32 v1, 15, v0")
    g.I("v_lshrrev_b32 v2, 4, v0")
    g.I("v_bfe_u32 v3, v0, 2, 2")
    g.I("v_and_b32 v4, 3, v0")
    g.I(f"v_lshlrev_b32 v{VA}, 4, v0")
    g.I(f"v_mov_b32 v5, {BIG}")
    g.I("v_cmp_gt_u32 vcc, 48, v0")
    g.I(f"v_cndmask_b32 v{VK}, v5, v{VA}, vcc")
    g.I("v_lshrrev_b32 v6, 2, v1")
    g.I("v_lshlrev_b32 v6, 1, v6")
    g.I("v_and_b32 v7, 1, v1")
    g.I("v_add_u32 v6, v6, v7")
    g.I("v_lshlrev_b32 v6, 4, v6")
    g.I("v_lshl_add_u32 v6, v2, 7, v6")
    g.I("v_add_u32 v6, 768, v6")
    g.I("v_cndmask_b32 v6, v5, v6, vcc")
    g.I("v_and_b32 v7, 2, v1")
    g.I("v_cmp_eq_u32 vcc, 0, v7")
    g.I(f"v_cndmask_b32 v{VK1}, v5, v6, vcc")
    g.I("v_and_b32 v6, 1, v2")
    g.I("v_lshrrev_b32 v7, 1, v3")
    g.I("v_lshlrev_b32 v7, 1, v7")
    g.I("v_lshl_add_u32 v7, v6, 2, v7")
    g.I("v_lshl_add_u32 v8, v2, 2, v3")
    g.I("v_and_b32 v9, 1, v4")
    g.I("v_lshlrev_b32 v9, 3, v9")
    g.I("v_lshl_add_u32 v9, v8, 7, v9")
    g.I("s_lshl_b32 s56, s53, 12")
    g.I("v_add_u32 v9, s56, v9")
    g.I("v_lshrrev_b32 v8, 1, v4")
    for ct in range(4):
        g.I(f"v_add_u32 v12, {2*ct}, v8")
        g.I("v_xor_b32 v12, v12, v7")
        g.I(f"v_lshl_add_u32 v{VB(ct)}, v12, 4, v9")
    for ct in range(4):
        g.I(f"v_add_u32 v{VBH2(ct)}, 0x20000, v{VB(ct)}")
    for rt in range(nr):
        for ct in range(4):
            for i in range(4):
                g.I(f"v_mov_b32 v{A2(rt,ct)+i}, 0")
    g.I("v_mul_u32_u24 v12, 5, v2")
    g.I("s_mul_i32 s56, s53, 20480")
    g.I(f"s_add_u32 s56, s56, {WO_BASE}")
    g.I("v_lshlrev_b32 v13, 3, v4")
    g.I("v_add_u32 v13, s56, v13")
    for n in range(5):
        for half in range(2):
            g.I(f"v_add_u32 v14, {8*n + 4*half}, v3")
            g.I("v_mul_u32_u24 v15, 52, v14")
            g.I("v_lshrrev_b32 v15, 8, v15")
            g.I("v_mul_u32_u24 v8, 5, v15")
            g.I("v_sub_u32 v14, v14, v8")
            g.I("v_add_u32 v8, 4, v14")
            g.I("v_subrev_u32 v9, 5, v8")
            g.I("v_cmp_eq_u32 vcc, 0, v14")
            g.I("v_cndmask_b32 v8, v9, v8, vcc")
            g.I("v_and_b32 v9, 1, v15")
            g.I("v_cmp_eq_u32 vcc, 1, v9")
            g.I("v_cndmask_b32 v14, v14, v8, vcc")
            g.I("v_mul_u32_u24 v15, 20, v15")
            g.I("v_add3_u32 v14, v14, v15, v12")
            g.I("v_bfe_u32 v15, v14, 1, 2")
            g.I("v_lshlrev_b32 v15, 5, v15")
            g.I("v_lshl_add_u32 v14, v14, 7, v15")
            g.I(f"v_add_u32 v{WA[2*n+half]}, v14, v13")
    g.I("v_lshlrev_b32 v11, 2, v1")
    for ct in range(4):
        g.I(f"v_add_u32 v{VBH(ct)}, 0x10000, v{VB(ct)}")
    g.I("s_mul_i32 s3, s55, 48")
    g.I("s_mul_i32 s56, s53, 12")
    g.I("s_add_u32 s3, s3, s56")
    g.I("s_lshl_b32 s3, s3, 10")
    if OPT["rot2"]:
        g.I("s_lshl_b32 s61, s50, 10")
    else:
        g.I("s_mov_b32 s61, 0")
    g.I("s_mul_i32 s62, s55, 20480")
    g.I("s_mul_i32 s56, s53, 5120")
    g.I("s_add_u32 s62, s62, s56")
    def load_a(sidx):
        g.I("s_add_u32 s6, s3, s61")
        for rt in range(nr):
            g.I(f"s_add_u32 s56, s6, {H_OFF + rt*48*1024}")
            vm.issue(f"buffer_load_dwordx4 {vr(AB(sidx, rt))}, v{VA}, {R4(SRD_WS)}, s56 offen{SC}", ("a", sidx))
        g.I("s_add_u32 s61, s61, 1024")
        g.I(f"s_cmp_ge_u32 s61, {12*1024}")
        g.I(f"s_cselect_b32 s56, {12*1024}, 0")
        g.I("s_sub_u32 s61, s61, s56")
    if isL:
        g.I("v_lshrrev_b32 v12, 4, v0")
        g.I("v_lshlrev_b32 v12, 8, v12")
        g.I("v_and_b32 v13, 15, v0")
        g.I("v_lshl_add_u32 v12, v13, 2, v12")
        g.I(f"s_lshl_b32 s56, {sXCD}, 9")
        g.I("v_add_u32 v12, s56, v12")
        g.I("v_cmp_gt_u32 vcc, 32, v0")
        g.I(f"v_mov_b32 v13, {BIG}")
        g.I("v_cndmask_b32 v12, v13, v12, vcc")
        poll(g, "v12", HF_OFF, 32)
        vm.q = []
        lds_sig(g, CNT1_LDS)
    else:
        g.I("s_waitcnt vmcnt(0)")
        if post_bp:
            post_bp()
        lds_sig(g, CNT2_LDS)
    stamp(g, 4)
    lds_wait(g, CNT1_LDS, 4)
    stamp(g, 1, force=OPT["prof2"])
    def rd_b(sidx):
        base = W2R[sidx]
        for ct in range(4):
            for half in range(2):
                off = base + half * 2048
                if off >= 131072:
                    reg = VBH2(ct); off -= 131072
                elif off >= 65536:
                    reg = VBH(ct); off -= 65536
                else:
                    reg = VB(ct)
                lk.issue(f"ds_read_b64_tr_b16 {vr(BF(sidx % 2, ct) + 2*half, 2)}, v{reg} offset:{off}", ("b", sidx, ct))
    for sidx in range(7):
        load_a(sidx)
    def load_g():
        g.I("s_lshl_b32 s6, s55, 6")
        for rt in range(nr):
            g.I(f"s_add_u32 s56, s6, {G_OFF + rt*64}")
            vm.issue(f"buffer_load_dword v{VG[rt]}, v11, {R4(SRD_WS)}, s56 offen{SC}", ("g", 0))
    items = [(hh, rt) for hh in range(8) for rt in range(nr)]
    def load_pq(k):
        hh, rt = items[k]
        g.I(f"s_add_u32 s56, s62, {PQ_OFF + rt*20480 + ((5*hh) >> 1)*256}")
        vm.issue(f"buffer_load_dwordx4 {vr(PQ(k))}, v{VK}, {R4(SRD_WS)}, s56 offen{SC}", ("pq", k))
    load_g()
    for k in range(min(12, len(items))):
        load_pq(k)
    lds_wait(g, CNT2_LDS, 4)
    dma_w2(g, vm, 7, half_slots); dma_w2(g, vm, 8, half_slots)
    def load_kv(hh):
        g.I(f"s_add_u32 s56, s7, {KVF_OFF + hh*KVF_STRIDE}")
        vm.issue(f"buffer_load_dwordx4 {vr(KV(hh,0))}, v{VK}, {R4(SRD_WS)}, s56 offen{SC}", ("kv", hh))
        vm.issue(f"buffer_load_dwordx4 {vr(KV(hh,1))}, v{VK1}, {R4(SRD_WS)}, s56 offen{SC}", ("kv", hh))
    rd_b(0)
    for sidx in range(12):
        if OPT["prof2"] and sidx in (0, 1, 3, 6, 8, 11):
            lk.drain()
            stamp(g, {0: 2, 1: 3, 3: 4, 6: 5, 8: 6, 11: 7}[sidx], force=True)
        if sidx == 5:
            g.I("s_barrier")
            dma_wo(g, vm, 10 if isL else 0, 20 if isL else 10)
        if sidx == 6:
            vm.wait(("d", 8))
            g.I("s_barrier")
            dma_w2(g, vm, 9, half_slots)
        if sidx == 7:
            g.I("s_barrier")
            dma_w2(g, vm, 10, half_slots)
        if sidx == 8:
            vm.wait(("d", 9))
            g.I("s_barrier")
            dma_w2(g, vm, 11, half_slots)
            lk.drain()
            g.I("v_lshlrev_b32 v12, 2, v0")
            g.I("s_lshl_b32 s56, s53, 4")
            g.I("v_add_u32 v12, s56, v12")
            g.I("v_cmp_gt_u32 vcc, 4, v0")
            g.I(f"v_mov_b32 v13, {BIG}")
            g.I("v_cndmask_b32 v12, v13, v12, vcc")
            poll(g, "v12", FF_OFF, 4)
            vm.q = []
            stamp(g, 5)
            g.I("s_lshl_b32 s7, s53, 3")
            g.I(f"s_mul_i32 s7, s7, {KVF_STRIDE}")
            for hh in range(3):
                load_kv(hh)
        if sidx == 9:
            g.I("s_barrier")
        if sidx + 1 < 12:
            rd_b(sidx + 1)
        vm.wait(("a", sidx))
        for ct in range(4):
            lk.wait(("b", sidx, ct))
            for rt in range(nr):
                a = A2(rt, ct)
                g.I(f"v_mfma_f32_16x16x32_bf16 {vr(a)}, {vr(BF(sidx % 2, ct))}, {vr(AB(sidx, rt))}, {vr(a)}")
        if sidx < 4:
            load_a(sidx + 7)
        if sidx == 4:
            load_a(11)
    lk.drain()
    clkstamp(g, 4)
    vm.wait(("g", 0))
    for rt in range(nr):
        g.I(f"v_sub_f32 v12, 1.0, v{VG[rt]}")
        for ct in range(4):
            for i in range(0, 4, 2):
                g.I(f"v_pk_mul_f32 {vr(A2(rt,ct)+i, 2)}, {vr(A2(rt,ct)+i, 2)}, v[12:13] op_sel_hi:[1,0]")
    g.I("s_barrier")
    stamp(g, 6)
    g.I(f"s_mov_b32 s4, {EPS6}")
    def omfma(k):
        hh, rt = items[k]
        vm.wait(("kv", hh))
        vm.wait(("pq", k))
        g.I(f"v_mfma_f32_16x16x32_bf16 {vr(DD(k,0))}, {vr(KV(hh,0))}, {vr(PQ(k))}, 0")
        g.I(f"v_mfma_f32_16x16x32_bf16 {vr(DD(k,1))}, {vr(KV(hh,1))}, {vr(PQ(k))}, 0")
        if k + 12 < len(items):
            load_pq(k + 12)
        if rt == nr - 1 and hh + 3 < 8:
            load_kv(hh + 3)
    def norm(k):
        hh, rt = items[k]
        d1, d2 = DD(k, 0), DD(k, 1)
        g.I(f"v_add_f32 v12, s4, v{d2+1}")
        g.I("v_rcp_f32 v12, v12")
        g.I(f"v_mul_f32 v12, v12, v{VG[rt]}")
        v0_ = 5 * hh
        R = lambda v: VAL(rt) + (v % 16)
        if hh % 2 == 0:
            p = v0_; s4v = v0_ + 4
        else:
            p = v0_ + 1; s4v = v0_
        g.I(f"v_pk_mul_f32 {vr(R(p), 2)}, {vr(d1, 2)}, v[12:13] op_sel_hi:[1,0]")
        g.I(f"v_pk_mul_f32 {vr(R(p+2), 2)}, {vr(d1+2, 2)}, v[12:13] op_sel_hi:[1,0]")
        g.I(f"v_mul_f32 v{R(s4v)}, v12, v{d2}")
    def rd_wo(n):
        for ct in range(4):
            for half in range(2):
                if ct == 0:
                    ar = WA[2*n+half]
                else:
                    ar = 14 + half
                    g.I(f"v_xor_b32 v{ar}, {ct << 5}, v{WA[2*n+half]}")
                lk.issue(f"ds_read_b64_tr_b16 {vr(WFR(ct) + 2*half, 2)}, v{ar}", ("wf", n, ct))
    pkc = [0]
    def kstep(n):
        for rt in range(nr):
            base = VAL(rt) + (8 * n) % 16
            pk = PK(pkc[0]); pkc[0] += 1
            for j in range(4):
                g.I(f"v_cvt_pk_bf16_f32 v{pk+j}, v{base+2*j}, v{base+2*j+1}")
            for ct in range(4):
                lk.wait(("wf", n, ct))
                a = A2(rt, ct)
                g.I(f"v_mfma_f32_16x16x32_bf16 {vr(a)}, {vr(WFR(ct))}, {vr(pk)}, {vr(a)}")
        if n + 1 < 5:
            rd_wo(n + 1)
    rd_wo(0)
    omfma(0)
    next_n = 0
    for k in range(len(items)):
        hh, rt = items[k]
        if k + 1 < len(items):
            omfma(k + 1)
        norm(k)
        if rt == nr - 1:
            while next_n < 5 and 8 * (next_n + 1) <= 5 * (hh + 1):
                kstep(next_n); next_n += 1
    stamp(g, 7)
    clkstamp(g, 6)

def p2_final(g):
    A2 = lambda rt, ct: 208 + (rt * 4 + ct) * 4
    def base_of(dst, w_s):
        g.I(f"s_mul_i32 {dst}, {w_s}, 9216")
        g.I(f"s_cmp_ge_u32 {w_s}, 4")
        g.I(f"s_cselect_b32 s56, {126976 - 4*9216}, 0")
        g.I(f"s_add_u32 {dst}, {dst}, s56")
    g.I("v_lshlrev_b32 v1, 4, v0")
    base_of("s57", sWAVE)
    g.I("v_add_u32 v2, s57, v1")
    g.I("v_and_b32 v3, 15, v0")
    g.I("v_mul_u32_u24 v3, 1280, v3")
    g.I("v_lshrrev_b32 v4, 4, v0")
    g.I("v_lshl_add_u32 v3, v4, 3, v3")
    g.I(f"s_mul_i32 s58, s55, {16*1280}")
    g.I("s_lshl_b32 s59, s50, 7")
    g.I("s_add_u32 s58, s58, s59")
    g.I("s_lshl_b32 s59, s53, 5")
    g.I("s_add_u32 s58, s58, s59")
    g.I("s_cmp_lt_u32 s51, 2")
    g.I("s_cselect_b32 s59, s54, 0")
    g.I("s_cmp_eq_u32 s59, 1")
    g.I(f"s_cselect_b32 s59, {BIG}, 0")
    g.I("v_add_u32 v5, s59, v3")
    labs = [g.newlabel("Lfk") for _ in range(4)]
    done = g.newlabel("Lfd")
    for kq in range(1, 4):
        g.I(f"s_cmp_eq_u32 s53, {kq}")
        g.I(f"s_cbranch_scc1 {labs[kq]}")
    for kq in range(4):
        g.L(labs[kq])
        others = [c for c in range(4) if c != kq]
        for rt in range(3):
            for k, ct in enumerate(others):
                g.I(f"ds_write_b128 v2, {vr(A2(rt, ct))} offset:{(rt*3 + k)*1024}")
        for k, src in enumerate(others):
            g.I("s_lshl_b32 s60, s54, 2")
            g.I(f"s_add_u32 s60, s60, {src}")
            base_of("s61", "s60")
            idx = kq if kq < src else kq - 1
            g.I(f"s_add_u32 s61, s61, {idx*1024}")
            g.I(f"v_add_u32 v{6+k}, s61, v1")
        g.I("s_waitcnt lgkmcnt(0)")
        g.I("s_barrier")
        for rt in range(3):
            for k in range(3):
                g.I(f"ds_read_b128 {vr(16 + (rt*3 + k)*4)}, v{6+k} offset:{rt*3*1024}")
        for rt in range(3):
            g.I(f"s_waitcnt lgkmcnt({6 - 3*rt})")
            a = A2(rt, kq)
            b = 16 + rt * 12
            for i in range(4):
                g.I(f"v_add_f32 v{b+i}, v{b+i}, v{b+4+i}")
                g.I(f"v_add_f32 v{a+i}, v{a+i}, v{b+8+i}")
            for i in range(4):
                g.I(f"v_add_f32 v{a+i}, v{a+i}, v{b+i}")
            g.I(f"v_cvt_pk_bf16_f32 v{b}, v{a}, v{a+1}")
            g.I(f"v_cvt_pk_bf16_f32 v{b+1}, v{a+2}, v{a+3}")
            g.I(f"s_add_u32 s56, s58, {rt*16*1280}")
            g.I(f"buffer_store_dwordx2 {vr(b,2)}, v{3 if rt < 2 else 5}, {R4(SRD_OUT)}, s56 offen")
        if kq < 3:
            g.I(f"s_branch {done}")
    g.L(done)

def kernel(g):
    end = "Lend"
    g.I("s_cmp_ge_u32 s2, 256")
    g.I(f"s_cbranch_scc1 {end}")
    g.I("s_load_dwordx16 s[64:79], s[0:1], 0")
    g.I("s_load_dwordx4 s[80:83], s[0:1], 64")
    if OPT["stamp"]:
        for k in range(8):
            g.I(f"s_mov_b32 s{84+2*k}, 0")
        g.I("s_memrealtime s[84:85]")
    if OPT["span"]:
        g.I("s_memrealtime s[100:101]")
    g.I("v_lshrrev_b32 v1, 6, v0")
    g.I("v_and_b32 v0, 63, v0")
    g.I(f"v_readfirstlane_b32 {sWAVE}, v1")
    g.I(f"s_and_b32 {sXCD}, s2, 7")
    g.I(f"s_lshr_b32 {sI}, s2, 3")
    g.I(f"s_and_b32 {sRB}, {sXCD}, 1")
    g.I(f"s_lshl_b32 {sRB}, {sRB}, 3")
    g.I(f"s_lshr_b32 s50, {sI}, 2")
    g.I(f"s_add_u32 {sRB}, {sRB}, s50")
    g.I(f"s_lshr_b32 {sA}, {sXCD}, 1")
    g.I(f"s_lshl_b32 {sA}, {sA}, 1")
    g.I(f"s_and_b32 s50, {sI}, 1")
    g.I(f"s_add_u32 {sA}, {sA}, s50")
    g.I(f"s_mov_b32 {sNONCE}, 0")
    if OPT["prof"]:
        g.I("s_getreg_b32 s3, hwreg(HW_REG_XCC_ID)")
        g.I("s_and_b32 s3, s3, 15")
        g.I("s_add_u32 s92, s3, 1000")
    g.I(f"s_cmp_ge_u32 {sWAVE}, 4")
    g.I("s_cbranch_scc1 Lload")
    g.I(f"s_bitcmp1_b32 {sI}, 1")
    g.I("s_cbranch_scc1 LcB")
    p1_compute(g, "A")
    p1_epilogue_A(g)
    read_nonce(g)
    g.I("s_mov_b32 s7, 0")
    g.I("s_branch Lp2C")
    g.L("LcB")
    p1_compute(g, "B")
    p1_epilogue_B(g)
    read_nonce(g)
    g.L("Lp2C")
    def pub():
        la, lb = g.newlabel("Lpub"), g.newlabel("Lpub")
        g.I(f"s_bitcmp1_b32 {sI}, 1")
        g.I(f"s_cbranch_scc1 {lb}")
        save = None
        publish_flag(g, "K")
        g.I(f"s_branch {la}")
        g.L(lb)
        publish_flag(g, "Q")
        g.L(la)
    g.I(f"s_cmp_ge_u32 {sI}, 30")
    g.I("s_cbranch_scc1 LredC")
    p2_decode(g)
    p2_dma_setup(g)
    g.I(f"s_add_u32 s57, s57, {7*32*1280}")
    g.I("s_cmp_ge_u32 s57, s63")
    g.I(f"s_cselect_b32 s56, {12*32*1280}, 0")
    g.I("s_sub_u32 s57, s57, s56")
    vm = VmTracker(g)
    p2_body(g, 3, False, vm, post_bp=pub_p2(g))
    g.I("s_branch Lfin")
    g.L("LredC")
    g.I("s_waitcnt vmcnt(0)")
    g.I("s_barrier")
    g.I("s_branch Lred")
    g.L("Lload")
    g.I(f"s_bitcmp1_b32 {sI}, 1")
    g.I("s_cbranch_scc1 LldB")
    p1_loader(g, "A")
    g.I("s_branch Lldtail")
    g.L("LldB")
    p1_loader(g, "B")
    g.L("Lldtail")
    g.I(f"s_cmp_ge_u32 {sI}, 30")
    g.I("s_cbranch_scc1 Lldred")
    p2_decode(g)
    p2_dma_setup(g)
    vmL = VmTracker(g)
    vmL.q = [("c", 8)] * 11 + [("c", 9)] * 11
    vmL.wait(("c", 8))
    g.I("s_barrier")
    dma_w2(g, vmL, 0); dma_w2(g, vmL, 1)
    vmL.wait(("c", 9))
    stamp(g, 3)
    g.I("s_barrier")
    for k in (2, 3, 4):
        dma_w2(g, vmL, k)
    g.I("s_barrier")
    dma_w2(g, vmL, 5); dma_w2(g, vmL, 6)
    read_nonce(g)
    l2 = "Lp2L2"
    g.I("s_cmp_lt_u32 s51, 2")
    g.I(f"s_cbranch_scc1 {l2}")
    vm3 = VmTracker(g); vm3.q = list(vmL.q)
    p2_body(g, 3, True, vm3)
    g.I("s_branch Lfin")
    g.L(l2)
    vm2 = VmTracker(g); vm2.q = list(vmL.q)
    p2_body(g, 2, True, vm2)
    g.L("Lfin")
    p2_final(g)
    g.I("s_branch Ldone")
    g.L("Lldred")
    g.I("s_waitcnt vmcnt(11)")
    g.I("s_barrier")
    g.I("s_waitcnt vmcnt(0)")
    g.I("s_barrier")
    g.I("s_barrier")
    read_nonce(g)
    g.I("s_barrier")
    g.L("Lred")
    reducer(g)
    g.L("Ldone")
    if OPT["span"]:
        g.I("s_waitcnt vmcnt(0)")
        g.I("s_memrealtime s[4:5]")
        g.I("s_waitcnt lgkmcnt(0)")
        g.I("s_not_b32 s6, s100")
        g.I("v_mov_b32 v1, 0")
        g.I("v_mov_b32 v2, s4")
        g.I("v_mov_b32 v3, s6")
        g.I("v_cmp_eq_u32 vcc, 0, v0")
        g.I("s_and_saveexec_b64 s[6:7], vcc")
        g.I("global_atomic_umax v1, v2, s[80:81] offset:4")
        g.I("global_atomic_umax v1, v3, s[80:81] offset:8")
        g.I("s_mov_b64 exec, s[6:7]")
    if OPT["stamp"]:
        g.I("s_waitcnt vmcnt(0)")
    stamp_flush(g)
    g.L(end)
    g.I("s_endpgm")
    g.L("Lcode_end")

def kd(name, vgpr, sgpr=102):
    return f""".p2align 6
.amdhsa_kernel {name}
  .amdhsa_next_free_vgpr {vgpr}
  .amdhsa_next_free_sgpr {sgpr}
  .amdhsa_accum_offset {vgpr}
  .amdhsa_group_segment_fixed_size 0
  .amdhsa_kernarg_size 80
  .amdhsa_user_sgpr_count 2
  .amdhsa_user_sgpr_kernarg_segment_ptr 1
  .amdhsa_system_sgpr_workgroup_id_x 1
.end_amdhsa_kernel
"""

HEADER = open("cdna_kernels/" + NAME + ".s.ref").read().split("; Override launch")[0]

def build():
    out = HEADER
    out += f"; @launch grid=(256,1,1) block=(512,1,1) lds={LDS_TOTAL}\n"
    out += '.amdgcn_target "amdgcn-amd-amdhsa--gfx950"\n.text\n'
    g = Gen()
    kernel(g)
    g.fix_hazards()
    for p in g.check_branches():
        print("BRANCH HAZARD:", p, file=sys.stderr)
    out += f".globl {KNAME}\n.p2align 8\n.type {KNAME},@function\n{KNAME}:\n" + g.text()
    out += '.section .rodata,"a"\n' + kd(KNAME, 256)
    return out

if __name__ == "__main__":
    args = sys.argv[1:]
    for a in list(args):
        if a.startswith("--rot="):
            v = a[6:].split(","); ROT.update(shj=int(v[0]), mulj=int(v[1]), mulr=int(v[2])); args.remove(a)
        elif a.startswith("--"):
            k = a[2:]
            if k.startswith("no"):
                OPT[k[2:]] = False
            else:
                OPT[k] = True
            args.remove(a)
    path = args[0] if args else "v2.s"
    txt = build()
    open(path, "w").write(txt)
    print("wrote", path, len(txt), "bytes")
```

```python
import sys
from asmlib import Gen, LgkmTracker, VmTracker

NAME = "gated_mix__linear_attn_block__dense_activation_relu__prompt"
KNAME = NAME + "_kernel"
H_OFF = 0
PQ_OFF = 0x600000
G_OFF = 0x900000
KVP_OFF = 0x910000
KVP_STRIDE = 7168
KVF_OFF = 0xA00000
KVF_STRIDE = 1536
FL_OFF = 0xA10000
HF_OFF = FL_OFF
KF_OFF = FL_OFF + 0x2000
FF_OFF = FL_OFF + 0x4000
QF_OFF = FL_OFF + 0x6000
O_OFF = 0xB00000
ST_OFF = 0xA80000
WS_USED = 0xE80000
STAGE = 45056
GW_LDS = 3 * STAGE
KS_LDS = GW_LDS + 1280
KS_W = 6720
NONCE_LDS = KS_LDS + 4 * KS_W + 16
CNT_LDS = NONCE_LDS + 4
CNT1_LDS = NONCE_LDS + 8
CNT2_LDS = NONCE_LDS + 12
LDS_TOTAL = 163840
W2R = [45056 + 16384*k for k in range(5)] + [0, 16384, 126976, 143360] + [0, 16384, 126976]
WO_BASE = 45056
LOG2E = 0x3FB8AA3B
EPS6 = 0x358637BD
BIG = 0x40000000
SC = " sc1"
SPIN_MAX = 40000

OPT_OJ = 6
OPT = dict(stamp=False, codepf=True, tlb=True, prof=False, rot=True, rot2=True, xdma=True, xlds=True, xmfma=True, warm2=False, mall=True, prof2=False, prof3=False, span=False, clk=False, prio=False, prioL=False, ntx=False, ntw=False, ntw2=False, ntout=False, l2w=False, nosleep=False, scout=False, scout2=False)

SRD_X, SRD_QKV, SRD_W1, SRD_WS, SRD_GW, SRD_W2, SRD_WO, SRD_OUT = 8, 12, 16, 20, 24, 28, 32, 36
def R4(b): return f"s[{b}:{b+3}]"
sWAVE, sXCD, sI, sRB, sA, sNONCE = "s44", "s45", "s46", "s47", "s48", "s49"
def vr(b, n=4): return f"v[{b}:{b+n-1}]"

def clkstamp(g, k):
    if not (OPT["stamp"] and OPT["clk"]): return
    g.I(f"s_memrealtime s[{84+2*k}:{85+2*k}]")
    g.I(f"s_memtime s[{86+2*k}:{87+2*k}]")
    g.I("s_waitcnt lgkmcnt(0)")

def stamp(g, k, force=False):
    if not OPT["stamp"]: return
    if OPT["clk"]: return
    if (OPT["prof2"] or OPT["prof3"]) and not force: return
    if OPT["prof"] and k >= 4: return
    g.I(f"s_memrealtime s[{84+2*k}:{85+2*k}]")
    g.I("s_waitcnt lgkmcnt(0)")

def stamp_flush(g):
    if not OPT["stamp"]: return
    g.I("s_lshl_b32 s50, s2, 8")
    g.I(f"s_lshl_b32 s51, {sWAVE}, 5")
    g.I("s_add_u32 s50, s50, s51")
    g.I(f"s_add_u32 s50, s50, {ST_OFF}")
    g.I("v_mov_b32 v14, 0")
    for k in range(8):
        g.I(f"v_mov_b32 v15, s{84+2*k}")
        g.I(f"buffer_store_dword v15, v14, {R4(SRD_WS)}, s50 offen offset:{4*k}")

def srd(g, d, p, size):
    g.I(f"s_mov_b32 s{d}, s{p}")
    g.I(f"s_and_b32 s{d+1}, s{p+1}, 0xffff")
    g.I(f"s_mov_b32 s{d+2}, {size}")
    g.I(f"s_mov_b32 s{d+3}, 0x00020000")

def srds_p1(g):
    srd(g, SRD_X, 64, 2048 * 1280)
    srd(g, SRD_QKV, 66, 640 * 3840)
    srd(g, SRD_W1, 72, 640 * 3072)

def srds_rest(g):
    srd(g, SRD_WS, 82, WS_USED)
    srd(g, SRD_GW, 76, 1280)
    srd(g, SRD_W2, 74, 1536 * 1280)
    srd(g, SRD_WO, 68, 640 * 1280)
    srd(g, SRD_OUT, 78, 2048 * 1280)

def swap23(g, dst, src, t1, t2):
    g.I(f"v_and_b32 {t1}, 4, {src}")
    g.I(f"v_and_b32 {t2}, 8, {src}")
    g.I(f"v_and_b32 {dst}, 0x33, {src}")
    g.I(f"v_lshl_or_b32 {dst}, {t1}, 1, {dst}")
    g.I(f"v_lshrrev_b32 {t2}, 1, {t2}")
    g.I(f"v_or_b32 {dst}, {dst}, {t2}")

ROT = dict(shj=0, mulj=1, mulr=3)
def rot_c0(g, dst):
    g.I(f"s_and_b32 {dst}, {sI}, 3")
    g.I(f"s_mul_i32 {dst}, {dst}, {ROT['mulr']}")
    g.I(f"s_lshr_b32 s4, {sI}, {2 + ROT['shj']}")
    g.I(f"s_mul_i32 s4, s4, {ROT['mulj']}")
    g.I(f"s_add_u32 {dst}, {dst}, s4")
    for _ in range(2):
        g.I(f"s_cmp_ge_u32 {dst}, 10")
        g.I("s_cselect_b32 s4, 10, 0")
        g.I(f"s_sub_u32 {dst}, {dst}, s4")

def p1_loader(g, typ):
    g.C(f"==== P1 loader type {typ}")
    g.I(f"s_sub_u32 s52, {sWAVE}, 4")
    g.I("v_lshrrev_b32 v2, 3, v0")
    g.I("v_and_b32 v3, 7, v0")
    g.I("v_lshrrev_b32 v4, 4, v0")
    g.I(f"s_lshl_b32 s53, {sRB}, 2")
    g.I("s_add_u32 s53, s53, s52")
    g.I(f"s_mul_i32 s53, s53, {32*1280}")
    g.I("v_xor_b32 v5, v3, v4")
    g.I("v_lshlrev_b32 v5, 4, v5")
    g.I("v_mul_u32_u24 v6, 1280, v2")
    g.I("v_add_u32 v6, s53, v6")
    XO = [10, 11, 12, 13]
    g.I(f"v_add_u32 v{XO[0]}, v6, v5")
    g.I("v_xor_b32 v5, 64, v5")
    g.I(f"v_add_u32 v{XO[1]}, v6, v5")
    g.I(f"v_add_u32 v{XO[1]}, {8*1280}, v{XO[1]}")
    g.I(f"v_add_u32 v{XO[2]}, {16*1280}, v{XO[0]}")
    g.I(f"v_add_u32 v{XO[3]}, {16*1280}, v{XO[1]}")
    g.I("s_lshl_b32 s54, s52, 10")
    g.I("s_lshl_b32 s55, s52, 12")
    if OPT["rot"]:
        rot_c0(g, "s3")
        g.I("s_lshl_b32 s56, s3, 7")
        g.I(f"s_mul_i32 s57, s3, {64*3840}")
        g.I(f"s_mul_i32 s58, s3, {64*3072}")
    else:
        g.I("s_mov_b32 s56, 0")
        g.I("s_mov_b32 s57, 0")
        g.I("s_mov_b32 s58, 0")
    g.I("s_waitcnt lgkmcnt(0)")
    srd(g, SRD_X, 64, 2048 * 1280)
    def issue_x():
        for j in range(4):
            g.I(f"s_add_u32 m0, s55, {j*1024}")
            g.I(f"buffer_load_dwordx4 v{XO[j]}, {R4(SRD_X)}, s56 offen{' nt' if OPT['ntx'] else ''} lds")
    issue_x()
    srd(g, SRD_QKV, 66, 640 * 3840)
    n10 = 5 if typ == "A" else 3
    QO = [14, 15, 16, 17, 18][:n10]
    g.I(f"s_mul_i32 s59, {sA}, 160")
    if typ == "A":
        g.I("s_add_u32 s59, s59, 1280")
    g.I("s_mov_b32 s60, 6554")
    g.I("s_mov_b32 s61, 3840")
    R10 = 16384
    RH = 36864 if typ == "A" else 28672
    for n in range(n10):
        g.I(f"s_add_u32 s62, s52, {4*n}")
        if typ == "A":
            g.I("s_cmp_ge_u32 s62, 10")
            g.I("s_cselect_b32 s63, 10, 0")
            g.I("s_cselect_b32 s50, 1280, 0")
            g.I("s_sub_u32 s62, s62, s63")
        g.I("s_lshl_b32 s62, s62, 6")
        g.I("v_add_u32 v5, s62, v0")
        g.I("v_mul_lo_u32 v6, v5, s60")
        g.I("v_lshrrev_b32 v6, 16, v6")
        g.I("v_mul_u32_u24 v7, 10, v6")
        g.I("v_sub_u32 v7, v5, v7")
        swap23(g, "v8", "v6", "v9", "v19")
        g.I("v_mul_lo_u32 v8, v8, s61")
        g.I("v_lshl_add_u32 v8, v7, 4, v8")
        if typ == "A":
            g.I("s_add_u32 s50, s50, s59")
            g.I(f"v_add_u32 v{QO[n]}, s50, v8")
        else:
            g.I(f"v_add_u32 v{QO[n]}, s59, v8")
            if n == 2:
                g.I("s_cmp_ge_u32 s52, 2")
                g.I(f"s_cselect_b32 s50, {BIG}, 0")
                g.I(f"v_add_u32 v{QO[n]}, s50, v{QO[n]}")
        g.I(f"s_add_u32 m0, s54, {R10 + 4096*n}")
        g.I(f"buffer_load_dwordx4 v{QO[n]}, {R4(SRD_QKV)}, s57 offen{' nt' if OPT['ntw'] else ''} lds")
    srd(g, SRD_W1, 72, 640 * 3072)
    nH = 2 if typ == "A" else 4
    HO = [20, 21, 22, 23][:nH]
    g.I("v_lshlrev_b32 v5, 1, v4")
    g.I("v_xor_b32 v5, v3, v5")
    g.I("v_lshlrev_b32 v5, 4, v5")
    if typ == "A":
        g.I(f"s_lshl_b32 s59, {sA}, 7")
    else:
        g.I(f"s_lshl_b32 s59, {sA}, 8")
        g.I("s_add_u32 s59, s59, 1024")
    g.I("s_mov_b32 s61, 3072")
    for n in range(2):
        g.I(f"s_add_u32 s62, s52, {4*n}")
        g.I("s_lshl_b32 s62, s62, 3")
        g.I("v_add_u32 v6, s62, v2")
        swap23(g, "v8", "v6", "v9", "v19")
        g.I("v_mul_lo_u32 v8, v8, s61")
        g.I("v_add_u32 v8, v8, v5")
        g.I(f"v_add_u32 v{HO[n]}, s59, v8")
        if nH == 4:
            g.I(f"v_add_u32 v{HO[n+2]}, 128, v{HO[n]}")
    def issue_h():
        for n in range(nH):
            g.I(f"s_add_u32 m0, s54, {RH + 8192*(n//2) + 4096*(n % 2)}")
            g.I(f"buffer_load_dwordx4 v{HO[n]}, {R4(SRD_W1)}, s58 offen{' nt' if OPT['ntw'] else ''} lds")
    def issue_q():
        for n in range(n10):
            g.I(f"s_add_u32 m0, s54, {R10 + 4096*n}")
            g.I(f"buffer_load_dwordx4 v{QO[n]}, {R4(SRD_QKV)}, s57 offen{' nt' if OPT['ntw'] else ''} lds")
    issue_h()
    srds_rest(g)
    def advance():
        g.I("s_add_u32 s56, s56, 128")
        g.I(f"s_add_u32 s57, s57, {64*3840}")
        g.I(f"s_add_u32 s58, s58, {64*3072}")
        if OPT["rot"]:
            g.I("s_cmp_ge_u32 s56, 1280")
            g.I("s_cselect_b32 s56, 0, s56")
            g.I("s_cselect_b32 s57, 0, s57")
            g.I("s_cselect_b32 s58, 0, s58")
        g.I(f"s_add_u32 s54, s54, {STAGE}")
        g.I(f"s_add_u32 s55, s55, {STAGE}")
        g.I(f"s_cmp_ge_u32 s54, {3*STAGE}")
        g.I(f"s_cselect_b32 s62, {3*STAGE}, 0")
        g.I("s_sub_u32 s54, s54, s62")
        g.I("s_sub_u32 s55, s55, s62")
    def issue():
        advance()
        if OPT["xdma"]:
            issue_x(); issue_q(); issue_h()
    extra0 = 0
    if typ == "B":
        lab = g.newlabel("Lgw")
        g.I("s_cmp_lg_u32 s52, 0")
        g.I(f"s_cbranch_scc1 {lab}")
        g.I("v_lshlrev_b32 v5, 4, v0")
        g.I(f"s_mov_b32 m0, {GW_LDS}")
        g.I("v_add_u32 v6, 1024, v5")
        g.I(f"buffer_load_dwordx4 v5, {R4(SRD_GW)}, 0 offen lds")
        g.I(f"s_mov_b32 m0, {GW_LDS + 1024}")
        g.I("s_nop 0")
        g.I(f"buffer_load_dwordx4 v6, {R4(SRD_GW)}, 0 offen lds")
        g.L(lab)
    issue()
    stamp(g, 1)
    g.I("s_waitcnt vmcnt(11)")
    stamp(g, 2)
    g.I("s_barrier")
    issue()
    warmups(g, typ)
    if OPT["prioL"]:
        g.I("s_setprio 2")
    g.I("s_waitcnt vmcnt(13)")
    g.I("s_barrier")
    issue()
    g.I("s_waitcnt vmcnt(13)")
    g.I("s_barrier")
    issue()
    g.I("s_mov_b32 s63, 3")
    loop = g.newlabel("Lld")
    g.L(loop)
    if OPT["prof"]:
        g.I("s_memtime s[4:5]")
        g.I("s_waitcnt lgkmcnt(0)")
    g.I("s_waitcnt vmcnt(11)")
    if OPT["prof"]:
        g.I("s_memtime s[6:7]")
        g.I("s_waitcnt lgkmcnt(0)")
        g.I("s_sub_u32 s4, s6, s4")
        g.I("s_add_u32 s94, s94, s4")
    g.I("s_barrier")
    if OPT["prof"]:
        g.I("s_memtime s[4:5]")
        g.I("s_waitcnt lgkmcnt(0)")
        g.I("s_sub_u32 s6, s4, s6")
        g.I("s_add_u32 s96, s96, s6")
    issue()
    if OPT["prof"]:
        g.I("s_memtime s[6:7]")
        g.I("s_waitcnt lgkmcnt(0)")
        g.I("s_sub_u32 s6, s6, s4")
        g.I("s_add_u32 s98, s98, s6")
    g.I("s_add_u32 s63, s63, 1")
    g.I("s_cmp_le_u32 s63, 7")
    g.I(f"s_cbranch_scc1 {loop}")

def p2_decode(g):
    g.I(f"s_mul_i32 s50, {sI}, 86")
    g.I("s_lshr_b32 s50, s50, 8")
    g.I("s_mul_i32 s51, s50, 3")
    g.I(f"s_sub_u32 s51, {sI}, s51")
    g.I("s_mul_i32 s52, s51, 5")
    g.I(f"s_lshl_b32 s56, {sXCD}, 4")
    g.I("s_add_u32 s52, s52, s56")
    g.I(f"s_and_b32 s53, {sWAVE}, 3")
    g.I(f"s_lshr_b32 s54, {sWAVE}, 2")
    g.I("s_mul_i32 s55, s54, 3")
    g.I("s_add_u32 s55, s55, s52")

VD2 = 78
def p2_dma_setup(g):
    g.I("v_lshrrev_b32 v5, 3, v0")
    g.I("v_and_b32 v6, 7, v0")
    g.I("v_lshrrev_b32 v2, 4, v0")
    g.I("v_lshlrev_b32 v7, 1, v2")
    g.I("v_xor_b32 v7, v6, v7")
    g.I("v_mul_u32_u24 v8, 1280, v5")
    g.I("s_lshl_b32 s56, s50, 7")
    g.I("v_add_u32 v8, s56, v8")
    g.I(f"v_lshl_add_u32 v{VD2}, v7, 4, v8")
    g.I(f"s_mul_i32 s57, s53, {12*32*1280}")
    g.I(f"s_add_u32 s63, s57, {12*32*1280}")
    if OPT["rot2"]:
        g.I(f"s_mul_i32 s56, s50, {32*1280}")
        g.I("s_add_u32 s57, s57, s56")
    g.I("s_lshl_b32 s58, s53, 12")
    g.I(f"s_mul_i32 s59, s53, {160*1280}")
    g.I("s_mul_i32 s60, s53, 20480")
    g.I(f"s_add_u32 s60, s60, {WO_BASE}")

def dma_w2(g, vm, sidx, slots=(0, 4)):
    for j in range(*slots):
        g.I(f"s_add_u32 m0, s58, {W2R[sidx] + j*1024}")
        g.I(f"s_add_u32 s56, s57, {j * 8 * 1280}")
        vm.issue(f"buffer_load_dwordx4 v{VD2}, {R4(SRD_W2)}, s56 offen{' nt' if OPT['ntw2'] else ''} lds", ("d", sidx))
    g.I(f"s_add_u32 s57, s57, {32*1280}")
    g.I("s_cmp_ge_u32 s57, s63")
    g.I(f"s_cselect_b32 s56, {12*32*1280}, 0")
    g.I("s_sub_u32 s57, s57, s56")

def warm_late(g, vm, skip):
    g.I("v_mul_u32_u24 v9, 1280, v0")
    g.I("s_lshl_b32 s56, s50, 7")
    g.I("v_add_u32 v9, s56, v9")
    g.I("v_cmp_gt_u32 vcc, 32, v0")
    g.I(f"v_mov_b32 v10, {BIG}")
    g.I("v_cndmask_b32 v10, v10, v9, vcc")
    g.I(f"s_add_u32 s6, s57, {skip*32*1280}")
    g.I("s_cmp_ge_u32 s6, s63")
    g.I(f"s_cselect_b32 s56, {12*32*1280}, 0")
    g.I("s_sub_u32 s6, s6, s56")
    for k in range(3):
        vm.issue(f"buffer_load_dword v11, v10, {R4(SRD_W2)}, s6 offen", ("warm", 0))
        g.I(f"s_add_u32 s6, s6, {32*1280}")
        g.I("s_cmp_ge_u32 s6, s63")
        g.I(f"s_cselect_b32 s56, {12*32*1280}, 0")
        g.I("s_sub_u32 s6, s6, s56")
    for k in range(3):
        g.I(f"s_add_u32 s56, s59, {k*64*1280}")
        vm.issue(f"buffer_load_dword v11, v9, {R4(SRD_WO)}, s56 offen", ("warm", 0))

def l2warm(g, vm):
    g.I("v_mul_u32_u24 v9, 3, v0")
    g.I("v_add_u32 v9, s51, v9")
    g.I("v_lshrrev_b32 v10, 5, v9")
    g.I("v_and_b32 v11, 31, v9")
    g.I("s_add_u32 s56, s50, 7")
    g.I("v_add_u32 v10, s56, v10")
    g.I("v_subrev_u32 v12, 12, v10")
    g.I("v_cmp_le_u32 vcc, 12, v10")
    g.I("v_cndmask_b32 v10, v10, v12, vcc")
    g.I("v_lshl_add_u32 v10, v10, 5, v11")
    g.I("v_mul_u32_u24 v10, 1280, v10")
    g.I("v_mul_u32_u24 v12, 1280, v9")
    g.I("v_cmp_gt_u32 vcc, 160, v9")
    g.I(f"v_mov_b32 v13, {BIG}")
    g.I("v_cndmask_b32 v10, v13, v10, vcc")
    g.I("v_cndmask_b32 v12, v13, v12, vcc")
    g.I(f"s_mul_i32 s56, s53, {384*1280}")
    g.I("s_lshl_b32 s6, s50, 7")
    g.I("s_add_u32 s56, s56, s6")
    vm.issue(f"buffer_load_dword v14, v10, {R4(SRD_W2)}, s56 offen", ("pf", 0))
    g.I("s_add_u32 s56, s59, s6")
    vm.issue(f"buffer_load_dword v14, v12, {R4(SRD_WO)}, s56 offen", ("pf", 0))

def dma_wo(g, vm, j0, j1):
    for j in range(j0, j1):
        g.I(f"s_add_u32 m0, s60, {j*1024}")
        g.I(f"s_add_u32 s56, s59, {j*8*1280}")
        vm.issue(f"buffer_load_dwordx4 v{VD2}, {R4(SRD_WO)}, s56 offen lds", ("wo", 0))

def poll(g, vaddr, soff_imm, nlanes, tmp="v14"):
    loop = g.newlabel("Lpoll"); done = g.newlabel("Lpd")
    g.I("s_mov_b32 s4, 0")
    g.I(f"s_mov_b32 s5, {soff_imm}")
    mask = (1 << nlanes) - 1
    g.I(f"s_mov_b32 s7, {mask:#x}")
    g.L(loop)
    g.I(f"buffer_load_dword {tmp}, {vaddr}, {R4(SRD_WS)}, s5 offen{SC}")
    g.I("s_waitcnt vmcnt(0)")
    g.I(f"v_cmp_eq_u32 vcc, {sNONCE}, {tmp}")
    g.I("s_and_b32 s6, vcc_lo, s7")
    g.I("s_cmp_eq_u32 s6, s7")
    g.I(f"s_cbranch_scc1 {done}")
    g.I("s_add_u32 s4, s4, 1")
    g.I(f"s_cmp_lt_u32 s4, {SPIN_MAX}")
    if not OPT["nosleep"]:
        g.I("s_sleep 1")
    g.I(f"s_cbranch_scc1 {loop}")
    g.L(done)

ACC = 128
def acc(t, rt): return ACC + (2 * t + rt) * 4
KVA = 68

def warmups(g, typ):
    l1, l2, l3, le = [g.newlabel("Lwu") for _ in range(4)]
    g.I(f"v_mov_b32 v25, {BIG}")
    g.I("s_cmp_eq_u32 s52, 1"); g.I(f"s_cbranch_scc1 {l1}")
    g.I("s_cmp_eq_u32 s52, 2"); g.I(f"s_cbranch_scc1 {l2}")
    g.I("s_cmp_eq_u32 s52, 3"); g.I(f"s_cbranch_scc1 {l3}")
    g.I("s_getpc_b64 s[4:5]")
    g.L("Lpc_" + typ)
    g.I(f"s_sub_u32 s4, s4, Lpc_{typ}-{KNAME}")
    g.I("s_subb_u32 s5, s5, 0")
    g.I("v_and_b32 v26, 15, v0")
    g.I(f"s_lshl_b32 s6, {sI}, 4")
    g.I("v_add_u32 v26, s6, v26")
    g.I("v_lshlrev_b32 v26, 7, v26")
    g.I(f"v_min_u32 v26, Lcode_end-{KNAME}-4, v26")
    if OPT["codepf"]:
        g.I(f"global_load_dword v24, v26, s[4:5]")
    else:
        g.I(f"buffer_load_dword v24, v25, {R4(SRD_WS)}, 0 offen")
    g.I(f"buffer_load_dword v24, v25, {R4(SRD_WS)}, 0 offen")
    g.I(f"s_branch {le}")
    g.L(l1)
    g.I("v_lshlrev_b32 v26, 7, v0")
    g.I("v_cmp_gt_u32 vcc, 60, v0")
    g.I("v_cndmask_b32 v27, v25, v26, vcc")
    if not OPT["mall"]:
        g.I("v_mov_b32 v27, v25")
    g.I(f"s_mul_i32 s6, s2, {60*128}")
    g.I(f"buffer_load_dword v24, v27, {R4(SRD_W2)}, s6 offen")
    g.I("v_cmp_gt_u32 vcc, 25, v0")
    g.I("v_cndmask_b32 v27, v25, v26, vcc")
    if not OPT["mall"]:
        g.I("v_mov_b32 v27, v25")
    g.I(f"s_mul_i32 s6, s2, {25*128}")
    g.I(f"buffer_load_dword v24, v27, {R4(SRD_WO)}, s6 offen")
    g.I(f"s_branch {le}")
    g.L(l2)
    g.I("v_lshlrev_b32 v26, 21, v0")
    g.I(f"v_min_u32 v26, {BIG}, v26")
    if not OPT["tlb"]:
        g.I("v_mov_b32 v26, v25")
    g.I(f"buffer_load_dword v24, v26, {R4(SRD_WS)}, 0 offen")
    g.I(f"buffer_load_dword v24, v26, {R4(SRD_OUT)}, 0 offen")
    g.I(f"s_branch {le}")
    g.L(l3)
    g.I(f"buffer_load_dword v24, v25, {R4(SRD_WS)}, 0 offen")
    g.I(f"buffer_load_dword v24, v25, {R4(SRD_WS)}, 0 offen")
    g.L(le)

def p1_compute(g, typ):
    g.C(f"==== P1 compute type {typ}")
    g.I("s_waitcnt lgkmcnt(0)")
    srds_p1(g)
    srds_rest(g)
    lab = g.newlabel("Lnn")
    g.I(f"s_or_b32 s50, s2, {sWAVE}")
    g.I("s_cmp_lg_u32 s50, 0")
    g.I(f"s_cbranch_scc1 {lab}")
    g.I("s_memrealtime s[50:51]")
    g.I("s_waitcnt lgkmcnt(0)")
    g.I("s_or_b32 s50, s50, 1")
    g.I("v_mov_b32 v5, s50")
    g.I("v_mov_b32 v6, 0")
    g.I(f"global_store_dword v6, v5, s[80:81]{SC}")
    g.L(lab)
    g.I("v_mov_b32 v66, 0")
    g.I("v_mov_b32 v65, 0")
    g.I(f"v_mov_b32 v5, {CNT_LDS}")
    g.I("ds_write_b32 v5, v66")
    g.I("ds_write_b32 v5, v66 offset:4")
    g.I("ds_write_b32 v5, v66 offset:8")
    g.I("v_and_b32 v1, 15, v0")
    g.I("v_lshrrev_b32 v2, 4, v0")
    g.I("v_bfe_u32 v3, v0, 2, 2")
    g.I("v_and_b32 v4, 3, v0")
    g.I("v_lshrrev_b32 v5, 1, v1")
    g.I("v_xor_b32 v5, v2, v5")
    g.I("v_lshlrev_b32 v5, 4, v5")
    g.I("v_lshl_add_u32 v5, v1, 7, v5")
    g.I(f"s_lshl_b32 s50, {sWAVE}, 12")
    g.I("v_add_u32 v48, s50, v5")
    g.I("v_xor_b32 v49, 64, v48")
    g.I("v_lshrrev_b32 v5, 1, v2")
    g.I("v_lshlrev_b32 v5, 4, v5")
    g.I("v_and_b32 v6, 1, v2")
    g.I("v_lshl_add_u32 v5, v6, 2, v5")
    g.I("v_add_u32 v5, v5, v3")
    g.I("v_mul_u32_u24 v50, 160, v5")
    g.I("v_lshl_add_u32 v50, v4, 3, v50")
    g.I("v_lshrrev_b32 v7, 1, v3")
    g.I("v_lshlrev_b32 v7, 1, v7")
    g.I("v_lshl_add_u32 v7, v6, 2, v7")
    g.I("v_lshrrev_b32 v8, 1, v4")
    g.I("v_and_b32 v9, 1, v4")
    g.I("v_lshlrev_b32 v9, 3, v9")
    g.I("v_lshl_add_u32 v9, v5, 7, v9")
    for t in range(4):
        g.I(f"v_add_u32 v10, {2*t}, v8")
        g.I("v_xor_b32 v10, v10, v7")
        g.I(f"v_lshl_add_u32 v{51+t}, v10, 4, v9")
    for k in range(7):
        g.I(f"v_mov_b32 v{56+k}, v{48+k}")
    if typ == "A":
        tiles = [("kv", t, "N") for t in range(5)] + [("kv", 5 + t, "N") for t in range(5)] + [("h", t, "T") for t in range(4)]
    else:
        tiles = [("kv", t, "T") for t in range(5)] + [("h", t, "T") for t in range(8)] + [("g", 0, "T")]
        g.I("v_lshlrev_b32 v63, 4, v2")
        g.I(f"v_add_u32 v63, {GW_LDS}, v63")
        if OPT["rot"]:
            rot_c0(g, "s3")
            g.I("s_lshl_b32 s5, s3, 7")
            g.I("v_add_u32 v63, s5, v63")
            g.I("s_mov_b32 s55, s3")
    g.I(f"s_mov_b32 s50, {EPS6}")
    for t in range(14):
        for rt in range(2):
            for i in range(4):
                g.I(f"v_mov_b32 v{acc(t,rt)+i}, " + ("s50" if t < 5 else "0"))
    if typ == "A":
        g.I(f"s_mul_i32 s50, {sWAVE}, {KS_W}")
        g.I(f"s_add_u32 s50, s50, {KS_LDS}")
        g.I(f"v_mov_b32 v15, {KS_LDS + 4*KS_W}")
        for t in range(5):
            g.I(f"v_lshl_add_u32 v5, v2, 2, {16*t}")
            g.I("v_mul_u32_u24 v6, 205, v5")
            g.I(f"v_lshrrev_b32 v{16+t}, 12, v6")
            g.I(f"v_mul_u32_u24 v6, 20, v{16+t}")
            g.I("v_sub_u32 v6, v5, v6")
            g.I(f"v_mul_u32_u24 v7, {105*16}, v{16+t}")
            g.I("v_lshl_add_u32 v7, v6, 2, v7")
            g.I(f"v_add_u32 v{21+t}, s50, v7")
            g.I(f"v_add_u32 v5, {16*t}, v1")
            g.I("v_mul_u32_u24 v6, 205, v5")
            g.I(f"v_lshrrev_b32 v{26+t}, 12, v6")
            g.I(f"v_mul_u32_u24 v6, 20, v{26+t}")
            g.I("v_sub_u32 v6, v5, v6")
            g.I(f"v_mul_u32_u24 v{31+t}, 80, v6")
        for t in range(5):
            for tp in range(5):
                if abs(t - tp) <= 1:
                    idx = 2 * t + tp
                    g.I(f"v_add_u32 v5, v{21+t}, v{31+tp}")
                    g.I(f"v_cmp_eq_u32 vcc, v{16+t}, v{26+tp}")
                    g.I(f"v_cndmask_b32 v{KVA+idx}, v15, v5, vcc")
        g.I("v_cmp_eq_u32 vcc, 0, v1")
        for t in range(5):
            g.I(f"v_add_u32 v5, {20*80}, v{21+t}")
            g.I(f"v_cndmask_b32 v{KVA+13+t}, v15, v5, vcc")
    XF = lambda ks, rt: 16 + (2 * ks + rt) * 4
    WF = lambda n: 86 + (n % 7) * 4
    R10 = 16384
    RH = 36864 if typ == "A" else 28672
    lk = LgkmTracker(g)
    NS = 2 * len(tiles)
    steps = [(ks, ti) for ks in range(2) for ti in range(len(tiles))]
    def rd_x(ks):
        if not OPT["xlds"]: return
        for rt in range(2):
            lk.issue(f"ds_read_b128 {vr(XF(ks,rt))}, v{56+ks} offset:{rt*2048}", ("x", ks))
    def rd_w(n, half):
        if not OPT["xlds"]: return
        ks, ti = steps[n % NS]
        kind, t, _ = tiles[ti]
        w = WF(n)
        tag = ("w", n % NS)
        if kind == "kv":
            off = R10 + ks * 5120 + half * 1280 + 32 * (t % 5) + (10240 if t >= 5 else 0)
            lk.issue(f"ds_read_b64_tr_b16 {vr(w + 2*half, 2)}, v58 offset:{off}", tag)
        elif kind == "h":
            off = RH + (t // 4) * 8192 + ks * 4096 + half * 1024
            lk.issue(f"ds_read_b64_tr_b16 {vr(w + 2*half, 2)}, v{59 + (t % 4)} offset:{off}", tag)
        else:
            if half == 0:
                lk.issue(f"ds_read_b128 {vr(w)}, v63 offset:{ks*64}", tag)
    D = 6
    assert NS % 7 == 0
    g.I("s_mov_b32 s50, 0")
    g.I("s_mov_b32 s51, 0")
    if OPT["prio"]:
        g.I("s_setprio 2")
    g.I("s_barrier")
    stamp(g, 1, force=True)
    clkstamp(g, 0)
    rd_x(0)
    for n in range(D):
        rd_w(n, 0); rd_w(n, 1)
    loop = g.newlabel("Lp1"); last = g.newlabel("Lp1last")
    def mf(n, rt):
        ks, ti = steps[n]
        kind, t, ori = tiles[ti]
        a = acc(ti, rt)
        if not OPT["xmfma"]:
            return
        if ori == "N":
            g.I(f"v_mfma_f32_16x16x32_bf16 {vr(a)}, {vr(XF(ks,rt))}, {vr(WF(n))}, {vr(a)}")
        else:
            g.I(f"v_mfma_f32_16x16x32_bf16 {vr(a)}, {vr(WF(n))}, {vr(XF(ks,rt))}, {vr(a)}")
    g.L(loop)
    q_at_loop = list(lk.q)
    NB = NS - D
    BAR = NB + 2
    bwork = []
    bwork.append([f"s_add_u32 s51, s51, {STAGE}", f"s_cmp_ge_u32 s51, {3*STAGE}", f"s_cselect_b32 s52, {3*STAGE}, 0", "s_sub_u32 s51, s51, s52"])
    for k in range(7):
        bwork.append([f"v_add_u32 v{56+k}, s51, v{48+k}"])
    if typ == "B":
        bwork.append(["v_add_u32 v63, 128, v63"])
        if OPT["rot"]:
            bwork.append(["s_add_u32 s55, s55, 1", "s_cmp_eq_u32 s55, 10", "s_cselect_b32 s52, 1280, 0", "s_cselect_b32 s55, 0, s55", "v_subrev_u32 v63, s52, v63"])
    pend = []
    for n in range(NS):
        ks, ti = steps[n]
        if n == NB:
            g.I("s_add_u32 s50, s50, 1")
            g.I("s_cmp_eq_u32 s50, 10")
            g.I(f"s_cbranch_scc1 {last}")
        if n == BAR:
            in_loop_extras(g)
            lk.drain()
            if OPT["prof3"]:
                for slot, cval in ((2, 1), (3, 2), (4, 3), (5, 4), (6, 6), (7, 9)):
                    lb = g.newlabel("Lp3")
                    g.I(f"s_cmp_lg_u32 s50, {cval}")
                    g.I(f"s_cbranch_scc1 {lb}")
                    stamp(g, slot, force=True)
                    g.L(lb)
            if OPT["prof"]:
                g.I("s_memtime s[4:5]")
                g.I("s_waitcnt lgkmcnt(0)")
            g.I("s_barrier")
            if OPT["prof"]:
                g.I("s_memtime s[6:7]")
                g.I("s_waitcnt lgkmcnt(0)")
                g.I("s_sub_u32 s6, s6, s4")
                g.I("s_add_u32 s94, s94, s6")
            rd_x(0)
            pend = [(m, h) for m in range(NS, NS + D) for h in range(2)]
        if ti == 0:
            lk.wait(("x", ks))
        if n < BAR:
            lk.wait(("w", n))
        for rt in range(2):
            mf(n, rt)
            if n < NB:
                rd_w(n + D, rt)
            elif n < BAR:
                for _ in range(3):
                    if bwork:
                        for x in bwork.pop(0):
                            g.I(x)
            else:
                cnt = 2 if (n - BAR) < 2 else 1
                for _ in range(cnt):
                    if pend:
                        m, h = pend[0]
                        if (m - 7) < n or ((m - 7) == n and rt == 1 and False):
                            pend.pop(0); rd_w(m, h)
        if n == 6:
            rd_x(1)
    assert not bwork
    for m, h in pend:
        rd_w(m, h)
    assert lk.q == q_at_loop, (lk.q, q_at_loop)
    g.I(f"s_branch {loop}")
    g.L(last)
    g.I("s_waitcnt lgkmcnt(0)")
    for n in range(NB, NS):
        for rt in range(2):
            mf(n, rt)
    stamp(g, 2)
    clkstamp(g, 2)
    if OPT["prio"]:
        g.I("s_setprio 0")

def in_loop_extras(g):
    l1 = g.newlabel("Lx")
    g.I(f"s_lshl_b32 s53, {sWAVE}, 4")
    g.I("s_add_u32 s53, s53, s50")
    g.I("s_cmp_lg_u32 s53, 6")
    g.I(f"s_cbranch_scc1 {l1}")
    g.I("v_mov_b32 v66, 0")
    g.I(f"global_load_dword v65, v66, s[80:81]{SC}")
    g.L(l1)

def phi(g, reg, tmp):
    g.I(f"v_mul_f32 {tmp}, s51, {reg}")
    g.I(f"v_exp_f32_e64 {tmp}, {tmp} clamp")
    g.I(f"v_max_f32 {reg}, s50, {reg}")
    g.I(f"v_add_f32 {reg}, {reg}, {tmp}")

def store_h(g, tiles_idx, kb0_s):
    g.I(f"s_lshl_b32 s53, {sRB}, 3")
    g.I(f"s_lshl_b32 s54, {sWAVE}, 1")
    g.I("s_add_u32 s53, s53, s54")
    g.I("s_mul_i32 s53, s53, 48")
    g.I(f"s_add_u32 s53, s53, {kb0_s}")
    g.I("s_lshl_b32 s53, s53, 10")
    g.I("v_lshlrev_b32 v1, 4, v0")
    for kbl in range(len(tiles_idx) // 2):
        for rt in range(2):
            a0 = acc(tiles_idx[2*kbl], rt); a1 = acc(tiles_idx[2*kbl+1], rt)
            d = 16 + ((kbl * 2 + rt) % 4) * 4
            g.I(f"v_cvt_pk_bf16_f32 v{d}, v{a0}, v{a0+1}")
            g.I(f"v_cvt_pk_bf16_f32 v{d+1}, v{a0+2}, v{a0+3}")
            g.I(f"v_cvt_pk_bf16_f32 v{d+2}, v{a1}, v{a1+1}")
            g.I(f"v_cvt_pk_bf16_f32 v{d+3}, v{a1+2}, v{a1+3}")
            for j in range(4):
                g.I(f"v_pk_max_i16 v{d+j}, v{d+j}, 0")
            g.I(f"s_add_u32 s54, s53, {H_OFF + rt*48*1024 + kbl*1024}")
            g.I(f"buffer_store_dwordx4 {vr(d)}, v1, {R4(SRD_WS)}, s54 offen{SC}")

def nonce_to_lds(g):
    lab = g.newlabel("Lnz"); loop = g.newlabel("Lnzl"); ok = g.newlabel("Lnzok")
    g.I(f"s_cmp_lg_u32 {sWAVE}, 0")
    g.I(f"s_cbranch_scc1 {lab}")
    g.I("s_mov_b32 s52, 0")
    g.I("s_waitcnt vmcnt(0)")
    g.L(loop)
    g.I(f"v_readfirstlane_b32 {sNONCE}, v65")
    g.I(f"s_cmp_lg_u32 {sNONCE}, 0")
    g.I(f"s_cbranch_scc1 {ok}")
    g.I(f"global_load_dword v65, v66, s[80:81]{SC}")
    g.I("s_add_u32 s52, s52, 1")
    g.I(f"s_cmp_lt_u32 s52, {SPIN_MAX}")
    g.I("s_waitcnt vmcnt(0)")
    g.I(f"s_cbranch_scc1 {loop}")
    g.L(ok)
    g.I(f"v_mov_b32 v66, {NONCE_LDS}")
    g.I("ds_write_b32 v66, v65")
    g.L(lab)

def p1_epilogue_A(g):
    g.C("==== P1 epilogue A")
    g.I(f"s_mov_b32 s50, {EPS6}")
    g.I(f"s_mov_b32 s51, {LOG2E}")
    g.I(f"s_lshl_b32 s52, {sA}, 1")
    store_h(g, [10, 11, 12, 13], "s52")
    KF = lambda t: 86 + 4 * t
    VF = lambda t: 106 + 4 * t
    for t in range(5):
        for rt in range(2):
            a = acc(5 + t, rt)
            g.I(f"v_cvt_pk_bf16_f32 v{VF(t)+2*rt}, v{a}, v{a+1}")
            g.I(f"v_cvt_pk_bf16_f32 v{VF(t)+2*rt+1}, v{a+2}, v{a+3}")
    for j in range(4):
        g.I(f"v_mov_b32 v{32+j}, 0x3f803f80")
    for t in range(5):
        for rt in range(2):
            for i in range(4):
                phi(g, f"v{acc(t,rt)+i}", f"v{2 + i}")
        for rt in range(2):
            a = acc(t, rt)
            g.I(f"v_cvt_pk_bf16_f32 v{KF(t)+2*rt}, v{a}, v{a+1}")
            g.I(f"v_cvt_pk_bf16_f32 v{KF(t)+2*rt+1}, v{a+2}, v{a+3}")
    P = lambda idx: 168 + 4 * idx
    for t in range(5):
        for tp in range(5):
            if abs(t - tp) <= 1:
                g.I(f"v_mfma_f32_16x16x32_bf16 {vr(P(2*t+tp))}, {vr(KF(t))}, {vr(VF(tp))}, 0")
    for t in range(5):
        g.I(f"v_mfma_f32_16x16x32_bf16 {vr(P(13+t))}, {vr(KF(t))}, v[32:35], 0")
    nonce_to_lds(g)
    for idx in range(18):
        g.I(f"ds_write_b128 v{KVA+idx}, {vr(P(idx))}")
    g.I("s_waitcnt vmcnt(0) lgkmcnt(0)")
    g.I("s_barrier")
    publish_flag(g, "H")
    g.I(f"s_lshl_b32 s52, {sWAVE}, 6")
    g.I("v_add_u32 v5, s52, v0")
    g.I("v_lshlrev_b32 v5, 4, v5")
    g.I(f"v_add_u32 v6, {KS_LDS}, v5")
    g.I(f"v_add_u32 v7, 4096, v5")
    g.I(f"v_cmp_gt_u32 vcc, {420*16}, v7")
    g.I(f"v_mov_b32 v8, {BIG}")
    g.I("v_cndmask_b32 v7, v8, v7, vcc")
    g.I(f"v_add_u32 v9, 4096, v6")
    g.I("v_cndmask_b32 v9, v6, v9, vcc")
    for rnd in range(2):
        for w in range(4):
            g.I(f"ds_read_b128 {vr(16 + 16*rnd + 4*w)}, v{6 if rnd == 0 else 9} offset:{w*KS_W}")
    g.I(f"s_lshl_b32 s52, {sA}, 4")
    g.I(f"s_add_u32 s52, s52, {sRB}")
    g.I(f"s_mul_i32 s52, s52, {KVP_STRIDE}")
    g.I(f"s_add_u32 s52, s52, {KVP_OFF}")
    g.I("s_waitcnt lgkmcnt(0)")
    for rnd in range(2):
        b = 16 + 16 * rnd
        for j in range(4):
            g.I(f"v_add_f32 v{b+j}, v{b+j}, v{b+4+j}")
            g.I(f"v_add_f32 v{b+8+j}, v{b+8+j}, v{b+12+j}")
        for j in range(4):
            g.I(f"v_add_f32 v{b+j}, v{b+j}, v{b+8+j}")
        g.I(f"buffer_store_dwordx4 {vr(b)}, v{5 if rnd == 0 else 7}, {R4(SRD_WS)}, s52 offen{SC}")
    stamp(g, 3)

PQK = lambda t, rt: 176 + 10 * rt + 2 * t
GATE = lambda rt: 196 + rt
def p1_epilogue_B(g):
    g.C("==== P1 epilogue B")
    g.I(f"s_mov_b32 s50, {EPS6}")
    g.I(f"s_mov_b32 s51, {LOG2E}")
    g.I(f"s_lshl_b32 s52, {sA}, 2")
    g.I("s_add_u32 s52, s52, 16")
    store_h(g, list(range(5, 13)), "s52")
    for rt in range(2):
        a = acc(13, rt)
        g.I(f"v_mul_f32 v2, s51, v{a}")
        g.I("v_exp_f32_e64 v2, -v2")
        g.I("v_add_f32 v2, 1.0, v2")
        g.I(f"v_rcp_f32 v{GATE(rt)}, v2")
    skip = g.newlabel("Lng")
    g.I(f"s_cmp_lg_u32 {sA}, 0")
    g.I(f"s_cbranch_scc1 {skip}")
    g.I("v_and_b32 v1, 15, v0")
    g.I("v_lshlrev_b32 v1, 2, v1")
    g.I("v_cmp_gt_u32 vcc, 16, v0")
    g.I(f"v_mov_b32 v6, {BIG}")
    g.I("v_cndmask_b32 v1, v6, v1, vcc")
    g.I(f"s_lshl_b32 s52, {sRB}, 7")
    g.I(f"s_lshl_b32 s53, {sWAVE}, 5")
    g.I("s_add_u32 s52, s52, s53")
    g.I("s_lshl_b32 s52, s52, 2")
    g.I(f"s_add_u32 s52, s52, {G_OFF}")
    for rt in range(2):
        g.I(f"s_add_u32 s53, s52, {rt*64}")
        g.I(f"buffer_store_dword v{GATE(rt)}, v1, {R4(SRD_WS)}, s53 offen{SC}")
    g.L(skip)
    for t in range(5):
        for rt in range(2):
            a = acc(t, rt)
            for i in range(4):
                phi(g, f"v{a+i}", f"v{2 + i}")
            d = PQK(t, rt)
            g.I(f"v_cvt_pk_bf16_f32 v{d}, v{a}, v{a+1}")
            g.I(f"v_cvt_pk_bf16_f32 v{d+1}, v{a+2}, v{a+3}")
    nonce_to_lds(g)
    g.I("s_waitcnt vmcnt(0) lgkmcnt(0)")
    g.I("s_barrier")
    publish_flag(g, "H")
    stamp(g, 3)

OKV = lambda hl, T: ([152, 160, 168, 28][hl]) + 4 * T
def ojob_flagaddr(g):
    g.I("v_lshlrev_b32 v12, 2, v0")
    g.I(f"s_lshl_b32 s56, {sA}, 3")
    g.I("v_add_u32 v12, s56, v12")
    g.I("v_cmp_gt_u32 vcc, 2, v0")
    g.I(f"v_mov_b32 v13, {BIG}")
    g.I("v_cndmask_b32 v12, v13, v12, vcc")

def ojob_flagload(g):
    ojob_flagaddr(g)
    g.I(f"s_mov_b32 s5, {FF_OFF}")
    g.I(f"buffer_load_dword v9, v12, {R4(SRD_WS)}, s5 offen{SC}")

def ojob_loads(g, checked=False):
    if checked:
        ok = g.newlabel("Lfo")
        g.I(f"v_cmp_eq_u32 vcc, {sNONCE}, v9")
        g.I("s_and_b32 s6, vcc_lo, 3")
        g.I("s_cmp_eq_u32 s6, 3")
        g.I(f"s_cbranch_scc1 {ok}")
    ojob_flagaddr(g)
    poll(g, "v12", FF_OFF, 2)
    if checked:
        g.L(ok)
    g.I("v_lshlrev_b32 v12, 4, v0")
    g.I("v_and_b32 v13, 15, v0")
    g.I("v_lshrrev_b32 v14, 2, v13")
    g.I("v_lshlrev_b32 v14, 1, v14")
    g.I("v_and_b32 v8, 1, v13")
    g.I("v_add_u32 v14, v14, v8")
    g.I("v_lshlrev_b32 v14, 4, v14")
    g.I("v_lshrrev_b32 v8, 4, v0")
    g.I("v_lshl_add_u32 v14, v8, 7, v14")
    g.I("v_add_u32 v14, 1024, v14")
    g.I("v_and_b32 v8, 2, v13")
    g.I("v_cmp_eq_u32 vcc, 0, v8")
    g.I(f"v_mov_b32 v8, {BIG}")
    g.I("v_cndmask_b32 v14, v8, v14, vcc")
    g.I(f"s_mul_i32 s6, {sA}, {4*KVF_STRIDE}")
    for hl in range(4):
        g.I(f"s_add_u32 s56, s6, {KVF_OFF + hl*KVF_STRIDE}")
        g.I(f"buffer_load_dwordx4 {vr(OKV(hl,0))}, v12, {R4(SRD_WS)}, s56 offen{SC}")
        g.I(f"buffer_load_dwordx4 {vr(OKV(hl,1))}, v14, {R4(SRD_WS)}, s56 offen{SC}")

def ojob_compute(g):
    g.I(f"s_mov_b32 s4, {EPS6}")
    g.I(f"s_lshl_b32 s5, {sRB}, 3")
    g.I(f"s_lshl_b32 s6, {sWAVE}, 1")
    g.I("s_add_u32 s5, s5, s6")
    g.I("s_mul_i32 s5, s5, 24")
    g.I(f"s_mul_i32 s6, {sA}, 3")
    g.I("s_add_u32 s5, s5, s6")
    g.I("s_lshl_b32 s5, s5, 10")
    g.I(f"s_add_u32 s5, s5, {O_OFF}")
    g.I("v_lshlrev_b32 v14, 4, v0")
    for rt in range(2):
        for hl in range(4):
            t0 = (5 * hl) >> 2
            B = PQK(t0, rt)
            g.I(f"v_mfma_f32_16x16x32_bf16 v[36:39], {vr(OKV(hl,0))}, {vr(B)}, 0")
            g.I(f"v_mfma_f32_16x16x32_bf16 v[40:43], {vr(OKV(hl,1))}, {vr(B)}, 0")
            g.I("v_add_f32 v12, s4, v41")
            g.I("v_rcp_f32 v12, v12")
            g.I(f"v_mul_f32 v12, v12, v{GATE(rt)}")
            for j in range(5):
                idx = 5 * hl + j
                src = 36 + j if j < 4 else 40
                g.I(f"v_mul_f32 v{44 + idx % 8}, v12, v{src}")
                if idx % 4 == 3:
                    u = idx // 4
                    o = 8 + 2 * (u % 2)
                    b = 44 + (4 * u) % 8
                    g.I(f"v_cvt_pk_bf16_f32 v{o}, v{b}, v{b+1}")
                    g.I(f"v_cvt_pk_bf16_f32 v{o+1}, v{b+2}, v{b+3}")
                    if u == 4:
                        g.I("v_mov_b32 v10, 0")
                        g.I("v_mov_b32 v11, 0")
                    if u % 2 == 1 or u == 4:
                        g.I(f"s_add_u32 s56, s5, {rt*24*1024 + (u//2)*1024}")
                        g.I(f"buffer_store_dwordx4 v[8:11], v14, {R4(SRD_WS)}, s56 offen{SC}")

def ojob_publish(g):
    lb = g.newlabel("Lop")
    g.I(f"v_mov_b32 v12, {CNT_LDS}")
    g.I("v_mov_b32 v13, 1")
    g.I("v_cmp_eq_u32 vcc, 0, v0")
    g.I("s_and_saveexec_b64 s[4:5], vcc")
    g.I("ds_add_rtn_u32 v13, v12, v13")
    g.I("s_waitcnt lgkmcnt(0)")
    g.I("s_mov_b64 exec, s[4:5]")
    g.I("v_readfirstlane_b32 s6, v13")
    g.I("s_cmp_lg_u32 s6, 3")
    g.I(f"s_cbranch_scc1 {lb}")
    publish_flag(g, "Q", "s4", "s5", 12, anywave=True)
    g.L(lb)

def flag_lane0(g, b=5):
    g.I(f"v_mov_b32 v{b}, {sNONCE}")
    g.I(f"v_mov_b32 v{b+1}, 0")
    g.I("v_cmp_eq_u32 vcc, 0, v0")
    g.I(f"v_mov_b32 v{b+2}, {BIG}")
    g.I(f"v_cndmask_b32 v{b+1}, v{b+2}, v{b+1}, vcc")

def lds_sig(g, addr):
    g.I(f"v_mov_b32 v12, {addr}")
    g.I("v_mov_b32 v13, 1")
    g.I("v_cmp_eq_u32 vcc, 0, v0")
    g.I("s_and_saveexec_b64 s[4:5], vcc")
    g.I("ds_add_u32 v12, v13")
    g.I("s_mov_b64 exec, s[4:5]")

def lds_wait(g, addr, n):
    loop = g.newlabel("Llw"); done = g.newlabel("Llwd")
    g.I(f"v_mov_b32 v12, {addr}")
    g.I("s_mov_b32 s4, 0")
    g.L(loop)
    g.I("ds_read_b32 v13, v12")
    g.I("s_waitcnt lgkmcnt(0)")
    g.I("v_readfirstlane_b32 s5, v13")
    g.I(f"s_cmp_ge_u32 s5, {n}")
    g.I(f"s_cbranch_scc1 {done}")
    g.I("s_add_u32 s4, s4, 1")
    g.I(f"s_cmp_lt_u32 s4, {SPIN_MAX*4}")
    g.I(f"s_cbranch_scc1 {loop}")
    g.L(done)

def pub_p2(g):
    def f():
        lb = g.newlabel("Lpub")
        g.I(f"s_bitcmp1_b32 {sI}, 1")
        g.I(f"s_cbranch_scc1 {lb}")
        g.I(f"v_mov_b32 v12, {CNT_LDS}")
        g.I("v_mov_b32 v13, 1")
        g.I("v_cmp_eq_u32 vcc, 0, v0")
        g.I("s_and_saveexec_b64 s[4:5], vcc")
        g.I("ds_add_rtn_u32 v13, v12, v13")
        g.I("s_waitcnt lgkmcnt(0)")
        g.I("s_mov_b64 exec, s[4:5]")
        g.I("v_readfirstlane_b32 s6, v13")
        g.I("s_cmp_lg_u32 s6, 3")
        g.I(f"s_cbranch_scc1 {lb}")
        publish_flag(g, "K", "s4", "s5", 12, anywave=True)
        g.L(lb)
    return f

def publish_flag(g, kind, t0="s52", t1="s53", b=5, anywave=False):
    lab = g.newlabel("Lfl")
    if not anywave:
        g.I(f"s_cmp_lg_u32 {sWAVE}, 0")
        g.I(f"s_cbranch_scc1 {lab}")
    flag_lane0(g, b)
    if kind == "H":
        g.I(f"s_lshr_b32 {t0}, {sXCD}, 1")
        g.I(f"s_lshl_b32 {t0}, {t0}, 2")
        g.I(f"s_and_b32 {t1}, {sI}, 3")
        g.I(f"s_add_u32 {t0}, {t0}, {t1}")
        g.I(f"s_lshl_b32 {t0}, {t0}, 2")
        g.I(f"s_lshl_b32 {t1}, {sRB}, 8")
        g.I(f"s_add_u32 {t0}, {t0}, {t1}")
        g.I(f"s_add_u32 {t0}, {t0}, {HF_OFF}")
    elif kind == "K":
        g.I(f"s_lshl_b32 {t0}, {sA}, 8")
        g.I(f"s_lshl_b32 {t1}, {sRB}, 2")
        g.I(f"s_add_u32 {t0}, {t0}, {t1}")
        g.I(f"s_add_u32 {t0}, {t0}, {KF_OFF}")
    else:
        g.I(f"s_lshl_b32 {t0}, {sRB}, 8")
        g.I(f"s_lshl_b32 {t1}, {sA}, 2")
        g.I(f"s_add_u32 {t0}, {t0}, {t1}")
        g.I(f"s_add_u32 {t0}, {t0}, {QF_OFF}")
    g.I(f"buffer_store_dword v{b}, v{b+1}, {R4(SRD_WS)}, {t0} offen{SC}")
    g.L(lab)

def read_nonce(g):
    g.I(f"v_mov_b32 v5, {NONCE_LDS}")
    g.I("ds_read_b32 v5, v5")
    g.I("s_waitcnt lgkmcnt(0)")
    g.I(f"v_readfirstlane_b32 {sNONCE}, v5")

def reducer(g):
    g.C("==== kv reducer")
    g.I(f"s_lshl_b32 s50, {sXCD}, 1")
    g.I(f"s_add_u32 s50, s50, {sI}")
    g.I("s_sub_u32 s50, s50, 30")
    g.I(f"s_lshl_b32 s51, {sWAVE}, 6")
    g.I("v_add_u32 v1, s51, v0")
    g.I("v_cmp_le_u32 vcc, 192, v1")
    g.I("v_cndmask_b32 v2, 0, 1, vcc")
    g.I("v_mul_u32_u24 v3, 192, v2")
    g.I("v_sub_u32 v3, v1, v3")
    g.I("v_cmp_le_u32 vcc, 128, v3")
    g.I("v_cndmask_b32 v4, 0, 1, vcc")
    g.I("v_lshrrev_b32 v6, 5, v3")
    g.I("v_subrev_u32 v5, 128, v3")
    g.I("v_lshrrev_b32 v7, 4, v5")
    g.I("v_cndmask_b32 v6, v6, v7, vcc")
    g.I("v_bfe_u32 v7, v3, 1, 4")
    g.I("v_lshrrev_b32 v10, 2, v7")
    g.I("v_mul_u32_u24 v10, 5, v10")
    g.I("v_and_b32 v11, 3, v7")
    g.I("v_add_u32 v12, v10, v11")
    g.I("v_bfe_u32 v7, v5, 1, 3")
    g.I("v_lshrrev_b32 v10, 1, v7")
    g.I("v_mul_u32_u24 v10, 5, v10")
    g.I("v_add_u32 v13, 4, v10")
    g.I("v_and_b32 v11, 1, v7")
    g.I("v_cmp_eq_u32 s[4:5], 1, v11")
    g.I("v_cndmask_b32 v13, v13, 20, s[4:5]")
    g.I("v_cndmask_b32 v12, v12, v13, vcc")
    g.I("v_and_b32 v8, 1, v3")
    g.I("s_and_b32 s51, s50, 1")
    g.I("s_lshl_b32 s51, s51, 1")
    g.I("v_add_u32 v16, s51, v2")
    g.I("v_mul_u32_u24 v15, 5, v16")
    g.I("v_lshrrev_b32 v9, 2, v15")
    g.I("v_add_u32 v9, v9, v8")
    g.I("v_lshl_add_u32 v9, v9, 2, v6")
    g.I("v_sub_u32 v9, v9, v15")
    g.I("v_mul_u32_u24 v16, 105, v16")
    g.I("v_mul_u32_u24 v15, 5, v12")
    g.I("v_add3_u32 v16, v16, v15, v9")
    g.I("v_lshlrev_b32 v16, 4, v16")
    g.I(f"v_mov_b32 v18, {BIG}")
    g.I("v_cmp_gt_u32 vcc, 5, v9")
    g.I("v_cndmask_b32 v16, v18, v16, vcc")
    g.I("v_cmp_gt_u32 vcc, 384, v1")
    g.I("v_cndmask_b32 v16, v18, v16, vcc")
    g.I("v_lshlrev_b32 v17, 3, v3")
    g.I(f"v_mul_u32_u24 v21, {KVF_STRIDE}, v2")
    g.I("v_add_u32 v17, v17, v21")
    g.I("v_cndmask_b32 v17, v18, v17, vcc")
    lab = g.newlabel("Lrp")
    g.I(f"s_cmp_lg_u32 {sWAVE}, 4")
    g.I(f"s_cbranch_scc1 {lab}")
    g.I("v_lshlrev_b32 v19, 2, v0")
    g.I("s_lshr_b32 s51, s50, 1")
    g.I("s_lshl_b32 s51, s51, 8")
    g.I("v_add_u32 v19, s51, v19")
    g.I("v_cmp_gt_u32 vcc, 16, v0")
    g.I("v_cndmask_b32 v19, v18, v19, vcc")
    poll(g, "v19", KF_OFF, 16)
    g.L(lab)
    stamp(g, 4)
    g.I("s_barrier")
    g.I("s_lshr_b32 s51, s50, 1")
    g.I(f"s_mul_i32 s51, s51, {16*KVP_STRIDE}")
    g.I(f"s_add_u32 s51, s51, {KVP_OFF}")
    for rb in range(16):
        g.I(f"s_add_u32 s52, s51, {rb*KVP_STRIDE}")
        g.I(f"buffer_load_dwordx4 {vr(32+4*rb)}, v16, {R4(SRD_WS)}, s52 offen{SC}")
    for rb in range(1, 16):
        g.I(f"s_waitcnt vmcnt({15-rb})")
        for j in range(4):
            g.I(f"v_add_f32 v{32+j}, v{32+j}, v{32+4*rb+j}")
    g.I("v_cvt_pk_bf16_f32 v20, v32, v33")
    g.I("v_cvt_pk_bf16_f32 v21, v34, v35")
    g.I(f"s_mul_i32 s52, s50, {2*KVF_STRIDE}")
    g.I(f"s_add_u32 s52, s52, {KVF_OFF}")
    g.I(f"buffer_store_dwordx2 v[20:21], v17, {R4(SRD_WS)}, s52 offen{SC}")
    g.I("s_waitcnt vmcnt(0)")
    g.I("s_barrier")
    lab = g.newlabel("Lrf")
    g.I(f"s_cmp_lg_u32 {sWAVE}, 0")
    g.I(f"s_cbranch_scc1 {lab}")
    g.I(f"v_mov_b32 v5, {sNONCE}")
    g.I("v_mov_b32 v6, 0")
    g.I("v_cmp_eq_u32 vcc, 0, v0")
    g.I("v_cndmask_b32 v6, v18, v6, vcc")
    g.I("s_lshl_b32 s52, s50, 2")
    g.I(f"s_add_u32 s52, s52, {FF_OFF}")
    g.I(f"buffer_store_dword v5, v6, {R4(SRD_WS)}, s52 offen{SC}")
    g.L(lab)
    stamp(g, 5)
    lab = g.newlabel("Lro")
    g.I(f"s_cmp_ge_u32 {sWAVE}, 4")
    g.I(f"s_cbranch_scc1 {lab}")
    ojob_loads(g)
    g.I("s_waitcnt vmcnt(0)")
    ojob_compute(g)
    g.I("s_waitcnt vmcnt(0)")
    ojob_publish(g)
    g.L(lab)

def p2_body(g, nr, isL, vm, post_bp=None):
    g.C(f"==== P2 body nr={nr} L={isL}")
    ACC2 = 208
    A2 = lambda rt, ct: ACC2 + (rt * 4 + ct) * 4
    def AB(sidx, rt):
        if sidx < 4: return 104 + (sidx * 3 + rt) * 4
        if sidx < 7: return 16 + ((sidx - 4) * 3 + rt) * 4
        if sidx < 11: return 104 + ((sidx - 7) * 3 + rt) * 4
        return 16 + rt * 4
    BF = lambda b, ct: (80 if b == 0 else 52) + ct * 4
    WA = [68 + k for k in range(10)] + [198, 199]
    VK = 79
    VB = lambda ct: 96 + ct
    VA = 100
    VG = [101, 102, 103]
    VBH = lambda ct: 4 + ct
    VBH2 = lambda ct: 200 + ct
    VK1 = 204
    PQ = lambda k: 152 + (k % 12) * 4
    KV = lambda hh, T: 28 + ((hh % 3) * 2 + T) * 4
    VAL = lambda rt: 104 + rt * 16
    DD = lambda k, T: (52 if k % 2 == 0 else 16) + T * 4
    WFR = lambda ct: 80 + ct * 4
    PK = lambda k: 64 if k % 2 == 0 else 96
    lk = LgkmTracker(g)
    half_slots = (2, 4) if isL else (0, 2)
    g.I("v_and_b32 v1, 15, v0")
    g.I("v_lshrrev_b32 v2, 4, v0")
    g.I("v_bfe_u32 v3, v0, 2, 2")
    g.I("v_and_b32 v4, 3, v0")
    g.I(f"v_lshlrev_b32 v{VA}, 4, v0")
    g.I(f"v_mov_b32 v5, {BIG}")
    g.I("v_cmp_gt_u32 vcc, 48, v0")
    g.I(f"v_cndmask_b32 v{VK}, v5, v{VA}, vcc")
    g.I("v_lshrrev_b32 v6, 2, v1")
    g.I("v_lshlrev_b32 v6, 1, v6")
    g.I("v_and_b32 v7, 1, v1")
    g.I("v_add_u32 v6, v6, v7")
    g.I("v_lshlrev_b32 v6, 4, v6")
    g.I("v_lshl_add_u32 v6, v2, 7, v6")
    g.I("v_add_u32 v6, 768, v6")
    g.I("v_cndmask_b32 v6, v5, v6, vcc")
    g.I("v_and_b32 v7, 2, v1")
    g.I("v_cmp_eq_u32 vcc, 0, v7")
    g.I(f"v_cndmask_b32 v{VK1}, v5, v6, vcc")
    g.I("v_and_b32 v6, 1, v2")
    g.I("v_lshrrev_b32 v7, 1, v3")
    g.I("v_lshlrev_b32 v7, 1, v7")
    g.I("v_lshl_add_u32 v7, v6, 2, v7")
    g.I("v_lshl_add_u32 v8, v2, 2, v3")
    g.I("v_and_b32 v9, 1, v4")
    g.I("v_lshlrev_b32 v9, 3, v9")
    g.I("v_lshl_add_u32 v9, v8, 7, v9")
    g.I("s_lshl_b32 s56, s53, 12")
    g.I("v_add_u32 v9, s56, v9")
    g.I("v_lshrrev_b32 v8, 1, v4")
    for ct in range(4):
        g.I(f"v_add_u32 v12, {2*ct}, v8")
        g.I("v_xor_b32 v12, v12, v7")
        g.I(f"v_lshl_add_u32 v{VB(ct)}, v12, 4, v9")
    for ct in range(4):
        g.I(f"v_add_u32 v{VBH2(ct)}, 0x20000, v{VB(ct)}")
    for rt in range(nr):
        for ct in range(4):
            for i in range(4):
                g.I(f"v_mov_b32 v{A2(rt,ct)+i}, 0")
    g.I("v_mul_u32_u24 v12, 5, v2")
    g.I("s_mul_i32 s56, s53, 20480")
    g.I(f"s_add_u32 s56, s56, {WO_BASE}")
    g.I("v_lshlrev_b32 v13, 3, v4")
    g.I("v_add_u32 v13, s56, v13")
    for m in range(6):
        for half in range(2):
            base_v = 8 * (m % 3) + 4 * half
            if base_v >= 20:
                g.I(f"v_mov_b32 v14, {80*(m//3)}")
                g.I("v_add_u32 v14, v14, v12")
            else:
                g.I(f"v_add_u32 v14, {base_v}, v3")
                g.I("v_mul_u32_u24 v15, 52, v14")
                g.I("v_lshrrev_b32 v15, 8, v15")
                g.I("v_mul_u32_u24 v15, 15, v15")
                g.I("v_add3_u32 v14, v14, v15, v12")
                if m >= 3:
                    g.I("v_add_u32 v14, 80, v14")
            g.I("v_bfe_u32 v15, v14, 1, 2")
            g.I("v_lshlrev_b32 v15, 5, v15")
            g.I("v_lshl_add_u32 v14, v14, 7, v15")
            g.I(f"v_add_u32 v{WA[2*m+half]}, v14, v13")
    g.I("v_lshlrev_b32 v11, 2, v1")
    for ct in range(4):
        g.I(f"v_add_u32 v{VBH(ct)}, 0x10000, v{VB(ct)}")
    g.I("s_mul_i32 s3, s55, 48")
    g.I("s_mul_i32 s56, s53, 12")
    g.I("s_add_u32 s3, s3, s56")
    g.I("s_lshl_b32 s3, s3, 10")
    if OPT["rot2"]:
        g.I("s_lshl_b32 s61, s50, 10")
    else:
        g.I("s_mov_b32 s61, 0")
    g.I("s_mul_i32 s62, s55, 20480")
    g.I("s_mul_i32 s56, s53, 5120")
    g.I("s_add_u32 s62, s62, s56")
    def load_a(sidx):
        g.I("s_add_u32 s6, s3, s61")
        for rt in range(nr):
            g.I(f"s_add_u32 s56, s6, {H_OFF + rt*48*1024}")
            vm.issue(f"buffer_load_dwordx4 {vr(AB(sidx, rt))}, v{VA}, {R4(SRD_WS)}, s56 offen{SC}", ("a", sidx))
        g.I("s_add_u32 s61, s61, 1024")
        g.I(f"s_cmp_ge_u32 s61, {12*1024}")
        g.I(f"s_cselect_b32 s56, {12*1024}, 0")
        g.I("s_sub_u32 s61, s61, s56")
    if isL:
        g.I("v_lshrrev_b32 v12, 4, v0")
        g.I("v_lshlrev_b32 v12, 8, v12")
        g.I("v_and_b32 v13, 15, v0")
        g.I("v_lshl_add_u32 v12, v13, 2, v12")
        g.I(f"s_lshl_b32 s56, {sXCD}, 9")
        g.I("v_add_u32 v12, s56, v12")
        g.I("v_cmp_gt_u32 vcc, 32, v0")
        g.I(f"v_mov_b32 v13, {BIG}")
        g.I("v_cndmask_b32 v12, v13, v12, vcc")
        poll(g, "v12", HF_OFF, 32)
        vm.q = []
        lds_sig(g, CNT1_LDS)
    else:
        g.I("s_waitcnt vmcnt(0)")
        if post_bp:
            post_bp()
        lds_sig(g, CNT2_LDS)
    stamp(g, 4)
    lds_wait(g, CNT1_LDS, 4)
    stamp(g, 1, force=OPT["prof2"])
    def rd_b(sidx):
        base = W2R[sidx]
        for ct in range(4):
            for half in range(2):
                off = base + half * 2048
                if off >= 131072:
                    reg = VBH2(ct); off -= 131072
                elif off >= 65536:
                    reg = VBH(ct); off -= 65536
                else:
                    reg = VB(ct)
                lk.issue(f"ds_read_b64_tr_b16 {vr(BF(sidx % 2, ct) + 2*half, 2)}, v{reg} offset:{off}", ("b", sidx, ct))
    for sidx in range(7):
        load_a(sidx)
    def load_g():
        g.I("s_lshl_b32 s6, s55, 6")
        for rt in range(nr):
            g.I(f"s_add_u32 s56, s6, {G_OFF + rt*64}")
            vm.issue(f"buffer_load_dword v{VG[rt]}, v11, {R4(SRD_WS)}, s56 offen{SC}", ("g", 0))
    items = [(hh, rt) for hh in range(8) for rt in range(nr)]
    def load_pq(k):
        hh, rt = items[k]
        g.I(f"s_add_u32 s56, s62, {PQ_OFF + rt*20480 + ((5*hh) >> 1)*256}")
        vm.issue(f"buffer_load_dwordx4 {vr(PQ(k))}, v{VK}, {R4(SRD_WS)}, s56 offen{SC}", ("pq", k))
    load_g()
    lds_wait(g, CNT2_LDS, 4)
    dma_w2(g, vm, 7, half_slots); dma_w2(g, vm, 8, half_slots)
    def load_kv(hh):
        g.I(f"s_add_u32 s56, s7, {KVF_OFF + hh*KVF_STRIDE}")
        vm.issue(f"buffer_load_dwordx4 {vr(KV(hh,0))}, v{VK}, {R4(SRD_WS)}, s56 offen{SC}", ("kv", hh))
        vm.issue(f"buffer_load_dwordx4 {vr(KV(hh,1))}, v{VK1}, {R4(SRD_WS)}, s56 offen{SC}", ("kv", hh))
    OJ0 = OPT_OJ
    mark = {}
    rd_b(0)
    for sidx in range(12):
        if OPT["prof2"] and sidx in (0, 1, 3, 6, 8, 11):
            lk.drain()
            stamp(g, {0: 2, 1: 3, 3: 4, 6: 5, 8: 6, 11: 7}[sidx], force=True)
        if sidx == 5:
            g.I("s_barrier")
            dma_wo(g, vm, 10 if isL else 0, 20 if isL else 10)
        if sidx == 6:
            vm.wait(("d", 8))
            g.I("s_barrier")
            dma_w2(g, vm, 9, half_slots)
        if sidx == 7:
            g.I("s_barrier")
            dma_w2(g, vm, 10, half_slots)
        if sidx == 8:
            vm.wait(("d", 9))
            g.I("s_barrier")
            dma_w2(g, vm, 11, half_slots)
            stamp(g, 5)
        if sidx == 9:
            vm.wait(("d", 11))
            g.I("s_barrier")
        if not isL and sidx in (OJ0, OJ0 + 1, OJ0 + 2, OJ0 + 4):
            lb = g.newlabel("Loj")
            g.I(f"s_bitcmp0_b32 {sI}, 1")
            g.I(f"s_cbranch_scc1 {lb}")
            if sidx == OJ0:
                ojob_flagload(g)
                mark["fl"] = vm.total
            elif sidx == OJ0 + 1:
                g.I(f"s_waitcnt vmcnt({min(63, vm.total - mark['fl'])})")
                ojob_loads(g, checked=True)
                mark["kv"] = vm.total
            elif sidx == OJ0 + 2:
                g.I(f"s_waitcnt vmcnt({min(63, vm.total - mark['kv'])})")
                ojob_compute(g)
                mark["st"] = vm.total
            else:
                g.I(f"s_waitcnt vmcnt({min(63, vm.total - mark['st'])}) lgkmcnt(0)")
                ojob_publish(g)
            g.L(lb)
        if sidx + 1 < 12:
            rd_b(sidx + 1)
        vm.wait(("a", sidx))
        for ct in range(4):
            lk.wait(("b", sidx, ct))
            for rt in range(nr):
                a = A2(rt, ct)
                g.I(f"v_mfma_f32_16x16x32_bf16 {vr(a)}, {vr(BF(sidx % 2, ct))}, {vr(AB(sidx, rt))}, {vr(a)}")
        if sidx < 4:
            load_a(sidx + 7)
        if sidx == 4:
            load_a(11)
    lk.drain()
    clkstamp(g, 4)
    vm.wait(("g", 0))
    for rt in range(nr):
        g.I(f"v_sub_f32 v12, 1.0, v{VG[rt]}")
        for ct in range(4):
            for i in range(0, 4, 2):
                g.I(f"v_pk_mul_f32 {vr(A2(rt,ct)+i, 2)}, {vr(A2(rt,ct)+i, 2)}, v[12:13] op_sel_hi:[1,0]")
    g.I("v_and_b32 v12, 1, v0")
    g.I("v_lshlrev_b32 v12, 2, v12")
    g.I("v_bfe_u32 v13, v0, 1, 1")
    g.I("v_lshl_add_u32 v12, v13, 8, v12")
    g.I(f"s_lshl_b32 s56, {sXCD}, 9")
    g.I("s_lshl_b32 s6, s53, 3")
    g.I("s_add_u32 s56, s56, s6")
    g.I("v_add_u32 v12, s56, v12")
    g.I("v_cmp_gt_u32 vcc, 4, v0")
    g.I(f"v_mov_b32 v13, {BIG}")
    g.I("v_cndmask_b32 v12, v13, v12, vcc")
    def rd_wo(n, b):
        for ct in range(4):
            for half in range(2):
                if ct == 0:
                    ar = WA[2*n+half]
                else:
                    ar = 14 + half
                    g.I(f"v_xor_b32 v{ar}, {ct << 5}, v{WA[2*n+half]}")
                lk.issue(f"ds_read_b64_tr_b16 {vr(BF(b, ct) + 2*half, 2)}, v{ar}", ("wf", n, ct))
    poll(g, "v12", QF_OFF, 4, tmp="v10")
    vm.q = []
    stamp(g, 6)
    OB = lambda n, rt: (104 + (n * 3 + rt) * 4) if n < 4 else (28 + ((n - 4) * 3 + rt) * 4)
    g.I("s_mul_i32 s6, s55, 24")
    g.I("s_mul_i32 s56, s53, 6")
    g.I("s_add_u32 s6, s6, s56")
    g.I("s_lshl_b32 s6, s6, 10")
    for n in range(6):
        for rt in range(nr):
            g.I(f"s_add_u32 s56, s6, {O_OFF + rt*24*1024 + n*1024}")
            vm.issue(f"buffer_load_dwordx4 {vr(OB(n, rt))}, v{VA}, {R4(SRD_WS)}, s56 offen{SC}", ("o", n))
    rd_wo(0, 0)
    for n in range(6):
        if n + 1 < 6:
            rd_wo(n + 1, (n + 1) % 2)
        vm.wait(("o", n))
        for ct in range(4):
            lk.wait(("wf", n, ct))
            for rt in range(nr):
                a = A2(rt, ct)
                g.I(f"v_mfma_f32_16x16x32_bf16 {vr(a)}, {vr(BF(n % 2, ct))}, {vr(OB(n, rt))}, {vr(a)}")
    stamp(g, 7)
    g.I("s_barrier")

def p2_final(g):
    A2 = lambda rt, ct: 208 + (rt * 4 + ct) * 4
    def base_of(dst, w_s):
        g.I(f"s_mul_i32 {dst}, {w_s}, 9216")
        g.I(f"s_cmp_ge_u32 {w_s}, 4")
        g.I(f"s_cselect_b32 s56, {126976 - 4*9216}, 0")
        g.I(f"s_add_u32 {dst}, {dst}, s56")
    g.I("v_lshlrev_b32 v1, 4, v0")
    base_of("s57", sWAVE)
    g.I("v_add_u32 v2, s57, v1")
    g.I("v_and_b32 v3, 15, v0")
    g.I("v_mul_u32_u24 v3, 1280, v3")
    g.I("v_lshrrev_b32 v4, 4, v0")
    g.I("v_lshl_add_u32 v3, v4, 3, v3")
    g.I(f"s_mul_i32 s58, s55, {16*1280}")
    g.I("s_lshl_b32 s59, s50, 7")
    g.I("s_add_u32 s58, s58, s59")
    g.I("s_lshl_b32 s59, s53, 5")
    g.I("s_add_u32 s58, s58, s59")
    g.I("s_cmp_lt_u32 s51, 2")
    g.I("s_cselect_b32 s59, s54, 0")
    g.I("s_cmp_eq_u32 s59, 1")
    g.I(f"s_cselect_b32 s59, {BIG}, 0")
    g.I("v_add_u32 v5, s59, v3")
    labs = [g.newlabel("Lfk") for _ in range(4)]
    done = g.newlabel("Lfd")
    for kq in range(1, 4):
        g.I(f"s_cmp_eq_u32 s53, {kq}")
        g.I(f"s_cbranch_scc1 {labs[kq]}")
    for kq in range(4):
        g.L(labs[kq])
        others = [c for c in range(4) if c != kq]
        for rt in range(3):
            for k, ct in enumerate(others):
                g.I(f"ds_write_b128 v2, {vr(A2(rt, ct))} offset:{(rt*3 + k)*1024}")
        for k, src in enumerate(others):
            g.I("s_lshl_b32 s60, s54, 2")
            g.I(f"s_add_u32 s60, s60, {src}")
            base_of("s61", "s60")
            idx = kq if kq < src else kq - 1
            g.I(f"s_add_u32 s61, s61, {idx*1024}")
            g.I(f"v_add_u32 v{6+k}, s61, v1")
        g.I("s_waitcnt lgkmcnt(0)")
        g.I("s_barrier")
        for rt in range(3):
            for k in range(3):
                g.I(f"ds_read_b128 {vr(16 + (rt*3 + k)*4)}, v{6+k} offset:{rt*3*1024}")
        for rt in range(3):
            g.I(f"s_waitcnt lgkmcnt({6 - 3*rt})")
            a = A2(rt, kq)
            b = 16 + rt * 12
            for i in range(4):
                g.I(f"v_add_f32 v{b+i}, v{b+i}, v{b+4+i}")
                g.I(f"v_add_f32 v{a+i}, v{a+i}, v{b+8+i}")
            for i in range(4):
                g.I(f"v_add_f32 v{a+i}, v{a+i}, v{b+i}")
            g.I(f"v_cvt_pk_bf16_f32 v{b}, v{a}, v{a+1}")
            g.I(f"v_cvt_pk_bf16_f32 v{b+1}, v{a+2}, v{a+3}")
            g.I(f"s_add_u32 s56, s58, {rt*16*1280}")
            g.I(f"buffer_store_dwordx2 {vr(b,2)}, v{3 if rt < 2 else 5}, {R4(SRD_OUT)}, s56 offen{' nt' if OPT['ntout'] else ''}{' sc1' if OPT['scout'] else ''}{' sc0 sc1' if OPT['scout2'] else ''}")
        if kq < 3:
            g.I(f"s_branch {done}")
    g.L(done)

def kernel(g):
    end = "Lend"
    g.I("s_cmp_ge_u32 s2, 256")
    g.I(f"s_cbranch_scc1 {end}")
    g.I("s_load_dwordx16 s[64:79], s[0:1], 0")
    g.I("s_load_dwordx4 s[80:83], s[0:1], 64")
    if OPT["stamp"]:
        for k in range(8):
            g.I(f"s_mov_b32 s{84+2*k}, 0")
        g.I("s_memrealtime s[84:85]")
    if OPT["span"]:
        g.I("s_memrealtime s[100:101]")
    g.I("v_lshrrev_b32 v1, 6, v0")
    g.I("v_and_b32 v0, 63, v0")
    g.I(f"v_readfirstlane_b32 {sWAVE}, v1")
    g.I(f"s_and_b32 {sXCD}, s2, 7")
    g.I(f"s_lshr_b32 {sI}, s2, 3")
    g.I(f"s_and_b32 {sRB}, {sXCD}, 1")
    g.I(f"s_lshl_b32 {sRB}, {sRB}, 3")
    g.I(f"s_lshr_b32 s50, {sI}, 2")
    g.I(f"s_add_u32 {sRB}, {sRB}, s50")
    g.I(f"s_lshr_b32 {sA}, {sXCD}, 1")
    g.I(f"s_lshl_b32 {sA}, {sA}, 1")
    g.I(f"s_and_b32 s50, {sI}, 1")
    g.I(f"s_add_u32 {sA}, {sA}, s50")
    g.I(f"s_mov_b32 {sNONCE}, 0")
    if OPT["prof"]:
        g.I("s_getreg_b32 s3, hwreg(HW_REG_XCC_ID)")
        g.I("s_and_b32 s3, s3, 15")
        g.I("s_add_u32 s92, s3, 1000")
    g.I(f"s_cmp_ge_u32 {sWAVE}, 4")
    g.I("s_cbranch_scc1 Lload")
    g.I(f"s_bitcmp1_b32 {sI}, 1")
    g.I("s_cbranch_scc1 LcB")
    p1_compute(g, "A")
    p1_epilogue_A(g)
    read_nonce(g)
    g.I("s_mov_b32 s7, 0")
    g.I("s_branch Lp2C")
    g.L("LcB")
    p1_compute(g, "B")
    p1_epilogue_B(g)
    read_nonce(g)
    g.L("Lp2C")
    def pub():
        la, lb = g.newlabel("Lpub"), g.newlabel("Lpub")
        g.I(f"s_bitcmp1_b32 {sI}, 1")
        g.I(f"s_cbranch_scc1 {lb}")
        save = None
        publish_flag(g, "K")
        g.I(f"s_branch {la}")
        g.L(lb)
        publish_flag(g, "Q")
        g.L(la)
    g.I(f"s_cmp_ge_u32 {sI}, 30")
    g.I("s_cbranch_scc1 LredC")
    p2_decode(g)
    p2_dma_setup(g)
    g.I(f"s_add_u32 s57, s57, {7*32*1280}")
    g.I("s_cmp_ge_u32 s57, s63")
    g.I(f"s_cselect_b32 s56, {12*32*1280}, 0")
    g.I("s_sub_u32 s57, s57, s56")
    vm = VmTracker(g)
    p2_body(g, 3, False, vm, post_bp=pub_p2(g))
    g.I("s_branch Lfin")
    g.L("LredC")
    g.I("s_waitcnt vmcnt(0)")
    g.I("s_barrier")
    g.I("s_branch Lred")
    g.L("Lload")
    g.I(f"s_bitcmp1_b32 {sI}, 1")
    g.I("s_cbranch_scc1 LldB")
    p1_loader(g, "A")
    g.I("s_branch Lldtail")
    g.L("LldB")
    p1_loader(g, "B")
    g.L("Lldtail")
    g.I(f"s_cmp_ge_u32 {sI}, 30")
    g.I("s_cbranch_scc1 Lldred")
    p2_decode(g)
    p2_dma_setup(g)
    vmL = VmTracker(g)
    vmL.q = [("c", 8)] * 11 + [("c", 9)] * 11
    if OPT["l2w"]:
        l2warm(g, vmL)
    vmL.wait(("c", 8))
    g.I("s_barrier")
    dma_w2(g, vmL, 0); dma_w2(g, vmL, 1)
    vmL.wait(("c", 9))
    stamp(g, 3)
    g.I("s_barrier")
    for k in (2, 3, 4):
        dma_w2(g, vmL, k)
    g.I("s_barrier")
    dma_w2(g, vmL, 5); dma_w2(g, vmL, 6)
    read_nonce(g)
    l2 = "Lp2L2"
    g.I("s_cmp_lt_u32 s51, 2")
    g.I(f"s_cbranch_scc1 {l2}")
    vm3 = VmTracker(g); vm3.q = list(vmL.q)
    p2_body(g, 3, True, vm3)
    g.I("s_branch Lfin")
    g.L(l2)
    vm2 = VmTracker(g); vm2.q = list(vmL.q)
    p2_body(g, 2, True, vm2)
    g.L("Lfin")
    p2_final(g)
    g.I("s_branch Ldone")
    g.L("Lldred")
    g.I("s_waitcnt vmcnt(11)")
    g.I("s_barrier")
    g.I("s_waitcnt vmcnt(0)")
    g.I("s_barrier")
    g.I("s_barrier")
    read_nonce(g)
    g.I("s_barrier")
    g.L("Lred")
    reducer(g)
    g.L("Ldone")
    if OPT["span"]:
        g.I("s_waitcnt vmcnt(0)")
        g.I("s_memrealtime s[4:5]")
        g.I("s_waitcnt lgkmcnt(0)")
        g.I("s_not_b32 s6, s100")
        g.I("v_mov_b32 v1, 0")
        g.I("v_mov_b32 v2, s4")
        g.I("v_mov_b32 v3, s6")
        g.I("v_cmp_eq_u32 vcc, 0, v0")
        g.I("s_and_saveexec_b64 s[6:7], vcc")
        g.I("global_atomic_umax v1, v2, s[80:81] offset:4")
        g.I("global_atomic_umax v1, v3, s[80:81] offset:8")
        g.I("s_mov_b64 exec, s[6:7]")
    if OPT["stamp"]:
        g.I("s_waitcnt vmcnt(0)")
    stamp_flush(g)
    g.L(end)
    g.I("s_endpgm")
    g.L("Lcode_end")

def kd(name, vgpr, sgpr=102):
    return f""".p2align 6
.amdhsa_kernel {name}
  .amdhsa_next_free_vgpr {vgpr}
  .amdhsa_next_free_sgpr {sgpr}
  .amdhsa_accum_offset {vgpr}
  .amdhsa_group_segment_fixed_size 0
  .amdhsa_kernarg_size 80
  .amdhsa_user_sgpr_count 2
  .amdhsa_user_sgpr_kernarg_segment_ptr 1
  .amdhsa_system_sgpr_workgroup_id_x 1
.end_amdhsa_kernel
"""

HEADER = open("cdna_kernels/" + NAME + ".s.ref").read().split("; Override launch")[0]

def build():
    out = HEADER
    out += f"; @launch grid=(256,1,1) block=(512,1,1) lds={LDS_TOTAL}\n"
    out += '.amdgcn_target "amdgcn-amd-amdhsa--gfx950"\n.text\n'
    g = Gen()
    kernel(g)
    g.fix_hazards()
    for p in g.check_branches():
        print("BRANCH HAZARD:", p, file=sys.stderr)
    out += f".globl {KNAME}\n.p2align 8\n.type {KNAME},@function\n{KNAME}:\n" + g.text()
    out += '.section .rodata,"a"\n' + kd(KNAME, 256)
    return out

if __name__ == "__main__":
    args = sys.argv[1:]
    for a in list(args):
        if a.startswith("--oj="):
            OPT_OJ = int(a[5:]); args.remove(a); continue
        if a.startswith("--rot="):
            v = a[6:].split(","); ROT.update(shj=int(v[0]), mulj=int(v[1]), mulr=int(v[2])); args.remove(a)
        elif a.startswith("--"):
            k = a[2:]
            if k.startswith("no"):
                OPT[k[2:]] = False
            else:
                OPT[k] = True
            args.remove(a)
    path = args[0] if args else "v2.s"
    txt = build()
    open(path, "w").write(txt)
    print("wrote", path, len(txt), "bytes")
```

```python
import sys
from asmlib import Gen, LgkmTracker, VmTracker

NAME = "gated_mix__linear_attn_block__dense_activation_relu__prompt"
KNAME = NAME + "_kernel"
H_OFF = 0
PQ_OFF = 0x600000
G_OFF = 0x900000
KVP_OFF = 0x910000
KVP_STRIDE = 7168
KVF_OFF = 0xA00000
KVF_STRIDE = 1536
FL_OFF = 0xA10000
HF_OFF = FL_OFF
KF_OFF = FL_OFF + 0x2000
FF_OFF = FL_OFF + 0x4000
QF_OFF = FL_OFF + 0x6000
O_OFF = 0xB00000
ST_OFF = 0xA80000
WS_USED = 0xE80000
STAGE = 45056
GW_LDS = 3 * STAGE
KS_LDS = GW_LDS + 1280
KS_W = 6720
NONCE_LDS = KS_LDS + 4 * KS_W + 16
CNT_LDS = NONCE_LDS + 4
CNT1_LDS = NONCE_LDS + 8
CNT2_LDS = NONCE_LDS + 12
LDS_TOTAL = 163840
W2R = [45056 + 16384*k for k in range(5)] + [0, 16384, 126976, 143360] + [0, 16384, 126976]
WO_BASE = 45056
LOG2E = 0x3FB8AA3B
EPS6 = 0x358637BD
BIG = 0x40000000
SC = " sc1"
SPIN_MAX = 40000

OPT_OJ = 6
OPT = dict(stamp=False, codepf=True, tlb=True, prof=False, rot=True, rot2=True, xdma=True, xlds=True, xmfma=True, warm2=False, mall=True, prof2=False, prof3=False, span=False, clk=False, prio=False, prioL=False, ntx=False, ntw=False, ntw2=False, ntout=False, l2w=False, nosleep=False, scout=False, scout2=False, ojfast=False, bal=True)

SRD_X, SRD_QKV, SRD_W1, SRD_WS, SRD_GW, SRD_W2, SRD_WO, SRD_OUT = 8, 12, 16, 20, 24, 28, 32, 36
def R4(b): return f"s[{b}:{b+3}]"
sWAVE, sXCD, sI, sRB, sA, sNONCE = "s44", "s45", "s46", "s47", "s48", "s49"
def vr(b, n=4): return f"v[{b}:{b+n-1}]"

def clkstamp(g, k):
    if not (OPT["stamp"] and OPT["clk"]): return
    g.I(f"s_memrealtime s[{84+2*k}:{85+2*k}]")
    g.I(f"s_memtime s[{86+2*k}:{87+2*k}]")
    g.I("s_waitcnt lgkmcnt(0)")

def stamp(g, k, force=False):
    if not OPT["stamp"]: return
    if OPT["clk"]: return
    if (OPT["prof2"] or OPT["prof3"]) and not force: return
    if OPT["prof"] and k >= 4: return
    g.I(f"s_memrealtime s[{84+2*k}:{85+2*k}]")
    g.I("s_waitcnt lgkmcnt(0)")

def stamp_flush(g):
    if not OPT["stamp"]: return
    g.I("s_lshl_b32 s50, s2, 8")
    g.I(f"s_lshl_b32 s51, {sWAVE}, 5")
    g.I("s_add_u32 s50, s50, s51")
    g.I(f"s_add_u32 s50, s50, {ST_OFF}")
    g.I("v_mov_b32 v14, 0")
    for k in range(8):
        g.I(f"v_mov_b32 v15, s{84+2*k}")
        g.I(f"buffer_store_dword v15, v14, {R4(SRD_WS)}, s50 offen offset:{4*k}")

def srd(g, d, p, size):
    g.I(f"s_mov_b32 s{d}, s{p}")
    g.I(f"s_and_b32 s{d+1}, s{p+1}, 0xffff")
    g.I(f"s_mov_b32 s{d+2}, {size}")
    g.I(f"s_mov_b32 s{d+3}, 0x00020000")

def srds_p1(g):
    srd(g, SRD_X, 64, 2048 * 1280)
    srd(g, SRD_QKV, 66, 640 * 3840)
    srd(g, SRD_W1, 72, 640 * 3072)

def srds_rest(g):
    srd(g, SRD_WS, 82, WS_USED)
    srd(g, SRD_GW, 76, 1280)
    srd(g, SRD_W2, 74, 1536 * 1280)
    srd(g, SRD_WO, 68, 640 * 1280)
    srd(g, SRD_OUT, 78, 2048 * 1280)

def swap23(g, dst, src, t1, t2):
    g.I(f"v_and_b32 {t1}, 4, {src}")
    g.I(f"v_and_b32 {t2}, 8, {src}")
    g.I(f"v_and_b32 {dst}, 0x33, {src}")
    g.I(f"v_lshl_or_b32 {dst}, {t1}, 1, {dst}")
    g.I(f"v_lshrrev_b32 {t2}, 1, {t2}")
    g.I(f"v_or_b32 {dst}, {dst}, {t2}")

ROT = dict(shj=0, mulj=1, mulr=3)
def rot_c0(g, dst):
    g.I(f"s_and_b32 {dst}, {sI}, 3")
    g.I(f"s_mul_i32 {dst}, {dst}, {ROT['mulr']}")
    g.I(f"s_lshr_b32 s4, {sI}, {2 + ROT['shj']}")
    g.I(f"s_mul_i32 s4, s4, {ROT['mulj']}")
    g.I(f"s_add_u32 {dst}, {dst}, s4")
    for _ in range(2):
        g.I(f"s_cmp_ge_u32 {dst}, 10")
        g.I("s_cselect_b32 s4, 10, 0")
        g.I(f"s_sub_u32 {dst}, {dst}, s4")

def p1_loader(g, typ):
    g.C(f"==== P1 loader type {typ}")
    g.I(f"s_sub_u32 s52, {sWAVE}, 4")
    g.I("v_lshrrev_b32 v2, 3, v0")
    g.I("v_and_b32 v3, 7, v0")
    g.I("v_lshrrev_b32 v4, 4, v0")
    g.I(f"s_lshl_b32 s53, {sRB}, 2")
    g.I("s_add_u32 s53, s53, s52")
    g.I(f"s_mul_i32 s53, s53, {32*1280}")
    g.I("v_xor_b32 v5, v3, v4")
    g.I("v_lshlrev_b32 v5, 4, v5")
    g.I("v_mul_u32_u24 v6, 1280, v2")
    g.I("v_add_u32 v6, s53, v6")
    XO = [10, 11, 12, 13]
    g.I(f"v_add_u32 v{XO[0]}, v6, v5")
    g.I("v_xor_b32 v5, 64, v5")
    g.I(f"v_add_u32 v{XO[1]}, v6, v5")
    g.I(f"v_add_u32 v{XO[1]}, {8*1280}, v{XO[1]}")
    g.I(f"v_add_u32 v{XO[2]}, {16*1280}, v{XO[0]}")
    g.I(f"v_add_u32 v{XO[3]}, {16*1280}, v{XO[1]}")
    g.I("s_lshl_b32 s54, s52, 10")
    g.I("s_lshl_b32 s55, s52, 12")
    if OPT["rot"]:
        rot_c0(g, "s3")
        g.I("s_lshl_b32 s56, s3, 7")
        g.I(f"s_mul_i32 s57, s3, {64*3840}")
        g.I(f"s_mul_i32 s58, s3, {64*3072}")
    else:
        g.I("s_mov_b32 s56, 0")
        g.I("s_mov_b32 s57, 0")
        g.I("s_mov_b32 s58, 0")
    g.I("s_waitcnt lgkmcnt(0)")
    srd(g, SRD_X, 64, 2048 * 1280)
    def issue_x():
        for j in range(4):
            g.I(f"s_add_u32 m0, s55, {j*1024}")
            g.I(f"buffer_load_dwordx4 v{XO[j]}, {R4(SRD_X)}, s56 offen{' nt' if OPT['ntx'] else ''} lds")
    issue_x()
    srd(g, SRD_QKV, 66, 640 * 3840)
    n10 = 5 if typ == "A" else 3
    QO = [14, 15, 16, 17, 18][:n10]
    g.I(f"s_mul_i32 s59, {sA}, 160")
    if typ == "A":
        g.I("s_add_u32 s59, s59, 1280")
    g.I("s_mov_b32 s60, 6554")
    g.I("s_mov_b32 s61, 3840")
    R10 = 16384
    RH = 36864 if typ == "A" else 28672
    for n in range(n10):
        g.I(f"s_add_u32 s62, s52, {4*n}")
        if typ == "A":
            g.I("s_cmp_ge_u32 s62, 10")
            g.I("s_cselect_b32 s63, 10, 0")
            g.I("s_cselect_b32 s50, 1280, 0")
            g.I("s_sub_u32 s62, s62, s63")
        g.I("s_lshl_b32 s62, s62, 6")
        g.I("v_add_u32 v5, s62, v0")
        g.I("v_mul_lo_u32 v6, v5, s60")
        g.I("v_lshrrev_b32 v6, 16, v6")
        g.I("v_mul_u32_u24 v7, 10, v6")
        g.I("v_sub_u32 v7, v5, v7")
        swap23(g, "v8", "v6", "v9", "v19")
        g.I("v_mul_lo_u32 v8, v8, s61")
        g.I("v_lshl_add_u32 v8, v7, 4, v8")
        if typ == "A":
            g.I("s_add_u32 s50, s50, s59")
            g.I(f"v_add_u32 v{QO[n]}, s50, v8")
        else:
            g.I(f"v_add_u32 v{QO[n]}, s59, v8")
            if n == 2:
                g.I("s_cmp_ge_u32 s52, 2")
                g.I(f"s_cselect_b32 s50, {BIG}, 0")
                g.I(f"v_add_u32 v{QO[n]}, s50, v{QO[n]}")
        g.I(f"s_add_u32 m0, s54, {R10 + 4096*n}")
        g.I(f"buffer_load_dwordx4 v{QO[n]}, {R4(SRD_QKV)}, s57 offen{' nt' if OPT['ntw'] else ''} lds")
    srd(g, SRD_W1, 72, 640 * 3072)
    nH = 2 if typ == "A" else 4
    HO = [20, 21, 22, 23][:nH]
    g.I("v_lshlrev_b32 v5, 1, v4")
    g.I("v_xor_b32 v5, v3, v5")
    g.I("v_lshlrev_b32 v5, 4, v5")
    if typ == "A":
        g.I(f"s_lshl_b32 s59, {sA}, 7")
    else:
        g.I(f"s_lshl_b32 s59, {sA}, 8")
        g.I("s_add_u32 s59, s59, 1024")
    g.I("s_mov_b32 s61, 3072")
    for n in range(2):
        g.I(f"s_add_u32 s62, s52, {4*n}")
        g.I("s_lshl_b32 s62, s62, 3")
        g.I("v_add_u32 v6, s62, v2")
        swap23(g, "v8", "v6", "v9", "v19")
        g.I("v_mul_lo_u32 v8, v8, s61")
        g.I("v_add_u32 v8, v8, v5")
        g.I(f"v_add_u32 v{HO[n]}, s59, v8")
        if nH == 4:
            g.I(f"v_add_u32 v{HO[n+2]}, 128, v{HO[n]}")
    def issue_h():
        for n in range(nH):
            g.I(f"s_add_u32 m0, s54, {RH + 8192*(n//2) + 4096*(n % 2)}")
            g.I(f"buffer_load_dwordx4 v{HO[n]}, {R4(SRD_W1)}, s58 offen{' nt' if OPT['ntw'] else ''} lds")
    def issue_q():
        for n in range(n10):
            g.I(f"s_add_u32 m0, s54, {R10 + 4096*n}")
            g.I(f"buffer_load_dwordx4 v{QO[n]}, {R4(SRD_QKV)}, s57 offen{' nt' if OPT['ntw'] else ''} lds")
    issue_h()
    srds_rest(g)
    def advance():
        g.I("s_add_u32 s56, s56, 128")
        g.I(f"s_add_u32 s57, s57, {64*3840}")
        g.I(f"s_add_u32 s58, s58, {64*3072}")
        if OPT["rot"]:
            g.I("s_cmp_ge_u32 s56, 1280")
            g.I("s_cselect_b32 s56, 0, s56")
            g.I("s_cselect_b32 s57, 0, s57")
            g.I("s_cselect_b32 s58, 0, s58")
        g.I(f"s_add_u32 s54, s54, {STAGE}")
        g.I(f"s_add_u32 s55, s55, {STAGE}")
        g.I(f"s_cmp_ge_u32 s54, {3*STAGE}")
        g.I(f"s_cselect_b32 s62, {3*STAGE}, 0")
        g.I("s_sub_u32 s54, s54, s62")
        g.I("s_sub_u32 s55, s55, s62")
    def issue():
        advance()
        if OPT["xdma"]:
            issue_x(); issue_q(); issue_h()
    extra0 = 0
    if typ == "B":
        lab = g.newlabel("Lgw")
        g.I("s_cmp_lg_u32 s52, 0")
        g.I(f"s_cbranch_scc1 {lab}")
        g.I("v_lshlrev_b32 v5, 4, v0")
        g.I(f"s_mov_b32 m0, {GW_LDS}")
        g.I("v_add_u32 v6, 1024, v5")
        g.I(f"buffer_load_dwordx4 v5, {R4(SRD_GW)}, 0 offen lds")
        g.I(f"s_mov_b32 m0, {GW_LDS + 1024}")
        g.I("s_nop 0")
        g.I(f"buffer_load_dwordx4 v6, {R4(SRD_GW)}, 0 offen lds")
        g.L(lab)
    issue()
    stamp(g, 1)
    g.I("s_waitcnt vmcnt(11)")
    stamp(g, 2)
    g.I("s_barrier")
    issue()
    warmups(g, typ)
    if OPT["prioL"]:
        g.I("s_setprio 2")
    g.I("s_waitcnt vmcnt(13)")
    g.I("s_barrier")
    issue()
    g.I("s_waitcnt vmcnt(13)")
    g.I("s_barrier")
    issue()
    g.I("s_mov_b32 s63, 3")
    loop = g.newlabel("Lld")
    g.L(loop)
    if OPT["prof"]:
        g.I("s_memtime s[4:5]")
        g.I("s_waitcnt lgkmcnt(0)")
    g.I("s_waitcnt vmcnt(11)")
    if OPT["prof"]:
        g.I("s_memtime s[6:7]")
        g.I("s_waitcnt lgkmcnt(0)")
        g.I("s_sub_u32 s4, s6, s4")
        g.I("s_add_u32 s94, s94, s4")
    g.I("s_barrier")
    if OPT["prof"]:
        g.I("s_memtime s[4:5]")
        g.I("s_waitcnt lgkmcnt(0)")
        g.I("s_sub_u32 s6, s4, s6")
        g.I("s_add_u32 s96, s96, s6")
    issue()
    if OPT["prof"]:
        g.I("s_memtime s[6:7]")
        g.I("s_waitcnt lgkmcnt(0)")
        g.I("s_sub_u32 s6, s6, s4")
        g.I("s_add_u32 s98, s98, s6")
    g.I("s_add_u32 s63, s63, 1")
    g.I("s_cmp_le_u32 s63, 7")
    g.I(f"s_cbranch_scc1 {loop}")

def p2_decode(g):
    if OPT["bal"]:
        g.I(f"s_lshr_b32 s56, {sI}, 2")
        g.I("s_lshl_b32 s56, s56, 1")
        g.I(f"s_and_b32 s50, {sI}, 1")
        g.I("s_add_u32 s56, s56, s50")
        lb, le = g.newlabel("Lpd"), g.newlabel("Lpd")
        g.I(f"s_bitcmp1_b32 {sI}, 1")
        g.I(f"s_cbranch_scc1 {lb}")
        g.I("s_sub_u32 s50, s56, 10")
        g.I("s_cmp_lt_u32 s56, 10")
        g.I("s_cselect_b32 s50, s56, s50")
        g.I("s_cselect_b32 s51, 2, 0")
        g.I(f"s_branch {le}")
        g.L(lb)
        g.I("s_add_u32 s50, s56, 6")
        g.I("s_sub_u32 s51, s56, 4")
        g.I("s_cmp_lt_u32 s56, 4")
        g.I("s_cselect_b32 s50, s50, s51")
        g.I("s_cselect_b32 s51, 0, 1")
        g.L(le)
    else:
        g.I(f"s_mul_i32 s50, {sI}, 86")
        g.I("s_lshr_b32 s50, s50, 8")
        g.I("s_mul_i32 s51, s50, 3")
        g.I(f"s_sub_u32 s51, {sI}, s51")
    g.I("s_mul_i32 s52, s51, 5")
    g.I(f"s_lshl_b32 s56, {sXCD}, 4")
    g.I("s_add_u32 s52, s52, s56")
    g.I(f"s_and_b32 s53, {sWAVE}, 3")
    g.I(f"s_lshr_b32 s54, {sWAVE}, 2")
    g.I("s_mul_i32 s55, s54, 3")
    g.I("s_add_u32 s55, s55, s52")

VD2 = 78
def p2_dma_setup(g):
    g.I("v_lshrrev_b32 v5, 3, v0")
    g.I("v_and_b32 v6, 7, v0")
    g.I("v_lshrrev_b32 v2, 4, v0")
    g.I("v_lshlrev_b32 v7, 1, v2")
    g.I("v_xor_b32 v7, v6, v7")
    g.I("v_mul_u32_u24 v8, 1280, v5")
    g.I("s_lshl_b32 s56, s50, 7")
    g.I("v_add_u32 v8, s56, v8")
    g.I(f"v_lshl_add_u32 v{VD2}, v7, 4, v8")
    g.I(f"s_mul_i32 s57, s53, {12*32*1280}")
    g.I(f"s_add_u32 s63, s57, {12*32*1280}")
    if OPT["rot2"]:
        g.I(f"s_mul_i32 s56, s50, {32*1280}")
        g.I("s_add_u32 s57, s57, s56")
    g.I("s_lshl_b32 s58, s53, 12")
    g.I(f"s_mul_i32 s59, s53, {160*1280}")
    g.I("s_mul_i32 s60, s53, 20480")
    g.I(f"s_add_u32 s60, s60, {WO_BASE}")

def dma_w2(g, vm, sidx, slots=(0, 4)):
    for j in range(*slots):
        g.I(f"s_add_u32 m0, s58, {W2R[sidx] + j*1024}")
        g.I(f"s_add_u32 s56, s57, {j * 8 * 1280}")
        vm.issue(f"buffer_load_dwordx4 v{VD2}, {R4(SRD_W2)}, s56 offen{' nt' if OPT['ntw2'] else ''} lds", ("d", sidx))
    g.I(f"s_add_u32 s57, s57, {32*1280}")
    g.I("s_cmp_ge_u32 s57, s63")
    g.I(f"s_cselect_b32 s56, {12*32*1280}, 0")
    g.I("s_sub_u32 s57, s57, s56")

def warm_late(g, vm, skip):
    g.I("v_mul_u32_u24 v9, 1280, v0")
    g.I("s_lshl_b32 s56, s50, 7")
    g.I("v_add_u32 v9, s56, v9")
    g.I("v_cmp_gt_u32 vcc, 32, v0")
    g.I(f"v_mov_b32 v10, {BIG}")
    g.I("v_cndmask_b32 v10, v10, v9, vcc")
    g.I(f"s_add_u32 s6, s57, {skip*32*1280}")
    g.I("s_cmp_ge_u32 s6, s63")
    g.I(f"s_cselect_b32 s56, {12*32*1280}, 0")
    g.I("s_sub_u32 s6, s6, s56")
    for k in range(3):
        vm.issue(f"buffer_load_dword v11, v10, {R4(SRD_W2)}, s6 offen", ("warm", 0))
        g.I(f"s_add_u32 s6, s6, {32*1280}")
        g.I("s_cmp_ge_u32 s6, s63")
        g.I(f"s_cselect_b32 s56, {12*32*1280}, 0")
        g.I("s_sub_u32 s6, s6, s56")
    for k in range(3):
        g.I(f"s_add_u32 s56, s59, {k*64*1280}")
        vm.issue(f"buffer_load_dword v11, v9, {R4(SRD_WO)}, s56 offen", ("warm", 0))

def l2warm(g, vm):
    g.I("v_mul_u32_u24 v9, 3, v0")
    g.I("v_add_u32 v9, s51, v9")
    g.I("v_lshrrev_b32 v10, 5, v9")
    g.I("v_and_b32 v11, 31, v9")
    g.I("s_add_u32 s56, s50, 7")
    g.I("v_add_u32 v10, s56, v10")
    g.I("v_subrev_u32 v12, 12, v10")
    g.I("v_cmp_le_u32 vcc, 12, v10")
    g.I("v_cndmask_b32 v10, v10, v12, vcc")
    g.I("v_lshl_add_u32 v10, v10, 5, v11")
    g.I("v_mul_u32_u24 v10, 1280, v10")
    g.I("v_mul_u32_u24 v12, 1280, v9")
    g.I("v_cmp_gt_u32 vcc, 160, v9")
    g.I(f"v_mov_b32 v13, {BIG}")
    g.I("v_cndmask_b32 v10, v13, v10, vcc")
    g.I("v_cndmask_b32 v12, v13, v12, vcc")
    g.I(f"s_mul_i32 s56, s53, {384*1280}")
    g.I("s_lshl_b32 s6, s50, 7")
    g.I("s_add_u32 s56, s56, s6")
    vm.issue(f"buffer_load_dword v14, v10, {R4(SRD_W2)}, s56 offen", ("pf", 0))
    g.I("s_add_u32 s56, s59, s6")
    vm.issue(f"buffer_load_dword v14, v12, {R4(SRD_WO)}, s56 offen", ("pf", 0))

def dma_wo(g, vm, j0, j1):
    for j in range(j0, j1):
        g.I(f"s_add_u32 m0, s60, {j*1024}")
        g.I(f"s_add_u32 s56, s59, {j*8*1280}")
        vm.issue(f"buffer_load_dwordx4 v{VD2}, {R4(SRD_WO)}, s56 offen lds", ("wo", 0))

def poll(g, vaddr, soff_imm, nlanes, tmp="v14"):
    loop = g.newlabel("Lpoll"); done = g.newlabel("Lpd")
    g.I("s_mov_b32 s4, 0")
    g.I(f"s_mov_b32 s5, {soff_imm}")
    mask = (1 << nlanes) - 1
    g.I(f"s_mov_b32 s7, {mask:#x}")
    g.L(loop)
    g.I(f"buffer_load_dword {tmp}, {vaddr}, {R4(SRD_WS)}, s5 offen{SC}")
    g.I("s_waitcnt vmcnt(0)")
    g.I(f"v_cmp_eq_u32 vcc, {sNONCE}, {tmp}")
    g.I("s_and_b32 s6, vcc_lo, s7")
    g.I("s_cmp_eq_u32 s6, s7")
    g.I(f"s_cbranch_scc1 {done}")
    g.I("s_add_u32 s4, s4, 1")
    g.I(f"s_cmp_lt_u32 s4, {SPIN_MAX}")
    if not OPT["nosleep"]:
        g.I("s_sleep 1")
    g.I(f"s_cbranch_scc1 {loop}")
    g.L(done)

ACC = 128
def acc(t, rt): return ACC + (2 * t + rt) * 4
KVA = 68

def warmups(g, typ):
    l1, l2, l3, le = [g.newlabel("Lwu") for _ in range(4)]
    g.I(f"v_mov_b32 v25, {BIG}")
    g.I("s_cmp_eq_u32 s52, 1"); g.I(f"s_cbranch_scc1 {l1}")
    g.I("s_cmp_eq_u32 s52, 2"); g.I(f"s_cbranch_scc1 {l2}")
    g.I("s_cmp_eq_u32 s52, 3"); g.I(f"s_cbranch_scc1 {l3}")
    g.I("s_getpc_b64 s[4:5]")
    g.L("Lpc_" + typ)
    g.I(f"s_sub_u32 s4, s4, Lpc_{typ}-{KNAME}")
    g.I("s_subb_u32 s5, s5, 0")
    g.I("v_and_b32 v26, 15, v0")
    g.I(f"s_lshl_b32 s6, {sI}, 4")
    g.I("v_add_u32 v26, s6, v26")
    g.I("v_lshlrev_b32 v26, 7, v26")
    g.I(f"v_min_u32 v26, Lcode_end-{KNAME}-4, v26")
    if OPT["codepf"]:
        g.I(f"global_load_dword v24, v26, s[4:5]")
    else:
        g.I(f"buffer_load_dword v24, v25, {R4(SRD_WS)}, 0 offen")
    g.I(f"buffer_load_dword v24, v25, {R4(SRD_WS)}, 0 offen")
    g.I(f"s_branch {le}")
    g.L(l1)
    g.I("v_lshlrev_b32 v26, 7, v0")
    g.I("v_cmp_gt_u32 vcc, 60, v0")
    g.I("v_cndmask_b32 v27, v25, v26, vcc")
    if not OPT["mall"]:
        g.I("v_mov_b32 v27, v25")
    g.I(f"s_mul_i32 s6, s2, {60*128}")
    g.I(f"buffer_load_dword v24, v27, {R4(SRD_W2)}, s6 offen")
    g.I("v_cmp_gt_u32 vcc, 25, v0")
    g.I("v_cndmask_b32 v27, v25, v26, vcc")
    if not OPT["mall"]:
        g.I("v_mov_b32 v27, v25")
    g.I(f"s_mul_i32 s6, s2, {25*128}")
    g.I(f"buffer_load_dword v24, v27, {R4(SRD_WO)}, s6 offen")
    g.I(f"s_branch {le}")
    g.L(l2)
    g.I("v_lshlrev_b32 v26, 21, v0")
    g.I(f"v_min_u32 v26, {BIG}, v26")
    if not OPT["tlb"]:
        g.I("v_mov_b32 v26, v25")
    g.I(f"buffer_load_dword v24, v26, {R4(SRD_WS)}, 0 offen")
    g.I(f"buffer_load_dword v24, v26, {R4(SRD_OUT)}, 0 offen")
    g.I(f"s_branch {le}")
    g.L(l3)
    g.I(f"buffer_load_dword v24, v25, {R4(SRD_WS)}, 0 offen")
    g.I(f"buffer_load_dword v24, v25, {R4(SRD_WS)}, 0 offen")
    g.L(le)

def p1_compute(g, typ):
    g.C(f"==== P1 compute type {typ}")
    g.I("s_waitcnt lgkmcnt(0)")
    srds_p1(g)
    srds_rest(g)
    lab = g.newlabel("Lnn")
    g.I(f"s_or_b32 s50, s2, {sWAVE}")
    g.I("s_cmp_lg_u32 s50, 0")
    g.I(f"s_cbranch_scc1 {lab}")
    g.I("s_memrealtime s[50:51]")
    g.I("s_waitcnt lgkmcnt(0)")
    g.I("s_or_b32 s50, s50, 1")
    g.I("v_mov_b32 v5, s50")
    g.I("v_mov_b32 v6, 0")
    g.I(f"global_store_dword v6, v5, s[80:81]{SC}")
    g.L(lab)
    g.I("v_mov_b32 v66, 0")
    g.I("v_mov_b32 v65, 0")
    g.I(f"v_mov_b32 v5, {CNT_LDS}")
    g.I("ds_write_b32 v5, v66")
    g.I("ds_write_b32 v5, v66 offset:4")
    g.I("ds_write_b32 v5, v66 offset:8")
    g.I("v_and_b32 v1, 15, v0")
    g.I("v_lshrrev_b32 v2, 4, v0")
    g.I("v_bfe_u32 v3, v0, 2, 2")
    g.I("v_and_b32 v4, 3, v0")
    g.I("v_lshrrev_b32 v5, 1, v1")
    g.I("v_xor_b32 v5, v2, v5")
    g.I("v_lshlrev_b32 v5, 4, v5")
    g.I("v_lshl_add_u32 v5, v1, 7, v5")
    g.I(f"s_lshl_b32 s50, {sWAVE}, 12")
    g.I("v_add_u32 v48, s50, v5")
    g.I("v_xor_b32 v49, 64, v48")
    g.I("v_lshrrev_b32 v5, 1, v2")
    g.I("v_lshlrev_b32 v5, 4, v5")
    g.I("v_and_b32 v6, 1, v2")
    g.I("v_lshl_add_u32 v5, v6, 2, v5")
    g.I("v_add_u32 v5, v5, v3")
    g.I("v_mul_u32_u24 v50, 160, v5")
    g.I("v_lshl_add_u32 v50, v4, 3, v50")
    g.I("v_lshrrev_b32 v7, 1, v3")
    g.I("v_lshlrev_b32 v7, 1, v7")
    g.I("v_lshl_add_u32 v7, v6, 2, v7")
    g.I("v_lshrrev_b32 v8, 1, v4")
    g.I("v_and_b32 v9, 1, v4")
    g.I("v_lshlrev_b32 v9, 3, v9")
    g.I("v_lshl_add_u32 v9, v5, 7, v9")
    for t in range(4):
        g.I(f"v_add_u32 v10, {2*t}, v8")
        g.I("v_xor_b32 v10, v10, v7")
        g.I(f"v_lshl_add_u32 v{51+t}, v10, 4, v9")
    for k in range(7):
        g.I(f"v_mov_b32 v{56+k}, v{48+k}")
    if typ == "A":
        tiles = [("kv", t, "N") for t in range(5)] + [("kv", 5 + t, "N") for t in range(5)] + [("h", t, "T") for t in range(4)]
    else:
        tiles = [("kv", t, "T") for t in range(5)] + [("h", t, "T") for t in range(8)] + [("g", 0, "T")]
        g.I("v_lshlrev_b32 v63, 4, v2")
        g.I(f"v_add_u32 v63, {GW_LDS}, v63")
        if OPT["rot"]:
            rot_c0(g, "s3")
            g.I("s_lshl_b32 s5, s3, 7")
            g.I("v_add_u32 v63, s5, v63")
            g.I("s_mov_b32 s55, s3")
    g.I(f"s_mov_b32 s50, {EPS6}")
    for t in range(14):
        for rt in range(2):
            for i in range(4):
                g.I(f"v_mov_b32 v{acc(t,rt)+i}, " + ("s50" if t < 5 else "0"))
    if typ == "A":
        g.I(f"s_mul_i32 s50, {sWAVE}, {KS_W}")
        g.I(f"s_add_u32 s50, s50, {KS_LDS}")
        g.I(f"v_mov_b32 v15, {KS_LDS + 4*KS_W}")
        for t in range(5):
            g.I(f"v_lshl_add_u32 v5, v2, 2, {16*t}")
            g.I("v_mul_u32_u24 v6, 205, v5")
            g.I(f"v_lshrrev_b32 v{16+t}, 12, v6")
            g.I(f"v_mul_u32_u24 v6, 20, v{16+t}")
            g.I("v_sub_u32 v6, v5, v6")
            g.I(f"v_mul_u32_u24 v7, {105*16}, v{16+t}")
            g.I("v_lshl_add_u32 v7, v6, 2, v7")
            g.I(f"v_add_u32 v{21+t}, s50, v7")
            g.I(f"v_add_u32 v5, {16*t}, v1")
            g.I("v_mul_u32_u24 v6, 205, v5")
            g.I(f"v_lshrrev_b32 v{26+t}, 12, v6")
            g.I(f"v_mul_u32_u24 v6, 20, v{26+t}")
            g.I("v_sub_u32 v6, v5, v6")
            g.I(f"v_mul_u32_u24 v{31+t}, 80, v6")
        for t in range(5):
            for tp in range(5):
                if abs(t - tp) <= 1:
                    idx = 2 * t + tp
                    g.I(f"v_add_u32 v5, v{21+t}, v{31+tp}")
                    g.I(f"v_cmp_eq_u32 vcc, v{16+t}, v{26+tp}")
                    g.I(f"v_cndmask_b32 v{KVA+idx}, v15, v5, vcc")
        g.I("v_cmp_eq_u32 vcc, 0, v1")
        for t in range(5):
            g.I(f"v_add_u32 v5, {20*80}, v{21+t}")
            g.I(f"v_cndmask_b32 v{KVA+13+t}, v15, v5, vcc")
    XF = lambda ks, rt: 16 + (2 * ks + rt) * 4
    WF = lambda n: 86 + (n % 7) * 4
    R10 = 16384
    RH = 36864 if typ == "A" else 28672
    lk = LgkmTracker(g)
    NS = 2 * len(tiles)
    steps = [(ks, ti) for ks in range(2) for ti in range(len(tiles))]
    def rd_x(ks):
        if not OPT["xlds"]: return
        for rt in range(2):
            lk.issue(f"ds_read_b128 {vr(XF(ks,rt))}, v{56+ks} offset:{rt*2048}", ("x", ks))
    def rd_w(n, half):
        if not OPT["xlds"]: return
        ks, ti = steps[n % NS]
        kind, t, _ = tiles[ti]
        w = WF(n)
        tag = ("w", n % NS)
        if kind == "kv":
            off = R10 + ks * 5120 + half * 1280 + 32 * (t % 5) + (10240 if t >= 5 else 0)
            lk.issue(f"ds_read_b64_tr_b16 {vr(w + 2*half, 2)}, v58 offset:{off}", tag)
        elif kind == "h":
            off = RH + (t // 4) * 8192 + ks * 4096 + half * 1024
            lk.issue(f"ds_read_b64_tr_b16 {vr(w + 2*half, 2)}, v{59 + (t % 4)} offset:{off}", tag)
        else:
            if half == 0:
                lk.issue(f"ds_read_b128 {vr(w)}, v63 offset:{ks*64}", tag)
    D = 6
    assert NS % 7 == 0
    g.I("s_mov_b32 s50, 0")
    g.I("s_mov_b32 s51, 0")
    if OPT["prio"]:
        g.I("s_setprio 2")
    g.I("s_barrier")
    stamp(g, 1, force=True)
    clkstamp(g, 0)
    rd_x(0)
    for n in range(D):
        rd_w(n, 0); rd_w(n, 1)
    loop = g.newlabel("Lp1"); last = g.newlabel("Lp1last")
    def mf(n, rt):
        ks, ti = steps[n]
        kind, t, ori = tiles[ti]
        a = acc(ti, rt)
        if not OPT["xmfma"]:
            return
        if ori == "N":
            g.I(f"v_mfma_f32_16x16x32_bf16 {vr(a)}, {vr(XF(ks,rt))}, {vr(WF(n))}, {vr(a)}")
        else:
            g.I(f"v_mfma_f32_16x16x32_bf16 {vr(a)}, {vr(WF(n))}, {vr(XF(ks,rt))}, {vr(a)}")
    g.L(loop)
    q_at_loop = list(lk.q)
    NB = NS - D
    BAR = NB + 2
    bwork = []
    bwork.append([f"s_add_u32 s51, s51, {STAGE}", f"s_cmp_ge_u32 s51, {3*STAGE}", f"s_cselect_b32 s52, {3*STAGE}, 0", "s_sub_u32 s51, s51, s52"])
    for k in range(7):
        bwork.append([f"v_add_u32 v{56+k}, s51, v{48+k}"])
    if typ == "B":
        bwork.append(["v_add_u32 v63, 128, v63"])
        if OPT["rot"]:
            bwork.append(["s_add_u32 s55, s55, 1", "s_cmp_eq_u32 s55, 10", "s_cselect_b32 s52, 1280, 0", "s_cselect_b32 s55, 0, s55", "v_subrev_u32 v63, s52, v63"])
    pend = []
    for n in range(NS):
        ks, ti = steps[n]
        if n == NB:
            g.I("s_add_u32 s50, s50, 1")
            g.I("s_cmp_eq_u32 s50, 10")
            g.I(f"s_cbranch_scc1 {last}")
        if n == BAR:
            in_loop_extras(g)
            lk.drain()
            if OPT["prof3"]:
                for slot, cval in ((2, 1), (3, 2), (4, 3), (5, 4), (6, 6), (7, 9)):
                    lb = g.newlabel("Lp3")
                    g.I(f"s_cmp_lg_u32 s50, {cval}")
                    g.I(f"s_cbranch_scc1 {lb}")
                    stamp(g, slot, force=True)
                    g.L(lb)
            if OPT["prof"]:
                g.I("s_memtime s[4:5]")
                g.I("s_waitcnt lgkmcnt(0)")
            g.I("s_barrier")
            if OPT["prof"]:
                g.I("s_memtime s[6:7]")
                g.I("s_waitcnt lgkmcnt(0)")
                g.I("s_sub_u32 s6, s6, s4")
                g.I("s_add_u32 s94, s94, s6")
            rd_x(0)
            pend = [(m, h) for m in range(NS, NS + D) for h in range(2)]
        if ti == 0:
            lk.wait(("x", ks))
        if n < BAR:
            lk.wait(("w", n))
        for rt in range(2):
            mf(n, rt)
            if n < NB:
                rd_w(n + D, rt)
            elif n < BAR:
                for _ in range(3):
                    if bwork:
                        for x in bwork.pop(0):
                            g.I(x)
            else:
                cnt = 2 if (n - BAR) < 2 else 1
                for _ in range(cnt):
                    if pend:
                        m, h = pend[0]
                        if (m - 7) < n or ((m - 7) == n and rt == 1 and False):
                            pend.pop(0); rd_w(m, h)
        if n == 6:
            rd_x(1)
    assert not bwork
    for m, h in pend:
        rd_w(m, h)
    assert lk.q == q_at_loop, (lk.q, q_at_loop)
    g.I(f"s_branch {loop}")
    g.L(last)
    g.I("s_waitcnt lgkmcnt(0)")
    for n in range(NB, NS):
        for rt in range(2):
            mf(n, rt)
    stamp(g, 2)
    clkstamp(g, 2)
    if OPT["prio"]:
        g.I("s_setprio 0")

def in_loop_extras(g):
    l1 = g.newlabel("Lx")
    g.I(f"s_lshl_b32 s53, {sWAVE}, 4")
    g.I("s_add_u32 s53, s53, s50")
    g.I("s_cmp_lg_u32 s53, 6")
    g.I(f"s_cbranch_scc1 {l1}")
    g.I("v_mov_b32 v66, 0")
    g.I(f"global_load_dword v65, v66, s[80:81]{SC}")
    g.L(l1)

def phi(g, reg, tmp):
    g.I(f"v_mul_f32 {tmp}, s51, {reg}")
    g.I(f"v_exp_f32_e64 {tmp}, {tmp} clamp")
    g.I(f"v_max_f32 {reg}, s50, {reg}")
    g.I(f"v_add_f32 {reg}, {reg}, {tmp}")

def store_h(g, tiles_idx, kb0_s):
    g.I(f"s_lshl_b32 s53, {sRB}, 3")
    g.I(f"s_lshl_b32 s54, {sWAVE}, 1")
    g.I("s_add_u32 s53, s53, s54")
    g.I("s_mul_i32 s53, s53, 48")
    g.I(f"s_add_u32 s53, s53, {kb0_s}")
    g.I("s_lshl_b32 s53, s53, 10")
    g.I("v_lshlrev_b32 v1, 4, v0")
    for kbl in range(len(tiles_idx) // 2):
        for rt in range(2):
            a0 = acc(tiles_idx[2*kbl], rt); a1 = acc(tiles_idx[2*kbl+1], rt)
            d = 16 + ((kbl * 2 + rt) % 4) * 4
            g.I(f"v_cvt_pk_bf16_f32 v{d}, v{a0}, v{a0+1}")
            g.I(f"v_cvt_pk_bf16_f32 v{d+1}, v{a0+2}, v{a0+3}")
            g.I(f"v_cvt_pk_bf16_f32 v{d+2}, v{a1}, v{a1+1}")
            g.I(f"v_cvt_pk_bf16_f32 v{d+3}, v{a1+2}, v{a1+3}")
            for j in range(4):
                g.I(f"v_pk_max_i16 v{d+j}, v{d+j}, 0")
            g.I(f"s_add_u32 s54, s53, {H_OFF + rt*48*1024 + kbl*1024}")
            g.I(f"buffer_store_dwordx4 {vr(d)}, v1, {R4(SRD_WS)}, s54 offen{SC}")

def nonce_to_lds(g):
    lab = g.newlabel("Lnz"); loop = g.newlabel("Lnzl"); ok = g.newlabel("Lnzok")
    g.I(f"s_cmp_lg_u32 {sWAVE}, 0")
    g.I(f"s_cbranch_scc1 {lab}")
    g.I("s_mov_b32 s52, 0")
    g.I("s_waitcnt vmcnt(0)")
    g.L(loop)
    g.I(f"v_readfirstlane_b32 {sNONCE}, v65")
    g.I(f"s_cmp_lg_u32 {sNONCE}, 0")
    g.I(f"s_cbranch_scc1 {ok}")
    g.I(f"global_load_dword v65, v66, s[80:81]{SC}")
    g.I("s_add_u32 s52, s52, 1")
    g.I(f"s_cmp_lt_u32 s52, {SPIN_MAX}")
    g.I("s_waitcnt vmcnt(0)")
    g.I(f"s_cbranch_scc1 {loop}")
    g.L(ok)
    g.I(f"v_mov_b32 v66, {NONCE_LDS}")
    g.I("ds_write_b32 v66, v65")
    g.L(lab)

def p1_epilogue_A(g):
    g.C("==== P1 epilogue A")
    g.I(f"s_mov_b32 s50, {EPS6}")
    g.I(f"s_mov_b32 s51, {LOG2E}")
    g.I(f"s_lshl_b32 s52, {sA}, 1")
    store_h(g, [10, 11, 12, 13], "s52")
    KF = lambda t: 86 + 4 * t
    VF = lambda t: 106 + 4 * t
    for t in range(5):
        for rt in range(2):
            a = acc(5 + t, rt)
            g.I(f"v_cvt_pk_bf16_f32 v{VF(t)+2*rt}, v{a}, v{a+1}")
            g.I(f"v_cvt_pk_bf16_f32 v{VF(t)+2*rt+1}, v{a+2}, v{a+3}")
    for j in range(4):
        g.I(f"v_mov_b32 v{32+j}, 0x3f803f80")
    for t in range(5):
        for rt in range(2):
            for i in range(4):
                phi(g, f"v{acc(t,rt)+i}", f"v{2 + i}")
        for rt in range(2):
            a = acc(t, rt)
            g.I(f"v_cvt_pk_bf16_f32 v{KF(t)+2*rt}, v{a}, v{a+1}")
            g.I(f"v_cvt_pk_bf16_f32 v{KF(t)+2*rt+1}, v{a+2}, v{a+3}")
    P = lambda idx: 168 + 4 * idx
    for t in range(5):
        for tp in range(5):
            if abs(t - tp) <= 1:
                g.I(f"v_mfma_f32_16x16x32_bf16 {vr(P(2*t+tp))}, {vr(KF(t))}, {vr(VF(tp))}, 0")
    for t in range(5):
        g.I(f"v_mfma_f32_16x16x32_bf16 {vr(P(13+t))}, {vr(KF(t))}, v[32:35], 0")
    nonce_to_lds(g)
    for idx in range(18):
        g.I(f"ds_write_b128 v{KVA+idx}, {vr(P(idx))}")
    g.I("s_waitcnt vmcnt(0) lgkmcnt(0)")
    g.I("s_barrier")
    publish_flag(g, "H")
    g.I(f"s_lshl_b32 s52, {sWAVE}, 6")
    g.I("v_add_u32 v5, s52, v0")
    g.I("v_lshlrev_b32 v5, 4, v5")
    g.I(f"v_add_u32 v6, {KS_LDS}, v5")
    g.I(f"v_add_u32 v7, 4096, v5")
    g.I(f"v_cmp_gt_u32 vcc, {420*16}, v7")
    g.I(f"v_mov_b32 v8, {BIG}")
    g.I("v_cndmask_b32 v7, v8, v7, vcc")
    g.I(f"v_add_u32 v9, 4096, v6")
    g.I("v_cndmask_b32 v9, v6, v9, vcc")
    for rnd in range(2):
        for w in range(4):
            g.I(f"ds_read_b128 {vr(16 + 16*rnd + 4*w)}, v{6 if rnd == 0 else 9} offset:{w*KS_W}")
    g.I(f"s_lshl_b32 s52, {sA}, 4")
    g.I(f"s_add_u32 s52, s52, {sRB}")
    g.I(f"s_mul_i32 s52, s52, {KVP_STRIDE}")
    g.I(f"s_add_u32 s52, s52, {KVP_OFF}")
    g.I("s_waitcnt lgkmcnt(0)")
    for rnd in range(2):
        b = 16 + 16 * rnd
        for j in range(4):
            g.I(f"v_add_f32 v{b+j}, v{b+j}, v{b+4+j}")
            g.I(f"v_add_f32 v{b+8+j}, v{b+8+j}, v{b+12+j}")
        for j in range(4):
            g.I(f"v_add_f32 v{b+j}, v{b+j}, v{b+8+j}")
        g.I(f"buffer_store_dwordx4 {vr(b)}, v{5 if rnd == 0 else 7}, {R4(SRD_WS)}, s52 offen{SC}")
    stamp(g, 3)

PQK = lambda t, rt: 176 + 10 * rt + 2 * t
GATE = lambda rt: 196 + rt
def p1_epilogue_B(g):
    g.C("==== P1 epilogue B")
    g.I(f"s_mov_b32 s50, {EPS6}")
    g.I(f"s_mov_b32 s51, {LOG2E}")
    g.I(f"s_lshl_b32 s52, {sA}, 2")
    g.I("s_add_u32 s52, s52, 16")
    store_h(g, list(range(5, 13)), "s52")
    for rt in range(2):
        a = acc(13, rt)
        g.I(f"v_mul_f32 v2, s51, v{a}")
        g.I("v_exp_f32_e64 v2, -v2")
        g.I("v_add_f32 v2, 1.0, v2")
        g.I(f"v_rcp_f32 v{GATE(rt)}, v2")
    skip = g.newlabel("Lng")
    g.I(f"s_cmp_lg_u32 {sA}, 0")
    g.I(f"s_cbranch_scc1 {skip}")
    g.I("v_and_b32 v1, 15, v0")
    g.I("v_lshlrev_b32 v1, 2, v1")
    g.I("v_cmp_gt_u32 vcc, 16, v0")
    g.I(f"v_mov_b32 v6, {BIG}")
    g.I("v_cndmask_b32 v1, v6, v1, vcc")
    g.I(f"s_lshl_b32 s52, {sRB}, 7")
    g.I(f"s_lshl_b32 s53, {sWAVE}, 5")
    g.I("s_add_u32 s52, s52, s53")
    g.I("s_lshl_b32 s52, s52, 2")
    g.I(f"s_add_u32 s52, s52, {G_OFF}")
    for rt in range(2):
        g.I(f"s_add_u32 s53, s52, {rt*64}")
        g.I(f"buffer_store_dword v{GATE(rt)}, v1, {R4(SRD_WS)}, s53 offen{SC}")
    g.L(skip)
    for t in range(5):
        for rt in range(2):
            a = acc(t, rt)
            for i in range(4):
                phi(g, f"v{a+i}", f"v{2 + i}")
            d = PQK(t, rt)
            g.I(f"v_cvt_pk_bf16_f32 v{d}, v{a}, v{a+1}")
            g.I(f"v_cvt_pk_bf16_f32 v{d+1}, v{a+2}, v{a+3}")
    nonce_to_lds(g)
    g.I("s_waitcnt vmcnt(0) lgkmcnt(0)")
    g.I("s_barrier")
    publish_flag(g, "H")
    stamp(g, 3)

OKV = lambda hl, T: ([152, 160, 168, 28][hl]) + 4 * T
def ojob_flagaddr(g):
    g.I("v_lshlrev_b32 v12, 2, v0")
    g.I(f"s_lshl_b32 s56, {sA}, 3")
    g.I("v_add_u32 v12, s56, v12")
    g.I("v_cmp_gt_u32 vcc, 2, v0")
    g.I(f"v_mov_b32 v13, {BIG}")
    g.I("v_cndmask_b32 v12, v13, v12, vcc")

def ojob_flagload(g):
    ojob_flagaddr(g)
    g.I(f"s_mov_b32 s5, {FF_OFF}")
    g.I(f"buffer_load_dword v9, v12, {R4(SRD_WS)}, s5 offen{SC}")

def ojob_loads(g, checked=False):
    if checked:
        ok = g.newlabel("Lfo")
        g.I(f"v_cmp_eq_u32 vcc, {sNONCE}, v9")
        g.I("s_and_b32 s6, vcc_lo, 3")
        g.I("s_cmp_eq_u32 s6, 3")
        g.I(f"s_cbranch_scc1 {ok}")
    ojob_flagaddr(g)
    poll(g, "v12", FF_OFF, 2)
    if checked:
        g.L(ok)
    g.I("v_lshlrev_b32 v12, 4, v0")
    g.I("v_and_b32 v13, 15, v0")
    g.I("v_lshrrev_b32 v14, 2, v13")
    g.I("v_lshlrev_b32 v14, 1, v14")
    g.I("v_and_b32 v8, 1, v13")
    g.I("v_add_u32 v14, v14, v8")
    g.I("v_lshlrev_b32 v14, 4, v14")
    g.I("v_lshrrev_b32 v8, 4, v0")
    g.I("v_lshl_add_u32 v14, v8, 7, v14")
    g.I("v_add_u32 v14, 1024, v14")
    g.I("v_and_b32 v8, 2, v13")
    g.I("v_cmp_eq_u32 vcc, 0, v8")
    g.I(f"v_mov_b32 v8, {BIG}")
    g.I("v_cndmask_b32 v14, v8, v14, vcc")
    g.I(f"s_mul_i32 s6, {sA}, {4*KVF_STRIDE}")
    for hl in range(4):
        g.I(f"s_add_u32 s56, s6, {KVF_OFF + hl*KVF_STRIDE}")
        g.I(f"buffer_load_dwordx4 {vr(OKV(hl,0))}, v12, {R4(SRD_WS)}, s56 offen{SC}")
        g.I(f"buffer_load_dwordx4 {vr(OKV(hl,1))}, v14, {R4(SRD_WS)}, s56 offen{SC}")

def ojob_compute(g):
    g.I(f"s_mov_b32 s4, {EPS6}")
    g.I(f"s_lshl_b32 s5, {sRB}, 3")
    g.I(f"s_lshl_b32 s6, {sWAVE}, 1")
    g.I("s_add_u32 s5, s5, s6")
    g.I("s_mul_i32 s5, s5, 24")
    g.I(f"s_mul_i32 s6, {sA}, 3")
    g.I("s_add_u32 s5, s5, s6")
    g.I("s_lshl_b32 s5, s5, 10")
    g.I(f"s_add_u32 s5, s5, {O_OFF}")
    g.I("v_lshlrev_b32 v14, 4, v0")
    for rt in range(2):
        for hl in range(4):
            t0 = (5 * hl) >> 2
            B = PQK(t0, rt)
            g.I(f"v_mfma_f32_16x16x32_bf16 v[36:39], {vr(OKV(hl,0))}, {vr(B)}, 0")
            g.I(f"v_mfma_f32_16x16x32_bf16 v[40:43], {vr(OKV(hl,1))}, {vr(B)}, 0")
            g.I("v_add_f32 v12, s4, v41")
            g.I("v_rcp_f32 v12, v12")
            g.I(f"v_mul_f32 v12, v12, v{GATE(rt)}")
            for j in range(5):
                idx = 5 * hl + j
                src = 36 + j if j < 4 else 40
                g.I(f"v_mul_f32 v{44 + idx % 8}, v12, v{src}")
                if idx % 4 == 3:
                    u = idx // 4
                    o = 8 + 2 * (u % 2)
                    b = 44 + (4 * u) % 8
                    g.I(f"v_cvt_pk_bf16_f32 v{o}, v{b}, v{b+1}")
                    g.I(f"v_cvt_pk_bf16_f32 v{o+1}, v{b+2}, v{b+3}")
                    if u == 4:
                        g.I("v_mov_b32 v10, 0")
                        g.I("v_mov_b32 v11, 0")
                    if u % 2 == 1 or u == 4:
                        g.I(f"s_add_u32 s56, s5, {rt*24*1024 + (u//2)*1024}")
                        g.I(f"buffer_store_dwordx4 v[8:11], v14, {R4(SRD_WS)}, s56 offen{SC}")

def ojob_publish(g):
    lb = g.newlabel("Lop")
    g.I(f"v_mov_b32 v12, {CNT_LDS}")
    g.I("v_mov_b32 v13, 1")
    g.I("v_cmp_eq_u32 vcc, 0, v0")
    g.I("s_and_saveexec_b64 s[4:5], vcc")
    g.I("ds_add_rtn_u32 v13, v12, v13")
    g.I("s_waitcnt lgkmcnt(0)")
    g.I("s_mov_b64 exec, s[4:5]")
    g.I("v_readfirstlane_b32 s6, v13")
    g.I("s_cmp_lg_u32 s6, 3")
    g.I(f"s_cbranch_scc1 {lb}")
    publish_flag(g, "Q", "s4", "s5", 12, anywave=True)
    g.L(lb)

def flag_lane0(g, b=5):
    g.I(f"v_mov_b32 v{b}, {sNONCE}")
    g.I(f"v_mov_b32 v{b+1}, 0")
    g.I("v_cmp_eq_u32 vcc, 0, v0")
    g.I(f"v_mov_b32 v{b+2}, {BIG}")
    g.I(f"v_cndmask_b32 v{b+1}, v{b+2}, v{b+1}, vcc")

def lds_sig(g, addr):
    g.I(f"v_mov_b32 v12, {addr}")
    g.I("v_mov_b32 v13, 1")
    g.I("v_cmp_eq_u32 vcc, 0, v0")
    g.I("s_and_saveexec_b64 s[4:5], vcc")
    g.I("ds_add_u32 v12, v13")
    g.I("s_mov_b64 exec, s[4:5]")

def lds_wait(g, addr, n):
    loop = g.newlabel("Llw"); done = g.newlabel("Llwd")
    g.I(f"v_mov_b32 v12, {addr}")
    g.I("s_mov_b32 s4, 0")
    g.L(loop)
    g.I("ds_read_b32 v13, v12")
    g.I("s_waitcnt lgkmcnt(0)")
    g.I("v_readfirstlane_b32 s5, v13")
    g.I(f"s_cmp_ge_u32 s5, {n}")
    g.I(f"s_cbranch_scc1 {done}")
    g.I("s_add_u32 s4, s4, 1")
    g.I(f"s_cmp_lt_u32 s4, {SPIN_MAX*4}")
    g.I(f"s_cbranch_scc1 {loop}")
    g.L(done)

def pub_p2(g):
    def f():
        lb = g.newlabel("Lpub")
        g.I(f"s_bitcmp1_b32 {sI}, 1")
        g.I(f"s_cbranch_scc1 {lb}")
        g.I(f"v_mov_b32 v12, {CNT_LDS}")
        g.I("v_mov_b32 v13, 1")
        g.I("v_cmp_eq_u32 vcc, 0, v0")
        g.I("s_and_saveexec_b64 s[4:5], vcc")
        g.I("ds_add_rtn_u32 v13, v12, v13")
        g.I("s_waitcnt lgkmcnt(0)")
        g.I("s_mov_b64 exec, s[4:5]")
        g.I("v_readfirstlane_b32 s6, v13")
        g.I("s_cmp_lg_u32 s6, 3")
        g.I(f"s_cbranch_scc1 {lb}")
        publish_flag(g, "K", "s4", "s5", 12, anywave=True)
        g.L(lb)
    return f

def publish_flag(g, kind, t0="s52", t1="s53", b=5, anywave=False):
    lab = g.newlabel("Lfl")
    if not anywave:
        g.I(f"s_cmp_lg_u32 {sWAVE}, 0")
        g.I(f"s_cbranch_scc1 {lab}")
    flag_lane0(g, b)
    if kind == "H":
        g.I(f"s_lshr_b32 {t0}, {sXCD}, 1")
        g.I(f"s_lshl_b32 {t0}, {t0}, 2")
        g.I(f"s_and_b32 {t1}, {sI}, 3")
        g.I(f"s_add_u32 {t0}, {t0}, {t1}")
        g.I(f"s_lshl_b32 {t0}, {t0}, 2")
        g.I(f"s_lshl_b32 {t1}, {sRB}, 8")
        g.I(f"s_add_u32 {t0}, {t0}, {t1}")
        g.I(f"s_add_u32 {t0}, {t0}, {HF_OFF}")
    elif kind == "K":
        g.I(f"s_lshl_b32 {t0}, {sA}, 8")
        g.I(f"s_lshl_b32 {t1}, {sRB}, 2")
        g.I(f"s_add_u32 {t0}, {t0}, {t1}")
        g.I(f"s_add_u32 {t0}, {t0}, {KF_OFF}")
    else:
        g.I(f"s_lshl_b32 {t0}, {sRB}, 8")
        g.I(f"s_lshl_b32 {t1}, {sA}, 2")
        g.I(f"s_add_u32 {t0}, {t0}, {t1}")
        g.I(f"s_add_u32 {t0}, {t0}, {QF_OFF}")
    g.I(f"buffer_store_dword v{b}, v{b+1}, {R4(SRD_WS)}, {t0} offen{SC}")
    g.L(lab)

def read_nonce(g):
    g.I(f"v_mov_b32 v5, {NONCE_LDS}")
    g.I("ds_read_b32 v5, v5")
    g.I("s_waitcnt lgkmcnt(0)")
    g.I(f"v_readfirstlane_b32 {sNONCE}, v5")

def reducer(g):
    g.C("==== kv reducer")
    g.I(f"s_lshl_b32 s50, {sXCD}, 1")
    g.I(f"s_add_u32 s50, s50, {sI}")
    g.I("s_sub_u32 s50, s50, 30")
    g.I(f"s_lshl_b32 s51, {sWAVE}, 6")
    g.I("v_add_u32 v1, s51, v0")
    g.I("v_cmp_le_u32 vcc, 192, v1")
    g.I("v_cndmask_b32 v2, 0, 1, vcc")
    g.I("v_mul_u32_u24 v3, 192, v2")
    g.I("v_sub_u32 v3, v1, v3")
    g.I("v_cmp_le_u32 vcc, 128, v3")
    g.I("v_cndmask_b32 v4, 0, 1, vcc")
    g.I("v_lshrrev_b32 v6, 5, v3")
    g.I("v_subrev_u32 v5, 128, v3")
    g.I("v_lshrrev_b32 v7, 4, v5")
    g.I("v_cndmask_b32 v6, v6, v7, vcc")
    g.I("v_bfe_u32 v7, v3, 1, 4")
    g.I("v_lshrrev_b32 v10, 2, v7")
    g.I("v_mul_u32_u24 v10, 5, v10")
    g.I("v_and_b32 v11, 3, v7")
    g.I("v_add_u32 v12, v10, v11")
    g.I("v_bfe_u32 v7, v5, 1, 3")
    g.I("v_lshrrev_b32 v10, 1, v7")
    g.I("v_mul_u32_u24 v10, 5, v10")
    g.I("v_add_u32 v13, 4, v10")
    g.I("v_and_b32 v11, 1, v7")
    g.I("v_cmp_eq_u32 s[4:5], 1, v11")
    g.I("v_cndmask_b32 v13, v13, 20, s[4:5]")
    g.I("v_cndmask_b32 v12, v12, v13, vcc")
    g.I("v_and_b32 v8, 1, v3")
    g.I("s_and_b32 s51, s50, 1")
    g.I("s_lshl_b32 s51, s51, 1")
    g.I("v_add_u32 v16, s51, v2")
    g.I("v_mul_u32_u24 v15, 5, v16")
    g.I("v_lshrrev_b32 v9, 2, v15")
    g.I("v_add_u32 v9, v9, v8")
    g.I("v_lshl_add_u32 v9, v9, 2, v6")
    g.I("v_sub_u32 v9, v9, v15")
    g.I("v_mul_u32_u24 v16, 105, v16")
    g.I("v_mul_u32_u24 v15, 5, v12")
    g.I("v_add3_u32 v16, v16, v15, v9")
    g.I("v_lshlrev_b32 v16, 4, v16")
    g.I(f"v_mov_b32 v18, {BIG}")
    g.I("v_cmp_gt_u32 vcc, 5, v9")
    g.I("v_cndmask_b32 v16, v18, v16, vcc")
    g.I("v_cmp_gt_u32 vcc, 384, v1")
    g.I("v_cndmask_b32 v16, v18, v16, vcc")
    g.I("v_lshlrev_b32 v17, 3, v3")
    g.I(f"v_mul_u32_u24 v21, {KVF_STRIDE}, v2")
    g.I("v_add_u32 v17, v17, v21")
    g.I("v_cndmask_b32 v17, v18, v17, vcc")
    lab = g.newlabel("Lrp")
    g.I(f"s_cmp_lg_u32 {sWAVE}, 4")
    g.I(f"s_cbranch_scc1 {lab}")
    g.I("v_lshlrev_b32 v19, 2, v0")
    g.I("s_lshr_b32 s51, s50, 1")
    g.I("s_lshl_b32 s51, s51, 8")
    g.I("v_add_u32 v19, s51, v19")
    g.I("v_cmp_gt_u32 vcc, 16, v0")
    g.I("v_cndmask_b32 v19, v18, v19, vcc")
    poll(g, "v19", KF_OFF, 16)
    g.L(lab)
    stamp(g, 4)
    g.I("s_barrier")
    g.I("s_lshr_b32 s51, s50, 1")
    g.I(f"s_mul_i32 s51, s51, {16*KVP_STRIDE}")
    g.I(f"s_add_u32 s51, s51, {KVP_OFF}")
    for rb in range(16):
        g.I(f"s_add_u32 s52, s51, {rb*KVP_STRIDE}")
        g.I(f"buffer_load_dwordx4 {vr(32+4*rb)}, v16, {R4(SRD_WS)}, s52 offen{SC}")
    for rb in range(1, 16):
        g.I(f"s_waitcnt vmcnt({15-rb})")
        for j in range(4):
            g.I(f"v_add_f32 v{32+j}, v{32+j}, v{32+4*rb+j}")
    g.I("v_cvt_pk_bf16_f32 v20, v32, v33")
    g.I("v_cvt_pk_bf16_f32 v21, v34, v35")
    g.I(f"s_mul_i32 s52, s50, {2*KVF_STRIDE}")
    g.I(f"s_add_u32 s52, s52, {KVF_OFF}")
    g.I(f"buffer_store_dwordx2 v[20:21], v17, {R4(SRD_WS)}, s52 offen{SC}")
    g.I("s_waitcnt vmcnt(0)")
    g.I("s_barrier")
    lab = g.newlabel("Lrf")
    g.I(f"s_cmp_lg_u32 {sWAVE}, 0")
    g.I(f"s_cbranch_scc1 {lab}")
    g.I(f"v_mov_b32 v5, {sNONCE}")
    g.I("v_mov_b32 v6, 0")
    g.I("v_cmp_eq_u32 vcc, 0, v0")
    g.I("v_cndmask_b32 v6, v18, v6, vcc")
    g.I("s_lshl_b32 s52, s50, 2")
    g.I(f"s_add_u32 s52, s52, {FF_OFF}")
    g.I(f"buffer_store_dword v5, v6, {R4(SRD_WS)}, s52 offen{SC}")
    g.L(lab)
    stamp(g, 5)
    lab = g.newlabel("Lro")
    g.I(f"s_cmp_ge_u32 {sWAVE}, 4")
    g.I(f"s_cbranch_scc1 {lab}")
    ojob_loads(g)
    g.I("s_waitcnt vmcnt(0)")
    ojob_compute(g)
    g.I("s_waitcnt vmcnt(0)")
    ojob_publish(g)
    g.L(lab)

def p2_body(g, nr, isL, vm, post_bp=None):
    g.C(f"==== P2 body nr={nr} L={isL}")
    ACC2 = 208
    A2 = lambda rt, ct: ACC2 + (rt * 4 + ct) * 4
    def AB(sidx, rt):
        if sidx < 4: return 104 + (sidx * 3 + rt) * 4
        if sidx < 7: return 16 + ((sidx - 4) * 3 + rt) * 4
        if sidx < 11: return 104 + ((sidx - 7) * 3 + rt) * 4
        return 16 + rt * 4
    BF = lambda b, ct: (80 if b == 0 else 52) + ct * 4
    WA = [68 + k for k in range(10)] + [198, 199]
    VK = 79
    VB = lambda ct: 96 + ct
    VA = 100
    VG = [101, 102, 103]
    VBH = lambda ct: 4 + ct
    VBH2 = lambda ct: 200 + ct
    VK1 = 204
    PQ = lambda k: 152 + (k % 12) * 4
    KV = lambda hh, T: 28 + ((hh % 3) * 2 + T) * 4
    VAL = lambda rt: 104 + rt * 16
    DD = lambda k, T: (52 if k % 2 == 0 else 16) + T * 4
    WFR = lambda ct: 80 + ct * 4
    PK = lambda k: 64 if k % 2 == 0 else 96
    lk = LgkmTracker(g)
    half_slots = (2, 4) if isL else (0, 2)
    g.I("v_and_b32 v1, 15, v0")
    g.I("v_lshrrev_b32 v2, 4, v0")
    g.I("v_bfe_u32 v3, v0, 2, 2")
    g.I("v_and_b32 v4, 3, v0")
    g.I(f"v_lshlrev_b32 v{VA}, 4, v0")
    g.I(f"v_mov_b32 v5, {BIG}")
    g.I("v_cmp_gt_u32 vcc, 48, v0")
    g.I(f"v_cndmask_b32 v{VK}, v5, v{VA}, vcc")
    g.I("v_lshrrev_b32 v6, 2, v1")
    g.I("v_lshlrev_b32 v6, 1, v6")
    g.I("v_and_b32 v7, 1, v1")
    g.I("v_add_u32 v6, v6, v7")
    g.I("v_lshlrev_b32 v6, 4, v6")
    g.I("v_lshl_add_u32 v6, v2, 7, v6")
    g.I("v_add_u32 v6, 768, v6")
    g.I("v_cndmask_b32 v6, v5, v6, vcc")
    g.I("v_and_b32 v7, 2, v1")
    g.I("v_cmp_eq_u32 vcc, 0, v7")
    g.I(f"v_cndmask_b32 v{VK1}, v5, v6, vcc")
    g.I("v_and_b32 v6, 1, v2")
    g.I("v_lshrrev_b32 v7, 1, v3")
    g.I("v_lshlrev_b32 v7, 1, v7")
    g.I("v_lshl_add_u32 v7, v6, 2, v7")
    g.I("v_lshl_add_u32 v8, v2, 2, v3")
    g.I("v_and_b32 v9, 1, v4")
    g.I("v_lshlrev_b32 v9, 3, v9")
    g.I("v_lshl_add_u32 v9, v8, 7, v9")
    g.I("s_lshl_b32 s56, s53, 12")
    g.I("v_add_u32 v9, s56, v9")
    g.I("v_lshrrev_b32 v8, 1, v4")
    for ct in range(4):
        g.I(f"v_add_u32 v12, {2*ct}, v8")
        g.I("v_xor_b32 v12, v12, v7")
        g.I(f"v_lshl_add_u32 v{VB(ct)}, v12, 4, v9")
    for ct in range(4):
        g.I(f"v_add_u32 v{VBH2(ct)}, 0x20000, v{VB(ct)}")
    for rt in range(nr):
        for ct in range(4):
            for i in range(4):
                g.I(f"v_mov_b32 v{A2(rt,ct)+i}, 0")
    g.I("v_mul_u32_u24 v12, 5, v2")
    g.I("s_mul_i32 s56, s53, 20480")
    g.I(f"s_add_u32 s56, s56, {WO_BASE}")
    g.I("v_lshlrev_b32 v13, 3, v4")
    g.I("v_add_u32 v13, s56, v13")
    for m in range(6):
        for half in range(2):
            base_v = 8 * (m % 3) + 4 * half
            if base_v >= 20:
                g.I(f"v_mov_b32 v14, {80*(m//3)}")
                g.I("v_add_u32 v14, v14, v12")
            else:
                g.I(f"v_add_u32 v14, {base_v}, v3")
                g.I("v_mul_u32_u24 v15, 52, v14")
                g.I("v_lshrrev_b32 v15, 8, v15")
                g.I("v_mul_u32_u24 v15, 15, v15")
                g.I("v_add3_u32 v14, v14, v15, v12")
                if m >= 3:
                    g.I("v_add_u32 v14, 80, v14")
            g.I("v_bfe_u32 v15, v14, 1, 2")
            g.I("v_lshlrev_b32 v15, 5, v15")
            g.I("v_lshl_add_u32 v14, v14, 7, v15")
            g.I(f"v_add_u32 v{WA[2*m+half]}, v14, v13")
    g.I("v_lshlrev_b32 v11, 2, v1")
    for ct in range(4):
        g.I(f"v_add_u32 v{VBH(ct)}, 0x10000, v{VB(ct)}")
    g.I("s_mul_i32 s3, s55, 48")
    g.I("s_mul_i32 s56, s53, 12")
    g.I("s_add_u32 s3, s3, s56")
    g.I("s_lshl_b32 s3, s3, 10")
    if OPT["rot2"]:
        g.I("s_lshl_b32 s61, s50, 10")
    else:
        g.I("s_mov_b32 s61, 0")
    g.I("s_mul_i32 s62, s55, 20480")
    g.I("s_mul_i32 s56, s53, 5120")
    g.I("s_add_u32 s62, s62, s56")
    def load_a(sidx):
        g.I("s_add_u32 s6, s3, s61")
        for rt in range(nr):
            g.I(f"s_add_u32 s56, s6, {H_OFF + rt*48*1024}")
            vm.issue(f"buffer_load_dwordx4 {vr(AB(sidx, rt))}, v{VA}, {R4(SRD_WS)}, s56 offen{SC}", ("a", sidx))
        g.I("s_add_u32 s61, s61, 1024")
        g.I(f"s_cmp_ge_u32 s61, {12*1024}")
        g.I(f"s_cselect_b32 s56, {12*1024}, 0")
        g.I("s_sub_u32 s61, s61, s56")
    if isL:
        g.I("v_lshrrev_b32 v12, 4, v0")
        g.I("v_lshlrev_b32 v12, 8, v12")
        g.I("v_and_b32 v13, 15, v0")
        g.I("v_lshl_add_u32 v12, v13, 2, v12")
        g.I(f"s_lshl_b32 s56, {sXCD}, 9")
        g.I("v_add_u32 v12, s56, v12")
        g.I("v_cmp_gt_u32 vcc, 32, v0")
        g.I(f"v_mov_b32 v13, {BIG}")
        g.I("v_cndmask_b32 v12, v13, v12, vcc")
        poll(g, "v12", HF_OFF, 32)
        vm.q = []
        lds_sig(g, CNT1_LDS)
    else:
        g.I("s_waitcnt vmcnt(0)")
        if post_bp:
            post_bp()
        lds_sig(g, CNT2_LDS)
    stamp(g, 4)
    lds_wait(g, CNT1_LDS, 4)
    stamp(g, 1, force=OPT["prof2"])
    def rd_b(sidx):
        base = W2R[sidx]
        for ct in range(4):
            for half in range(2):
                off = base + half * 2048
                if off >= 131072:
                    reg = VBH2(ct); off -= 131072
                elif off >= 65536:
                    reg = VBH(ct); off -= 65536
                else:
                    reg = VB(ct)
                lk.issue(f"ds_read_b64_tr_b16 {vr(BF(sidx % 2, ct) + 2*half, 2)}, v{reg} offset:{off}", ("b", sidx, ct))
    for sidx in range(7):
        load_a(sidx)
    def load_g():
        g.I("s_lshl_b32 s6, s55, 6")
        for rt in range(nr):
            g.I(f"s_add_u32 s56, s6, {G_OFF + rt*64}")
            vm.issue(f"buffer_load_dword v{VG[rt]}, v11, {R4(SRD_WS)}, s56 offen{SC}", ("g", 0))
    items = [(hh, rt) for hh in range(8) for rt in range(nr)]
    def load_pq(k):
        hh, rt = items[k]
        g.I(f"s_add_u32 s56, s62, {PQ_OFF + rt*20480 + ((5*hh) >> 1)*256}")
        vm.issue(f"buffer_load_dwordx4 {vr(PQ(k))}, v{VK}, {R4(SRD_WS)}, s56 offen{SC}", ("pq", k))
    load_g()
    lds_wait(g, CNT2_LDS, 4)
    dma_w2(g, vm, 7, half_slots); dma_w2(g, vm, 8, half_slots)
    def load_kv(hh):
        g.I(f"s_add_u32 s56, s7, {KVF_OFF + hh*KVF_STRIDE}")
        vm.issue(f"buffer_load_dwordx4 {vr(KV(hh,0))}, v{VK}, {R4(SRD_WS)}, s56 offen{SC}", ("kv", hh))
        vm.issue(f"buffer_load_dwordx4 {vr(KV(hh,1))}, v{VK1}, {R4(SRD_WS)}, s56 offen{SC}", ("kv", hh))
    OJ0 = OPT_OJ
    mark = {}
    rd_b(0)
    for sidx in range(12):
        if OPT["prof2"] and sidx in (0, 1, 3, 6, 8, 11):
            lk.drain()
            stamp(g, {0: 2, 1: 3, 3: 4, 6: 5, 8: 6, 11: 7}[sidx], force=True)
        if sidx == 5:
            g.I("s_barrier")
            dma_wo(g, vm, 10 if isL else 0, 20 if isL else 10)
        if sidx == 6:
            vm.wait(("d", 8))
            g.I("s_barrier")
            dma_w2(g, vm, 9, half_slots)
        if sidx == 7:
            g.I("s_barrier")
            dma_w2(g, vm, 10, half_slots)
        if sidx == 8:
            vm.wait(("d", 9))
            g.I("s_barrier")
            dma_w2(g, vm, 11, half_slots)
            stamp(g, 5)
        if sidx == 9:
            vm.wait(("d", 11))
            g.I("s_barrier")
        def ojhook(kind):
            lb = g.newlabel("Loj")
            g.I(f"s_bitcmp0_b32 {sI}, 1")
            g.I(f"s_cbranch_scc1 {lb}")
            if kind == "fl":
                ojob_flagload(g)
                mark["fl"] = vm.total
            elif kind == "kv":
                g.I(f"s_waitcnt vmcnt({min(63, vm.total - mark['fl'])})")
                ojob_loads(g, checked=True)
                mark["kv"] = vm.total
            elif kind == "cp":
                g.I(f"s_waitcnt vmcnt({min(63, vm.total - mark['kv'])})")
                ojob_compute(g)
                mark["st"] = vm.total
            else:
                g.I(f"s_waitcnt vmcnt({min(63, vm.total - mark['st'])}) lgkmcnt(0)")
                ojob_publish(g)
            g.L(lb)
        if not isL:
            if sidx == OJ0: ojhook("fl")
            if sidx == OJ0 + 1: ojhook("kv")
            if OPT["ojfast"]:
                if sidx == OJ0 + 3: ojhook("pb")
            else:
                if sidx == OJ0 + 2: ojhook("cp")
                if sidx == OJ0 + 4: ojhook("pb")
        if sidx + 1 < 12:
            rd_b(sidx + 1)
        vm.wait(("a", sidx))
        for ct in range(4):
            lk.wait(("b", sidx, ct))
            for rt in range(nr):
                a = A2(rt, ct)
                g.I(f"v_mfma_f32_16x16x32_bf16 {vr(a)}, {vr(BF(sidx % 2, ct))}, {vr(AB(sidx, rt))}, {vr(a)}")
        if not isL and OPT["ojfast"] and sidx == OJ0 + 1:
            ojhook("cp")
        if sidx < 4:
            load_a(sidx + 7)
        if sidx == 4:
            load_a(11)
    lk.drain()
    clkstamp(g, 4)
    vm.wait(("g", 0))
    for rt in range(nr):
        g.I(f"v_sub_f32 v12, 1.0, v{VG[rt]}")
        for ct in range(4):
            for i in range(0, 4, 2):
                g.I(f"v_pk_mul_f32 {vr(A2(rt,ct)+i, 2)}, {vr(A2(rt,ct)+i, 2)}, v[12:13] op_sel_hi:[1,0]")
    g.I("v_and_b32 v12, 1, v0")
    g.I("v_lshlrev_b32 v12, 2, v12")
    g.I("v_bfe_u32 v13, v0, 1, 1")
    g.I("v_lshl_add_u32 v12, v13, 8, v12")
    g.I(f"s_lshl_b32 s56, {sXCD}, 9")
    g.I("s_lshl_b32 s6, s53, 3")
    g.I("s_add_u32 s56, s56, s6")
    g.I("v_add_u32 v12, s56, v12")
    g.I("v_cmp_gt_u32 vcc, 4, v0")
    g.I(f"v_mov_b32 v13, {BIG}")
    g.I("v_cndmask_b32 v12, v13, v12, vcc")
    def rd_wo(n, b):
        for ct in range(4):
            for half in range(2):
                if ct == 0:
                    ar = WA[2*n+half]
                else:
                    ar = 14 + half
                    g.I(f"v_xor_b32 v{ar}, {ct << 5}, v{WA[2*n+half]}")
                lk.issue(f"ds_read_b64_tr_b16 {vr(BF(b, ct) + 2*half, 2)}, v{ar}", ("wf", n, ct))
    poll(g, "v12", QF_OFF, 4, tmp="v10")
    vm.q = []
    stamp(g, 6)
    OB = lambda n, rt: (104 + (n * 3 + rt) * 4) if n < 4 else (28 + ((n - 4) * 3 + rt) * 4)
    g.I("s_mul_i32 s6, s55, 24")
    g.I("s_mul_i32 s56, s53, 6")
    g.I("s_add_u32 s6, s6, s56")
    g.I("s_lshl_b32 s6, s6, 10")
    for n in range(6):
        for rt in range(nr):
            g.I(f"s_add_u32 s56, s6, {O_OFF + rt*24*1024 + n*1024}")
            vm.issue(f"buffer_load_dwordx4 {vr(OB(n, rt))}, v{VA}, {R4(SRD_WS)}, s56 offen{SC}", ("o", n))
    rd_wo(0, 0)
    for n in range(6):
        if n + 1 < 6:
            rd_wo(n + 1, (n + 1) % 2)
        vm.wait(("o", n))
        for ct in range(4):
            lk.wait(("wf", n, ct))
            for rt in range(nr):
                a = A2(rt, ct)
                g.I(f"v_mfma_f32_16x16x32_bf16 {vr(a)}, {vr(BF(n % 2, ct))}, {vr(OB(n, rt))}, {vr(a)}")
    stamp(g, 7)
    g.I("s_barrier")

def p2_final(g):
    A2 = lambda rt, ct: 208 + (rt * 4 + ct) * 4
    def base_of(dst, w_s):
        g.I(f"s_mul_i32 {dst}, {w_s}, 9216")
        g.I(f"s_cmp_ge_u32 {w_s}, 4")
        g.I(f"s_cselect_b32 s56, {126976 - 4*9216}, 0")
        g.I(f"s_add_u32 {dst}, {dst}, s56")
    g.I("v_lshlrev_b32 v1, 4, v0")
    base_of("s57", sWAVE)
    g.I("v_add_u32 v2, s57, v1")
    g.I("v_and_b32 v3, 15, v0")
    g.I("v_mul_u32_u24 v3, 1280, v3")
    g.I("v_lshrrev_b32 v4, 4, v0")
    g.I("v_lshl_add_u32 v3, v4, 3, v3")
    g.I(f"s_mul_i32 s58, s55, {16*1280}")
    g.I("s_lshl_b32 s59, s50, 7")
    g.I("s_add_u32 s58, s58, s59")
    g.I("s_lshl_b32 s59, s53, 5")
    g.I("s_add_u32 s58, s58, s59")
    g.I("s_cmp_lt_u32 s51, 2")
    g.I("s_cselect_b32 s59, s54, 0")
    g.I("s_cmp_eq_u32 s59, 1")
    g.I(f"s_cselect_b32 s59, {BIG}, 0")
    g.I("v_add_u32 v5, s59, v3")
    labs = [g.newlabel("Lfk") for _ in range(4)]
    done = g.newlabel("Lfd")
    for kq in range(1, 4):
        g.I(f"s_cmp_eq_u32 s53, {kq}")
        g.I(f"s_cbranch_scc1 {labs[kq]}")
    for kq in range(4):
        g.L(labs[kq])
        others = [c for c in range(4) if c != kq]
        for rt in range(3):
            for k, ct in enumerate(others):
                g.I(f"ds_write_b128 v2, {vr(A2(rt, ct))} offset:{(rt*3 + k)*1024}")
        for k, src in enumerate(others):
            g.I("s_lshl_b32 s60, s54, 2")
            g.I(f"s_add_u32 s60, s60, {src}")
            base_of("s61", "s60")
            idx = kq if kq < src else kq - 1
            g.I(f"s_add_u32 s61, s61, {idx*1024}")
            g.I(f"v_add_u32 v{6+k}, s61, v1")
        g.I("s_waitcnt lgkmcnt(0)")
        g.I("s_barrier")
        for rt in range(3):
            for k in range(3):
                g.I(f"ds_read_b128 {vr(16 + (rt*3 + k)*4)}, v{6+k} offset:{rt*3*1024}")
        for rt in range(3):
            g.I(f"s_waitcnt lgkmcnt({6 - 3*rt})")
            a = A2(rt, kq)
            b = 16 + rt * 12
            for i in range(4):
                g.I(f"v_add_f32 v{b+i}, v{b+i}, v{b+4+i}")
                g.I(f"v_add_f32 v{a+i}, v{a+i}, v{b+8+i}")
            for i in range(4):
                g.I(f"v_add_f32 v{a+i}, v{a+i}, v{b+i}")
            g.I(f"v_cvt_pk_bf16_f32 v{b}, v{a}, v{a+1}")
            g.I(f"v_cvt_pk_bf16_f32 v{b+1}, v{a+2}, v{a+3}")
            g.I(f"s_add_u32 s56, s58, {rt*16*1280}")
            g.I(f"buffer_store_dwordx2 {vr(b,2)}, v{3 if rt < 2 else 5}, {R4(SRD_OUT)}, s56 offen{' nt' if OPT['ntout'] else ''}{' sc1' if OPT['scout'] else ''}{' sc0 sc1' if OPT['scout2'] else ''}")
        if kq < 3:
            g.I(f"s_branch {done}")
    g.L(done)

def kernel(g):
    end = "Lend"
    g.I("s_cmp_ge_u32 s2, 256")
    g.I(f"s_cbranch_scc1 {end}")
    g.I("s_load_dwordx16 s[64:79], s[0:1], 0")
    g.I("s_load_dwordx4 s[80:83], s[0:1], 64")
    if OPT["stamp"]:
        for k in range(8):
            g.I(f"s_mov_b32 s{84+2*k}, 0")
        g.I("s_memrealtime s[84:85]")
    if OPT["span"]:
        g.I("s_memrealtime s[100:101]")
    g.I("v_lshrrev_b32 v1, 6, v0")
    g.I("v_and_b32 v0, 63, v0")
    g.I(f"v_readfirstlane_b32 {sWAVE}, v1")
    g.I(f"s_and_b32 {sXCD}, s2, 7")
    g.I(f"s_lshr_b32 {sI}, s2, 3")
    g.I(f"s_and_b32 {sRB}, {sXCD}, 1")
    g.I(f"s_lshl_b32 {sRB}, {sRB}, 3")
    g.I(f"s_lshr_b32 s50, {sI}, 2")
    g.I(f"s_add_u32 {sRB}, {sRB}, s50")
    g.I(f"s_lshr_b32 {sA}, {sXCD}, 1")
    g.I(f"s_lshl_b32 {sA}, {sA}, 1")
    g.I(f"s_and_b32 s50, {sI}, 1")
    g.I(f"s_add_u32 {sA}, {sA}, s50")
    g.I(f"s_mov_b32 {sNONCE}, 0")
    if OPT["prof"]:
        g.I("s_getreg_b32 s3, hwreg(HW_REG_XCC_ID)")
        g.I("s_and_b32 s3, s3, 15")
        g.I("s_add_u32 s92, s3, 1000")
    g.I(f"s_cmp_ge_u32 {sWAVE}, 4")
    g.I("s_cbranch_scc1 Lload")
    g.I(f"s_bitcmp1_b32 {sI}, 1")
    g.I("s_cbranch_scc1 LcB")
    p1_compute(g, "A")
    p1_epilogue_A(g)
    read_nonce(g)
    g.I("s_mov_b32 s7, 0")
    g.I("s_branch Lp2C")
    g.L("LcB")
    p1_compute(g, "B")
    p1_epilogue_B(g)
    read_nonce(g)
    g.L("Lp2C")
    def pub():
        la, lb = g.newlabel("Lpub"), g.newlabel("Lpub")
        g.I(f"s_bitcmp1_b32 {sI}, 1")
        g.I(f"s_cbranch_scc1 {lb}")
        save = None
        publish_flag(g, "K")
        g.I(f"s_branch {la}")
        g.L(lb)
        publish_flag(g, "Q")
        g.L(la)
    g.I(f"s_cmp_ge_u32 {sI}, 30")
    g.I("s_cbranch_scc1 LredC")
    p2_decode(g)
    p2_dma_setup(g)
    g.I(f"s_add_u32 s57, s57, {7*32*1280}")
    g.I("s_cmp_ge_u32 s57, s63")
    g.I(f"s_cselect_b32 s56, {12*32*1280}, 0")
    g.I("s_sub_u32 s57, s57, s56")
    vm = VmTracker(g)
    p2_body(g, 3, False, vm, post_bp=pub_p2(g))
    g.I("s_branch Lfin")
    g.L("LredC")
    g.I("s_waitcnt vmcnt(0)")
    g.I("s_barrier")
    g.I("s_branch Lred")
    g.L("Lload")
    g.I(f"s_bitcmp1_b32 {sI}, 1")
    g.I("s_cbranch_scc1 LldB")
    p1_loader(g, "A")
    g.I("s_branch Lldtail")
    g.L("LldB")
    p1_loader(g, "B")
    g.L("Lldtail")
    g.I(f"s_cmp_ge_u32 {sI}, 30")
    g.I("s_cbranch_scc1 Lldred")
    p2_decode(g)
    p2_dma_setup(g)
    vmL = VmTracker(g)
    vmL.q = [("c", 8)] * 11 + [("c", 9)] * 11
    if OPT["l2w"]:
        l2warm(g, vmL)
    vmL.wait(("c", 8))
    g.I("s_barrier")
    dma_w2(g, vmL, 0); dma_w2(g, vmL, 1)
    vmL.wait(("c", 9))
    stamp(g, 3)
    g.I("s_barrier")
    for k in (2, 3, 4):
        dma_w2(g, vmL, k)
    g.I("s_barrier")
    dma_w2(g, vmL, 5); dma_w2(g, vmL, 6)
    read_nonce(g)
    l2 = "Lp2L2"
    g.I("s_cmp_lt_u32 s51, 2")
    g.I(f"s_cbranch_scc1 {l2}")
    vm3 = VmTracker(g); vm3.q = list(vmL.q)
    p2_body(g, 3, True, vm3)
    g.I("s_branch Lfin")
    g.L(l2)
    vm2 = VmTracker(g); vm2.q = list(vmL.q)
    p2_body(g, 2, True, vm2)
    g.L("Lfin")
    p2_final(g)
    g.I("s_branch Ldone")
    g.L("Lldred")
    g.I("s_waitcnt vmcnt(11)")
    g.I("s_barrier")
    g.I("s_waitcnt vmcnt(0)")
    g.I("s_barrier")
    g.I("s_barrier")
    read_nonce(g)
    g.I("s_barrier")
    g.L("Lred")
    reducer(g)
    g.L("Ldone")
    if OPT["span"]:
        g.I("s_waitcnt vmcnt(0)")
        g.I("s_memrealtime s[4:5]")
        g.I("s_waitcnt lgkmcnt(0)")
        g.I("s_not_b32 s6, s100")
        g.I("v_mov_b32 v1, 0")
        g.I("v_mov_b32 v2, s4")
        g.I("v_mov_b32 v3, s6")
        g.I("v_cmp_eq_u32 vcc, 0, v0")
        g.I("s_and_saveexec_b64 s[6:7], vcc")
        g.I("global_atomic_umax v1, v2, s[80:81] offset:4")
        g.I("global_atomic_umax v1, v3, s[80:81] offset:8")
        g.I("s_mov_b64 exec, s[6:7]")
    if OPT["stamp"]:
        g.I("s_waitcnt vmcnt(0)")
    stamp_flush(g)
    g.L(end)
    g.I("s_endpgm")
    g.L("Lcode_end")

def kd(name, vgpr, sgpr=102):
    return f""".p2align 6
.amdhsa_kernel {name}
  .amdhsa_next_free_vgpr {vgpr}
  .amdhsa_next_free_sgpr {sgpr}
  .amdhsa_accum_offset {vgpr}
  .amdhsa_group_segment_fixed_size 0
  .amdhsa_kernarg_size 80
  .amdhsa_user_sgpr_count 2
  .amdhsa_user_sgpr_kernarg_segment_ptr 1
  .amdhsa_system_sgpr_workgroup_id_x 1
.end_amdhsa_kernel
"""

HEADER = open("cdna_kernels/" + NAME + ".s.ref").read().split("; Override launch")[0]

def build():
    out = HEADER
    out += f"; @launch grid=(256,1,1) block=(512,1,1) lds={LDS_TOTAL}\n"
    out += '.amdgcn_target "amdgcn-amd-amdhsa--gfx950"\n.text\n'
    g = Gen()
    kernel(g)
    g.fix_hazards()
    for p in g.check_branches():
        print("BRANCH HAZARD:", p, file=sys.stderr)
    out += f".globl {KNAME}\n.p2align 8\n.type {KNAME},@function\n{KNAME}:\n" + g.text()
    out += '.section .rodata,"a"\n' + kd(KNAME, 256)
    return out

if __name__ == "__main__":
    args = sys.argv[1:]
    for a in list(args):
        if a.startswith("--oj="):
            OPT_OJ = int(a[5:]); args.remove(a); continue
        if a.startswith("--rot="):
            v = a[6:].split(","); ROT.update(shj=int(v[0]), mulj=int(v[1]), mulr=int(v[2])); args.remove(a)
        elif a.startswith("--"):
            k = a[2:]
            if k.startswith("no"):
                OPT[k[2:]] = False
            else:
                OPT[k] = True
            args.remove(a)
    path = args[0] if args else "v2.s"
    txt = build()
    open(path, "w").write(txt)
    print("wrote", path, len(txt), "bytes")
```
